```python
import torch

def _softmax(x, axis=-1):
    return torch.softmax(x, dim=axis)
def _gelu(x):
    return torch.nn.functional.gelu(x, approximate="tanh")
def _silu(x):
    return torch.nn.functional.silu(x)
def _sigmoid(x):
    return torch.sigmoid(x)
def _layernorm(x, axis=-1, eps=1e-5):
    m = x.mean(dim=axis, keepdim=True)
    v = x.var(dim=axis, keepdim=True, unbiased=False)
    return (x - m) / torch.sqrt(v + eps)
def _scatter_add(tgt, idx, src, axis=0):
    return tgt.clone().index_add_(axis, idx, src)
def _segment_sum(src, seg, n):
    out = torch.zeros((n,) + src.shape[1:], dtype=src.dtype)
    return out.index_add_(0, seg, src)
def _pad(x, pw):
    flat = tuple(v for pair in reversed(pw) for v in pair)
    return torch.nn.functional.pad(x, flat)

kernel_name = 'interleave_layers__gqa_block_cached__geglu_ffn__decode'

def setup_inputs():

    _w = (lambda a: (lambda t: t.to(torch.bfloat16) if t.is_floating_point() else t)(torch.as_tensor(a)))
    def _A_setup():
        B, Sq, D = 4, 1, 448
        Hq, Hkv, Sk, Dh = 16, 8, 4096, 256
        assert Hq % Hkv == 0, (Hq, Hkv)
        return {
            "x": _w((lambda *s: torch.randn(*s, dtype=torch.bfloat16) * 0.05)(B, Sq, D)),
            "k_cache": _w((lambda *s: torch.randn(*s, dtype=torch.bfloat16) * 1.6)(B, Hkv, Sk, Dh)),
            "v_cache": _w((lambda *s: torch.randn(*s, dtype=torch.bfloat16) * 1.6)(B, Hkv, Sk, Dh)),
            "wq": _w((lambda *s: torch.randn(*s, dtype=torch.bfloat16) * 1.6)(D, Hq * Dh) * (D ** -0.5)),
            "wo": _w((lambda *s: torch.randn(*s, dtype=torch.bfloat16) * 1.6)(Hq * Dh, D) * ((Hq * Dh) ** -0.5)),
        }
    _A_in = _A_setup()

    def _B_setup():
        B, S, D, F = 4, 1, 448, 1792
        return {
            "x": _w((lambda *s: torch.randn(*s, dtype=torch.bfloat16) * 0.05)(B, S, D)),
            "w_gate": _w((lambda *s: torch.randn(*s, dtype=torch.bfloat16) * 0.05)(D, F)),
            "w_up": _w((lambda *s: torch.randn(*s, dtype=torch.bfloat16) * 0.05)(D, F)),
            "w_down": _w((lambda *s: torch.randn(*s, dtype=torch.bfloat16) * 0.05)(F, D)),
        }
    _B_in = _B_setup()

    return {
        "A_x": _A_in["x"],
        "A_k_cache": _A_in["k_cache"],
        "A_v_cache": _A_in["v_cache"],
        "A_wq": _A_in["wq"],
        "A_wo": _A_in["wo"],
        "B_x": _B_in["x"],
        "B_w_gate": _B_in["w_gate"],
        "B_w_up": _B_in["w_up"],
        "B_w_down": _B_in["w_down"],
    }

def reference(A_x, A_k_cache, A_v_cache, A_wq, A_wo, B_x, B_w_gate, B_w_up, B_w_down):
    def _A_ref(x, k_cache, v_cache, wq, wo):
        B, Sq, D = x.shape
        Hq, Dh = 16, 256
        Hkv = k_cache.shape[1]
        rep = Hq // Hkv
        q = (lambda x, *d: x.permute(*d))((x @ wq).reshape(B, Sq, Hq, Dh), 0, 2, 1, 3)
        k = (lambda x, n, axis: torch.repeat_interleave(x, n, dim=axis))(k_cache, rep, axis=1)
        v = (lambda x, n, axis: torch.repeat_interleave(x, n, dim=axis))(v_cache, rep, axis=1)
        scores = torch.einsum("bhqd,bhkd->bhqk", q, k) * (Dh ** -0.5)
        p = _softmax(scores, axis=-1)
        o = torch.einsum("bhqk,bhkd->bhqd", p, v)
        return (lambda x, *d: x.permute(*d))(o, 0, 2, 1, 3).reshape(B, Sq, Hq * Dh) @ wo

    def _B_ref(x, w_gate, w_up, w_down):
        return (_gelu(x @ w_gate) * (x @ w_up)) @ w_down

    x = A_x
    x = x + _A_ref(_layernorm(x, axis=-1), A_k_cache, A_v_cache, A_wq, A_wo)
    x = x + _B_ref(_layernorm(x, axis=-1), B_w_gate, B_w_up, B_w_down)
    x = x + _A_ref(_layernorm(x, axis=-1), A_k_cache, A_v_cache, A_wq, A_wo)
    x = x + _B_ref(_layernorm(x, axis=-1), B_w_gate, B_w_up, B_w_down)
    return x
```

```python
import sys, struct
NAME = "interleave_layers__gqa_block_cached__geglu_ffn__decode"
OPT = dict(nt=1, depth=24, stamps=0, kfirst=32, p1=40)
for a in sys.argv[2:]:
    k, v = a.split('='); OPT[k] = int(v)
out = []
def E(s): out.append("    " + s)
def Lb(s): out.append(s + ":")
def f32(x): return "0x%08x" % struct.unpack('<I', struct.pack('<f', x))[0]
NT = " nt" if OPT['nt'] else ""
NLDSV = 36
SCR = 0; VBASE = 16384
ACT = SCR; RED = SCR + 2048; STAT = SCR + 4096; ML = SCR + 4224; OM = SCR + 4352
LDS_TOTAL = 163840
QB = 0; AP = 0x10000; X1P = 0x210000; GU = 0x230000; X2P = 0x250000; WS_END = 0x270000; STP = 0x300000
vm = []
def VM(tag, s): vm.append(tag); E(s)
def wait_tag(tag):
    idx = max(i for i, t in enumerate(vm) if t == tag)
    n = len(vm) - 1 - idx
    E("s_waitcnt vmcnt(%d)" % min(n, 63))
def vm_reset(): vm.clear()
stamp_n = [0]
def stamp():
    if not OPT['stamps']: return
    n = stamp_n[0]; stamp_n[0] += 1
    E("s_cmp_lg_u32 s7, 0"); E("s_cbranch_scc1 Lst%d" % n)
    E("s_memrealtime s[8:9]"); E("s_waitcnt lgkmcnt(0)")
    E("v_mov_b32 v24, s8"); E("s_lshl_b32 s9, s2, 8"); E("s_lshl_b32 s8, s3, 7"); E("s_add_u32 s9, s9, s8")
    E("s_add_u32 s9, s9, 0x%x" % (STP + n * 4)); E("v_mov_b32 v25, 0")
    E("s_mov_b64 exec, 1"); E("buffer_store_dword v24, v25, s[64:67], s9 offen"); E("s_mov_b64 exec, -1")
    Lb("Lst%d" % n)
def bf16r(dst, src):
    E("v_cvt_pk_bf16_f32 %s, %s, %s" % (dst, src, src)); E("v_lshlrev_b32 %s, 16, %s" % (dst, dst))
def vr(a, n=4): return "v[%d:%d]" % (a, a + n - 1)
def ar(a, n=4): return "a[%d:%d]" % (a, a + n - 1)
WB = 64
poll_n = [0]
def poll(loads, regs):
    n = poll_n[0]; poll_n[0] += 1
    E("s_mov_b32 s98, 0")
    Lb("Lpoll%d" % n)
    for s in loads: E(s)
    E("s_waitcnt vmcnt(0)")
    check(regs)
    E("s_cbranch_vccz Lpolld%d" % n)
    E("s_add_u32 s98, s98, 1"); E("s_cmp_lt_u32 s98, 0x8000"); E("s_cbranch_scc1 Lpoll%d" % n)
    Lb("Lpolld%d" % n)
    vm_reset()
def check(regs):
    r = list(regs)
    if len(r) == 1: E("v_cmp_eq_u32 vcc, -1, v%d" % r[0]); return
    if len(r) == 2: E("v_max_u32 v31, v%d, v%d" % (r[0], r[1])); r = []
    else: E("v_max3_u32 v31, v%d, v%d, v%d" % (r[0], r[1], r[2])); r = r[3:]
    while len(r) >= 2: E("v_max3_u32 v31, v31, v%d, v%d" % (r[0], r[1])); r = r[2:]
    if r: E("v_max_u32 v31, v31, v%d" % r[0])
    E("v_cmp_eq_u32 vcc, -1, v31")

def wloads(kind):
    srd, voff, sbase, T, RS, buf = {
        'Q': ("s[48:51]", "v4", "s92", 14, 8192, WB), 'W': ("s[52:55]", "v5", "s93", 16, 896, WB),
        'G': ("s[56:59]", "v6", "s94", 14, 3584, WB), 'D': ("s[60:63]", "v7", "s95", 7, 896, 32)}[kind]
    per = 4095 // RS + 1
    for t in range(T):
        if t % per == 0:
            if t == 0: so = sbase
            else: E("s_add_u32 s8, %s, 0x%x" % (sbase, t * RS)); so = "s8"
        VM('w' + kind, "buffer_load_dwordx4 %s, %s, %s, %s offen offset:%d" % (vr(buf + 4 * t), voff, srd, so, (t % per) * RS))
def dense(kind):
    T, buf = {'Q': (14, WB), 'W': (16, WB), 'G': (14, WB), 'D': (7, 32)}[kind]
    for q in range((T + 3) // 4): E("ds_read_b128 %s, v8 offset:%d" % (vr(128 + 4 * q), 16 * q))
    nq = (T + 3) // 4
    for t in range(T):
        if t % 4 == 0: E("s_waitcnt lgkmcnt(%d)" % (nq - 1 - t // 4))
        b = 24 + 4 * (t & 1)
        for r in range(4): E("v_and_b32 v%d, v%d, v%d" % (b + r, 128 + t, 12 + r))
        if t > 0:
            pb = 24 + 4 * ((t - 1) & 1)
            E("v_mfma_f32_16x16x32_bf16 v[60:63], %s, %s, %s" % (vr(buf + 4 * (t - 1)), vr(pb), "0" if t == 1 else "v[60:63]"))
    E("s_nop 1")
    E("v_mfma_f32_16x16x32_bf16 v[60:63], %s, %s, v[60:63]" % (vr(buf + 4 * (T - 1)), vr(24 + 4 * ((T - 1) & 1))))
def dense_red():
    E("s_nop 7")
    E("s_mov_b64 exec, s[96:97]"); E("ds_write_b128 v9, v[60:63]"); E("s_mov_b64 exec, -1")
    E("s_waitcnt lgkmcnt(0)"); E("s_barrier")
def red_sum1():
    for s in range(0, 8, 2): E("ds_read2st64_b32 %s, v10 offset0:%d offset1:%d" % (vr(128 + s, 2), s, s + 1))
    E("s_waitcnt lgkmcnt(0)")
    E("v_add_f32 v24, v128, v129"); E("v_add_f32 v25, v130, v131"); E("v_add_f32 v26, v132, v133"); E("v_add_f32 v27, v134, v135")
    E("v_add_f32 v24, v24, v25"); E("v_add_f32 v26, v26, v27"); E("v_add_f32 v24, v24, v26")
def store56(soff, lab, rnd):
    E("s_cmp_lg_u32 s7, 0"); E("s_cbranch_scc1 %s" % lab)
    red_sum1()
    if rnd: bf16r("v24", "v24")
    E("v_min_u32 v24, -2, v24")
    E("s_mov_b32 exec_hi, 0x00ffffff")
    E("buffer_store_dword v24, v21, s[64:67], %s offen sc1" % soff)
    E("s_mov_b32 exec_hi, -1")
    Lb(lab)
def xfront_poll(sread):
    loads = []
    for p in range(8):
        if p % 2 == 0 and p: loads.append("s_add_u32 s8, %s, %d" % (sread, p * 2048))
        loads.append("buffer_load_dwordx2 %s, v19, s[64:67], %s offen offset:%d sc1" % (vr(128 + 2 * p, 2), sread if p < 2 else "s8", (p % 2) * 2048))
    poll(loads, range(128, 144))
    E("v_pk_add_f32 v[128:129], v[128:129], v[130:131]"); E("v_pk_add_f32 v[132:133], v[132:133], v[134:135]")
    E("v_pk_add_f32 v[136:137], v[136:137], v[138:139]"); E("v_pk_add_f32 v[140:141], v[140:141], v[142:143]")
    E("v_pk_add_f32 v[128:129], v[128:129], v[132:133]"); E("v_pk_add_f32 v[136:137], v[136:137], v[140:141]")
    E("v_pk_add_f32 v[128:129], v[128:129], v[136:137]")
    E("v_cvt_pk_bf16_f32 v24, v128, v129"); E("v_lshlrev_b32 v25, 16, v24"); E("v_and_b32 v26, 0xffff0000, v24")
    E("v_add_f32 v22, v22, v25"); E("v_add_f32 v23, v23, v26")
    E("v_cvt_pk_bf16_f32 v24, v22, v23"); E("v_lshlrev_b32 v22, 16, v24"); E("v_and_b32 v23, 0xffff0000, v24")
def layernorm():
    E("v_add_f32 v24, v22, v23"); E("v_mul_f32 v25, v22, v22"); E("v_fmac_f32 v25, v23, v23")
    E("v_cndmask_b32 v24, 0, v24, s[100:101]"); E("v_cndmask_b32 v25, 0, v25, s[100:101]")
    for c in ["row_shr:1", "row_shr:2", "row_shr:4", "row_shr:8"]:
        E("s_nop 0")
        E("v_add_f32_dpp v24, v24, v24 %s row_mask:0xf bank_mask:0xf bound_ctrl:0" % c)
        E("v_add_f32_dpp v25, v25, v25 %s row_mask:0xf bank_mask:0xf bound_ctrl:0" % c)
    E("v_lshrrev_b32 v26, 4, v0"); E("v_lshlrev_b32 v26, 3, v26")
    E("s_mov_b32 exec_lo, 0x80008000"); E("s_mov_b32 exec_hi, 0x80008000")
    E("ds_write_b64 v26, v[24:25] offset:%d" % STAT)
    E("s_mov_b64 exec, -1")
    E("v_mov_b32 v26, %d" % STAT)
    E("s_waitcnt lgkmcnt(0)"); E("s_barrier")
    for q in range(4): E("ds_read_b128 %s, v26 offset:%d" % (vr(128 + 4 * q), 16 * q))
    E("s_waitcnt lgkmcnt(0)")
    for q in range(0, 16, 4): E("v_pk_add_f32 %s, %s, %s" % (vr(128 + q, 2), vr(128 + q, 2), vr(130 + q, 2)))
    E("v_pk_add_f32 v[128:129], v[128:129], v[132:133]"); E("v_pk_add_f32 v[136:137], v[136:137], v[140:141]")
    E("v_pk_add_f32 v[24:25], v[128:129], v[136:137]")
    for q in range(4): E("ds_read_b128 %s, v26 offset:%d" % (vr(128 + 4 * q), 64 + 16 * q))
    E("s_waitcnt lgkmcnt(0)")
    for q in range(0, 16, 4): E("v_pk_add_f32 %s, %s, %s" % (vr(128 + q, 2), vr(128 + q, 2), vr(130 + q, 2)))
    E("v_pk_add_f32 v[128:129], v[128:129], v[132:133]"); E("v_pk_add_f32 v[136:137], v[136:137], v[140:141]")
    E("v_pk_add_f32 v[128:129], v[128:129], v[136:137]")
    E("v_pk_add_f32 v[24:25], v[24:25], v[128:129]")
    E("v_mul_f32 v24, %s, v24" % f32(1 / 448)); E("v_mul_f32 v25, %s, v25" % f32(1 / 448))
    E("v_fma_f32 v25, -v24, v24, v25"); E("v_max_f32 v25, 0, v25")
    bf16r("v24", "v24"); bf16r("v25", "v25")
    E("v_add_f32 v25, %s, v25" % f32(1e-5)); bf16r("v25", "v25")
    E("v_sqrt_f32 v25, v25"); E("s_nop 0"); bf16r("v25", "v25")
    E("v_rcp_f32 v25, v25")
    E("v_sub_f32 v26, v22, v24"); E("v_sub_f32 v27, v23, v24")
    E("v_cvt_pk_bf16_f32 v28, v26, v27"); E("v_lshlrev_b32 v26, 16, v28"); E("v_and_b32 v27, 0xffff0000, v28")
    E("v_mul_f32 v26, v26, v25"); E("v_mul_f32 v27, v27, v25")
    E("v_cvt_pk_bf16_f32 v26, v26, v26"); E("v_cvt_pk_bf16_f32 v27, v27, v27")
    E("ds_write_b64 v16, v[26:27]")
    E("s_waitcnt lgkmcnt(0)"); E("s_barrier")
def kload(n):
    T, t = n // 8, n % 8
    if t == 0: E("s_add_u32 s10, s80, %d" % (T * 8192))
    VM('K', "buffer_load_dwordx4 %s, v1, s[40:43], s10 offen offset:%d%s" % (ar(4 * n), 64 * t, NT))
def vload(u):
    T, r, hf = u // 8, (u // 2) % 4, u % 2
    if u % 8 == 0: E("s_add_u32 s10, s80, %d" % (T * 8192))
    io = r * 512 + hf * 256
    if u < NLDSV:
        E("s_add_u32 m0, s81, %d" % (u * 1024 + 4096 - io)); E("s_nop 0")
        VM('V%d' % u, "buffer_load_dwordx4 v2, s[44:47], s10 offen offset:%d%s lds" % (io, NT))
    else:
        VM('V%d' % u, "buffer_load_dwordx4 %s, v2, s[44:47], s10 offen offset:%d%s" % (vr(144 + 4 * (u - NLDSV)), io, NT))
def throttle(): E("s_waitcnt vmcnt(%d)" % (OPT['depth'] - 1))

hdr = open("cdna_kernels/%s.s.ref" % NAME).read().split("\n")
for l in hdr:
    if l.startswith("; @launch"): out.append("; @launch grid=(256,1,1) block=(256,1,1) lds=%d" % LDS_TOTAL)
    elif l.startswith(";"): out.append(l)
    else: break
out += ['.amdgcn_target "amdgcn-amd-amdhsa--gfx950"', ".text", ".globl %s_kernel" % NAME, ".p2align 8",
        ".type %s_kernel,@function" % NAME, "%s_kernel:" % NAME]
E("s_cmp_ge_u32 s2, 256"); E("s_cbranch_scc1 Lend")
E("s_load_dwordx16 s[16:31], s[0:1], 0"); E("s_load_dwordx8 s[32:39], s[0:1], 64")
E("v_lshrrev_b32 v1, 6, v0"); E("s_and_b32 s4, s2, 7"); E("v_readfirstlane_b32 s7, v1")
E("s_lshr_b32 s5, s2, 3"); E("s_and_b32 s5, s5, 3"); E("s_lshr_b32 s6, s2, 5"); E("s_mov_b32 s3, 0")
E("v_and_b32 v24, 15, v0"); E("v_bfe_u32 v25, v0, 4, 2"); E("v_bfe_u32 v26, v0, 3, 1"); E("v_and_b32 v27, 7, v0")
E("v_lshl_add_u32 v28, v25, 1, v26"); E("v_min_u32 v29, 6, v27"); E("v_lshlrev_b32 v29, 4, v29")
E("v_lshlrev_b32 v1, 9, v24"); E("v_lshl_add_u32 v1, v25, 4, v1")
E("v_lshlrev_b32 v2, 11, v25"); E("v_lshl_add_u32 v2, v24, 4, v2")
E("v_lshlrev_b32 v3, 9, v26"); E("v_lshl_add_u32 v3, v25, 4, v3")
E("v_mul_u32_u24 v4, %d, v28" % (14 * 8192)); E("v_lshl_add_u32 v4, v27, 4, v4")
E("v_mul_u32_u24 v5, %d, v28" % (16 * 896)); E("v_add_u32 v5, v5, v29")
E("v_mul_u32_u24 v6, %d, v28" % (14 * 3584)); E("v_add_u32 v6, v6, v29")
E("v_mul_u32_u24 v7, %d, v28" % (7 * 896)); E("v_add_u32 v7, v7, v29")
E("v_lshrrev_b32 v30, 6, v0")
E("v_lshl_add_u32 v8, v30, 3, v28"); E("v_lshlrev_b32 v8, 6, v8"); E("v_add_u32 v8, %d, v8" % ACT)
E("v_lshl_add_u32 v9, v30, 1, v26"); E("v_lshl_add_u32 v9, v9, 3, v27"); E("v_lshlrev_b32 v9, 5, v9")
E("v_and_b32 v31, 1, v25"); E("v_lshl_add_u32 v9, v31, 4, v9"); E("v_add_u32 v9, %d, v9" % RED)
E("v_bfe_u32 v10, v0, 3, 3"); E("v_lshlrev_b32 v10, 2, v10"); E("v_lshl_add_u32 v10, v27, 5, v10"); E("v_add_u32 v10, %d, v10" % RED)
E("v_and_b32 v11, 3, v0"); E("v_lshlrev_b32 v11, 6, v11"); E("v_bfe_u32 v31, v0, 2, 3"); E("v_lshl_add_u32 v11, v31, 2, v11"); E("v_add_u32 v11, %d, v11" % RED)
E("v_and_b32 v31, 1, v27"); E("v_lshlrev_b32 v31, 4, v31"); E("v_mov_b32 v30, 0xffff"); E("v_lshlrev_b32 v30, v31, v30")
E("v_lshrrev_b32 v31, 1, v27")
for r in range(4):
    E("v_cmp_eq_u32 vcc, %d, v31" % r); E("s_nop 1"); E("v_cndmask_b32 v%d, 0, v30, vcc" % (12 + r))
E("v_min_u32 v24, 223, v0"); E("v_mul_u32_u24 v25, 293, v24"); E("v_lshrrev_b32 v25, 11, v25")
E("v_mul_u32_u24 v26, 7, v25"); E("v_sub_u32 v26, v24, v26")
E("v_lshlrev_b32 v16, 6, v25"); E("v_add_u32 v16, %d, v16" % ACT); E("v_lshl_add_u32 v18, v26, 2, v16"); E("v_lshl_add_u32 v16, v26, 3, v16")
E("v_lshlrev_b32 v19, 3, v24"); E("v_lshlrev_b32 v20, 4, v0"); E("v_lshlrev_b32 v21, 2, v24")
E("v_lshrrev_b32 v17, 7, v0"); E("v_lshlrev_b32 v17, 8, v17")
E("v_bfe_u32 v25, v0, 4, 1"); E("v_lshl_add_u32 v17, v25, 7, v17")
E("v_bfe_u32 v25, v0, 2, 2"); E("v_lshl_add_u32 v17, v25, 5, v17")
E("v_bfe_u32 v25, v0, 5, 2"); E("v_lshl_add_u32 v17, v25, 3, v17")
E("v_and_b32 v25, 3, v0"); E("v_lshl_add_u32 v17, v25, 1, v17")
E("v_lshlrev_b32 v17, 2, v17"); E("v_add_u32 v17, %d, v17" % ACT)
E("v_cmp_gt_u32 s[100:101], 0xe0, v0") if False else (E("s_movk_i32 s8, 0xe0"), E("v_cmp_gt_u32 s[100:101], s8, v0"))
E("s_mov_b32 s96, 0x00ff00ff"); E("s_mov_b32 s97, 0xff00ff00")
E("s_waitcnt lgkmcnt(0)")
E("s_lshl_b32 s8, s5, 3"); E("s_add_u32 s8, s8, s4"); E("s_lshl_b32 s9, s8, 21"); E("s_lshl_b32 s10, s6, 18"); E("s_add_u32 s9, s9, s10")
def srd(d, lo, hi, n, add=None):
    if add: E("s_add_u32 s%d, s%d, %s" % (d, lo, add)); E("s_addc_u32 s%d, s%d, 0" % (d + 1, hi))
    else: E("s_mov_b32 s%d, s%d" % (d, lo)); E("s_mov_b32 s%d, s%d" % (d + 1, hi))
    E("s_mov_b32 s%d, 0x%x" % (d + 2, n)); E("s_mov_b32 s%d, 0x00020000" % (d + 3))
srd(40, 18, 19, 262144, "s9"); srd(44, 20, 21, 262144, "s9")
srd(48, 22, 23, 448 * 4096 * 2); srd(52, 24, 25, 4096 * 448 * 2)
E("s_cmp_ge_u32 s6, 4"); E("s_cselect_b32 s56, s30, s28"); E("s_cselect_b32 s57, s31, s29")
E("s_mov_b32 s58, 0x%x" % (448 * 1792 * 2)); E("s_mov_b32 s59, 0x00020000")
srd(60, 32, 33, 1792 * 448 * 2); srd(64, 38, 39, 0x400000); srd(68, 16, 17, 3584); srd(72, 34, 35, 3584); srd(76, 36, 37, 256)
E("s_lshl_b32 s80, s7, 16"); E("s_mul_i32 s81, s7, %d" % (NLDSV * 1024)); E("s_add_u32 s81, s81, %d" % (VBASE - 4096))
E("s_lshl_b32 s82, s5, 13"); E("s_lshl_b32 s9, s4, 10"); E("s_add_u32 s82, s82, s9")
E("s_lshl_b32 s9, s6, 7"); E("s_add_u32 s83, s82, s9")
E("s_lshl_b32 s85, s8, 15"); E("s_add_u32 s85, s85, 0x%x" % AP); E("s_lshl_b32 s9, s6, 12"); E("s_add_u32 s84, s85, s9")
E("s_lshl_b32 s87, s5, 14"); E("s_add_u32 s91, s87, 0x%x" % X2P); E("s_add_u32 s87, s87, 0x%x" % X1P)
E("s_lshl_b32 s9, s4, 11"); E("s_mul_i32 s10, s6, 224"); E("s_add_u32 s9, s9, s10"); E("s_add_u32 s86, s87, s9"); E("s_add_u32 s90, s91, s9")
E("s_lshl_b32 s89, s5, 14"); E("s_add_u32 s89, s89, 0x%x" % GU)
E("s_lshl_b32 s9, s6, 3"); E("s_add_u32 s9, s9, s4"); E("s_and_b32 s11, s9, 31")
E("s_lshr_b32 s9, s6, 2"); E("s_lshl_b32 s9, s9, 13"); E("s_mul_i32 s10, s11, 224"); E("s_add_u32 s88, s89, s9"); E("s_add_u32 s88, s88, s10")
E("s_mul_i32 s9, s4, 896"); E("s_add_u32 s89, s89, s9")
E("s_mul_i32 s92, s7, %d" % (112 * 8192)); E("s_lshl_b32 s9, s4, 10"); E("s_add_u32 s92, s92, s9"); E("s_lshl_b32 s9, s6, 7"); E("s_add_u32 s92, s92, s9")
E("s_mul_i32 s10, s6, 112")
E("s_mul_i32 s93, s4, %d" % (512 * 896)); E("s_mul_i32 s9, s7, %d" % (128 * 896)); E("s_add_u32 s93, s93, s9"); E("s_add_u32 s93, s93, s10")
E("s_mul_i32 s94, s7, %d" % (112 * 3584)); E("s_mul_i32 s9, s11, 112"); E("s_add_u32 s94, s94, s9")
E("s_mul_i32 s95, s4, %d" % (224 * 896)); E("s_mul_i32 s9, s7, %d" % (56 * 896)); E("s_add_u32 s95, s95, s9"); E("s_add_u32 s95, s95, s10")
E("s_mov_b32 s99, %s" % f32(0.0625 * 1.4426950408889634))
stamp()
E("s_mul_i32 s9, s5, 896")
VM('x', "buffer_load_dword v22, v21, s[68:71], s9 offen")
wloads('Q')
for r in range(4): E("v_mov_b32 v%d, -1" % (24 + r))
for L in range(2):
    E("s_add_u32 s9, s84, 0x%x" % (L * 0x100000))
    VM('clr', "buffer_store_dwordx4 v[24:27], v20, s[64:67], s9 offen sc1")
E("s_cmp_lg_u32 s7, 0"); E("s_cbranch_scc1 Lclr")
E("s_mov_b32 exec_hi, 0x00ffffff")
for L in range(2):
    for sr in ("s86", "s88", "s90"):
        E("s_add_u32 s9, %s, 0x%x" % (sr, L * 0x10000)); E("buffer_store_dword v24, v21, s[64:67], s9 offen sc1")
E("s_mov_b32 exec_hi, 0")
for L in range(2):
    E("s_add_u32 s9, s83, 0x%x" % (L * 0x8000)); E("buffer_store_dword v24, v21, s[64:67], s9 offen sc1")
E("s_mov_b32 exec_hi, -1")
Lb("Lclr")
VM('clr', "s_nop 0"); vm.pop()
KF = OPT['kfirst']
for n in range(KF): kload(n)
wait_tag('x')
E("v_and_b32 v23, 0xffff0000, v22"); E("v_lshlrev_b32 v22, 16, v22")
E("s_branch Lq_ln")
Lb("Lloop")
vm_save = list(vm)
xfront_poll("s91")
E("s_cmp_eq_u32 s3, 2"); E("s_cbranch_scc1 Lfinal")
Lb("Lq_ln")
vm[:] = vm_save
stamp()
layernorm()
wait_tag('clr')
dense('Q'); dense_red()
E("s_cmp_lg_u32 s7, 0"); E("s_cbranch_scc1 Lqst")
for s in range(8): E("ds_read2_b32 %s, v11 offset0:%d offset1:%d" % (vr(128 + 2 * s, 2), s * 64, s * 64 + 8)) if s < 4 else None
E("v_add_u32 v24, 1024, v11")
for s in range(4, 8): E("ds_read2_b32 %s, v24 offset0:%d offset1:%d" % (vr(128 + 2 * s, 2), (s - 4) * 64, (s - 4) * 64 + 8))
E("s_waitcnt lgkmcnt(0)")
for q in range(0, 16, 4): E("v_pk_add_f32 %s, %s, %s" % (vr(128 + q, 2), vr(128 + q, 2), vr(130 + q, 2)))
E("v_pk_add_f32 v[128:129], v[128:129], v[132:133]"); E("v_pk_add_f32 v[136:137], v[136:137], v[140:141]")
E("v_pk_add_f32 v[128:129], v[128:129], v[136:137]")
E("v_cvt_pk_bf16_f32 v24, v128, v129"); E("v_min_u32 v24, -2, v24")
E("s_mov_b32 exec_hi, 0")
E("buffer_store_dword v24, v21, s[64:67], s83 offen sc1")
E("s_cmp_lg_u32 s3, 0"); E("s_cbranch_scc1 Lqst2")
E("s_mov_b32 exec_lo, 1"); E("s_and_b32 s9, s2, 15"); E("s_lshl_b32 s9, s9, 4"); E("v_mov_b32 v25, 1"); E("v_mov_b32 v26, 0")
E("buffer_atomic_add v25, v26, s[76:79], s9 offen sc1")
Lb("Lqst2")
E("s_mov_b64 exec, -1")
Lb("Lqst")
stamp()
qloads = ["buffer_load_dwordx4 %s, v3, s[64:67], s82 offen offset:%d sc1" % (vr(WB + 4 * t), 64 * t) for t in range(8)]
E("s_cmp_lg_u32 s3, 0"); E("s_cbranch_scc1 Lqpoll")
E("v_and_b32 v30, 15, v0"); E("v_lshlrev_b32 v30, 4, v30")
for n in range(KF, 64):
    throttle(); kload(n)
    if n == OPT['p1'] - 1: VM('cnt', "buffer_load_dword v29, v30, s[76:79], 0 offen sc1")
wait_tag('cnt')
E("s_mov_b32 s98, 0")
Lb("Lcnt")
E("v_cmp_ne_u32 vcc, 16, v29"); E("s_cbranch_vccz Lcntd")
E("buffer_load_dword v29, v30, s[76:79], 0 offen sc1"); E("s_waitcnt vmcnt(0)")
E("s_add_u32 s98, s98, 1"); E("s_cmp_lt_u32 s98, 0x8000"); E("s_cbranch_scc1 Lcnt")
Lb("Lcntd")
for s in qloads: VM('q', s)
for u in range(63): vload(u)
wait_tag('q')
vload(63)
check(range(WB, WB + 32))
E("s_cbranch_vccz Lattn")
Lb("Lqpoll")
vm_save = list(vm)
poll(qloads, range(WB, WB + 32))
vm[:] = vm_save
Lb("Lattn")
stamp()
def round_tile(T, first):
    s = 32 + 4 * T
    return ["v_cvt_pk_bf16_f32 v24, v%d, v%d" % (s, s + 1), "v_cvt_pk_bf16_f32 v25, v%d, v%d" % (s + 2, s + 3),
            "v_lshlrev_b32 v%d, 16, v24" % s, "v_and_b32 v%d, 0xffff0000, v24" % (s + 1),
            "v_lshlrev_b32 v%d, 16, v25" % (s + 2), "v_and_b32 v%d, 0xffff0000, v25" % (s + 3),
            ("v_max_f32 v136, v%d, v%d" % (s, s + 1)) if first else ("v_max3_f32 v136, v136, v%d, v%d" % (s, s + 1)),
            "v_max3_f32 v136, v136, v%d, v%d" % (s + 2, s + 3)]
E("v_mov_b32 v26, s81"); E("v_and_b32 v27, 63, v0"); E("v_lshl_add_u32 v139, v27, 4, v26")
for T in range(8):
    extra = round_tile(T - 2, T == 2) if T >= 2 else []
    for t in range(8):
        E("v_mfma_f32_16x16x32_bf16 %s, %s, %s, %s" % (vr(32 + 4 * T), ar(32 * T + 4 * t), vr(WB + 4 * t), "0" if t == 0 else vr(32 + 4 * T)))
        if extra: E(extra[t])
wait_tag('V7')
lg = []
def ldsread(u):
    E("ds_read_b128 %s, v139 offset:%d" % (vr(96 + 4 * (u % 8)), 4096 + u * 1024)); lg.append(u)
for u in range(8): ldsread(u)
for s in round_tile(6, False): E(s)
for s in round_tile(7, False): E(s)
E("v_mov_b32 v24, v136"); E("s_nop 1"); E("v_permlane16_swap_b32 v136, v24"); E("s_nop 1"); E("v_max_f32 v136, v136, v24")
E("v_mov_b32 v24, v136"); E("s_nop 1"); E("v_permlane32_swap_b32 v136, v24"); E("s_nop 1"); E("v_max_f32 v136, v136, v24")
E("v_mul_f32 v138, s99, v136"); E("v_mov_b32 v137, 0")
def pcalc(k):
    s = 32 + k; b = 24 + 4 * (k & 1)
    return ["v_fma_f32 v140, v%d, s99, -v138" % s, "v_exp_f32 v140, v140", "s_nop 0", "v_cvt_pk_bf16_f32 v141, v140, v140", "v_add_f32 v137, v137, v140"] + \
           ["v_and_b32 v%d, v141, v%d" % (b + r, 12 + r) for r in range(4)]
for s in pcalc(0): E(s)
E("s_nop 0")
for k in range(32):
    nxt = pcalc(k + 1) if k < 31 else []
    b = 24 + 4 * (k & 1)
    for hf in range(2):
        u = 2 * k + hf
        if u < NLDSV:
            n = len(lg) - 1 - lg.index(u); E("s_waitcnt lgkmcnt(%d)" % n)
            A = vr(96 + 4 * (u % 8))
        else:
            wait_tag('V%d' % u); A = vr(144 + 4 * (u - NLDSV))
        acc = vr(128 + 4 * hf)
        E("v_mfma_f32_16x16x32_bf16 %s, %s, %s, %s" % (acc, A, vr(b), "0" if k == 0 else acc))
        if u + 8 < NLDSV:
            if (u + 8) % 4 == 0: wait_tag('V%d' % (u + 8 + 3))
            ldsread(u + 8)
        for s in (nxt[:5] if hf == 0 else nxt[5:]): E(s)
        if u == NLDSV - 1: wloads('W')
    if k < 31: E("s_nop 0")
E("v_mov_b32 v24, v137"); E("s_nop 1"); E("v_permlane16_swap_b32 v137, v24"); E("s_nop 1"); E("v_add_f32 v137, v137, v24")
E("v_mov_b32 v24, v137"); E("s_nop 1"); E("v_permlane32_swap_b32 v137, v24"); E("s_nop 1"); E("v_add_f32 v137, v137, v24")
E("v_bfe_u32 v24, v0, 3, 1"); E("v_lshlrev_b32 v25, 10, v24"); E("v_bfe_u32 v26, v0, 4, 2"); E("v_lshl_add_u32 v25, v26, 5, v25")
E("v_and_b32 v26, 7, v0"); E("v_lshl_add_u32 v25, v26, 2, v25"); E("s_lshl_b32 s8, s7, 11"); E("v_add_u32 v25, s8, v25")
E("s_lshl_b32 s8, s7, 4"); E("v_lshl_add_u32 v24, v24, 3, s8")
for hf in range(2):
    for r in range(4): E("ds_write_b32 v25, v%d offset:%d" % (128 + 4 * hf + r, OM + (r * 2 + hf) * 128))
E("s_mov_b64 exec, 0x101"); E("ds_write_b64 v24, v[136:137] offset:%d" % ML); E("s_mov_b64 exec, -1")
E("v_lshlrev_b32 v24, 3, v0"); E("v_lshrrev_b32 v25, 7, v0"); E("v_lshlrev_b32 v25, 3, v25")
E("s_waitcnt lgkmcnt(0)"); E("s_barrier")
for w in range(4): E("ds_read_b64 %s, v25 offset:%d" % (vr(40 + 2 * w, 2), ML + 16 * w))
for w in range(4): E("ds_read_b64 %s, v24 offset:%d" % (vr(32 + 2 * w, 2), OM + 2048 * w))
E("s_waitcnt lgkmcnt(4)")
E("v_max_f32 v26, v40, v42"); E("v_max3_f32 v26, v26, v44, v46")
for w in range(4): E("v_sub_f32 v%d, v%d, v26" % (40 + 2 * w, 40 + 2 * w)); E("v_mul_f32 v%d, s99, v%d" % (40 + 2 * w, 40 + 2 * w))
for w in range(4): E("v_exp_f32 v%d, v%d" % (40 + 2 * w, 40 + 2 * w))
E("s_waitcnt lgkmcnt(0)")
E("v_mul_f32 v27, v40, v41"); E("v_mul_f32 v24, v40, v32"); E("v_mul_f32 v25, v40, v33")
for w in range(1, 4):
    E("v_fmac_f32 v27, v%d, v%d" % (40 + 2 * w, 41 + 2 * w)); E("v_fmac_f32 v24, v%d, v%d" % (40 + 2 * w, 32 + 2 * w)); E("v_fmac_f32 v25, v%d, v%d" % (40 + 2 * w, 33 + 2 * w))
for r in range(4): E("v_min_u32 v%d, -2, v%d" % (24 + r, 24 + r))
E("buffer_store_dwordx4 v[24:27], v20, s[64:67], s84 offen sc1")
stamp()
loads = []
for s in range(8):
    if s: loads.append("s_add_u32 s8, s85, %d" % (s * 4096))
    loads.append("buffer_load_dwordx4 %s, v20, s[64:67], %s offen sc1" % (vr(32 + 4 * s), "s8" if s else "s85"))
poll(loads, range(32, 64))
stamp()
E("v_max3_f32 v26, v34, v38, v42"); E("v_max3_f32 v26, v26, v46, v50"); E("v_max3_f32 v26, v26, v54, v58"); E("v_max_f32 v26, v26, v62")
for s in range(8): E("v_sub_f32 v%d, v%d, v26" % (34 + 4 * s, 34 + 4 * s)); E("v_mul_f32 v%d, s99, v%d" % (34 + 4 * s, 34 + 4 * s))
for s in range(8): E("v_exp_f32 v%d, v%d" % (34 + 4 * s, 34 + 4 * s))
E("v_mul_f32 v27, v34, v35"); E("v_mul_f32 v24, v34, v32"); E("v_mul_f32 v25, v34, v33")
for s in range(1, 8):
    a = 32 + 4 * s
    E("v_fmac_f32 v27, v%d, v%d" % (a + 2, a + 3)); E("v_fmac_f32 v24, v%d, v%d" % (a + 2, a)); E("v_fmac_f32 v25, v%d, v%d" % (a + 2, a + 1))
E("v_rcp_f32 v27, v27"); E("s_nop 0"); E("v_mul_f32 v24, v24, v27"); E("v_mul_f32 v25, v25, v27")
E("v_cvt_pk_bf16_f32 v24, v24, v24"); E("v_cvt_pk_bf16_f32 v25, v25, v25")
E("ds_write_b64 v17, v[24:25]"); E("s_waitcnt lgkmcnt(0)"); E("s_barrier")
dense('W'); wloads('G'); wloads('D'); dense_red()
store56("s86", "Lw1", False)
stamp()
xfront_poll("s87")
stamp()
layernorm()
dense('G')
E("s_cmp_lg_u32 s3, 0"); E("s_cbranch_scc1 Lnoq"); wloads('Q'); Lb("Lnoq")
dense_red()
store56("s88", "Lg1", True)
stamp()
poll(["buffer_load_dword v128, v21, s[64:67], s89 offen sc1", "s_add_u32 s8, s89, 8192", "buffer_load_dword v129, v21, s[64:67], s8 offen sc1"], [128, 129])
stamp()
k2 = -2 * 0.7978845608028654 * 1.4426950408889634
E("v_mul_f32 v24, v128, v128"); E("v_mov_b32 v25, %s" % f32(k2)); E("v_mul_f32 v26, %s, v24" % f32(k2 * 0.044715)); E("v_add_f32 v25, v25, v26")
E("v_mul_f32 v25, v25, v128"); E("v_exp_f32 v25, v25"); E("s_nop 0"); E("v_add_f32 v25, 1.0, v25"); E("v_rcp_f32 v25, v25"); E("s_nop 0")
E("v_mul_f32 v25, v25, v128"); bf16r("v25", "v25"); E("v_mul_f32 v25, v25, v129"); E("v_cvt_pk_bf16_f32 v25, v25, v25")
E("ds_write_b32 v18, v25"); E("s_waitcnt lgkmcnt(0)"); E("s_barrier")
dense('D'); dense_red()
store56("s90", "Ld1", False)
stamp()
E("s_add_u32 s3, s3, 1")
E("s_cmp_eq_u32 s3, 2"); E("s_cbranch_scc0 Lnext")
E("s_and_b32 s8, s2, 0xe7"); E("s_cmp_lg_u32 s8, 0"); E("s_cbranch_scc1 Lend")
E("s_branch Lloop")
Lb("Lnext")
for sr, inc in (("s82", 0x8000), ("s83", 0x8000), ("s84", 0x100000), ("s85", 0x100000), ("s86", 0x10000), ("s87", 0x10000), ("s88", 0x10000), ("s89", 0x10000), ("s90", 0x10000)):
    E("s_add_u32 %s, %s, 0x%x" % (sr, sr, inc))
E("s_branch Lloop_l1")
Lb("Lfinal")
E("s_mul_i32 s9, s5, 896")
E("s_and_b64 exec, exec, s[100:101]")
E("buffer_store_dword v24, v21, s[72:75], s9 offen")
stamp()
Lb("Lend")
E("s_endpgm")
out += ['.section .rodata,"a"', ".p2align 6", ".amdhsa_kernel %s_kernel" % NAME,
        "  .amdhsa_next_free_vgpr 512", "  .amdhsa_next_free_sgpr 102", "  .amdhsa_accum_offset 256",
        "  .amdhsa_group_segment_fixed_size 0", "  .amdhsa_kernarg_size 96", "  .amdhsa_user_sgpr_count 2",
        "  .amdhsa_user_sgpr_kernarg_segment_ptr 1", "  .amdhsa_system_sgpr_workgroup_id_x 1", ".end_amdhsa_kernel"]
txt = "\n".join(out) + "\n"
txt = txt.replace("Lloop:\n", "Lloop:\n    s_add_u32 s91, s91, 0x10000\nLloop_l1:\n")
open(sys.argv[1], "w").write(txt)
```

```python
import sys, struct
NAME = "interleave_layers__gqa_block_cached__geglu_ffn__decode"
OPT = dict(nt=1, stamps=0, p1=28, pq=46, ahead=24)
for a in sys.argv[2:]:
    k, v = a.split('='); OPT[k] = int(v)
out = []
def E(s): out.append("    " + s)
def Lb(s): out.append(s + ":")
def f32(x): return "0x%08x" % struct.unpack('<I', struct.pack('<f', x))[0]
NT = " nt" if OPT['nt'] else ""
NLDSV = 36; VBASE = 16384; LDS_TOTAL = 163840
ACT0 = 0; OM = 0; ACT1 = 8192; QL = 8192; XRES = 12544; ML = 16128; PITCH = 1088
OB = 0; X1P = 0x40000; X2P = 0x50000; AB = 0x58000; MLB = 0x5C000; QB1 = 0xE0000; QB0 = 0x100000; LSTEP = 0x80000; STP = 0x300000
RW = 80
vm = []
def VM(tag, s): vm.append(tag); E(s)
def wait_tag(tag):
    idx = max(i for i, t in enumerate(vm) if t == tag)
    E("s_waitcnt vmcnt(%d)" % min(len(vm) - 1 - idx, 63))
uid = [0]
def lab(p): uid[0] += 1; return "L%s%d" % (p, uid[0])
stamp_n = [0]
def stamp(wave=0):
    if not OPT['stamps']: return
    n = stamp_n[0]; stamp_n[0] += 1; l = lab("st")
    E("s_cmp_lg_u32 s7, %d" % wave); E("s_cbranch_scc1 " + l)
    E("s_memrealtime s[8:9]"); E("s_waitcnt lgkmcnt(0)")
    E("v_mov_b32 v6, s8"); E("s_lshl_b32 s9, s2, 8"); E("s_lshl_b32 s8, s3, 7"); E("s_add_u32 s9, s9, s8")
    E("s_add_u32 s9, s9, 0x%x" % (STP + n * 4)); E("v_mov_b32 v7, 0")
    E("s_mov_b64 exec, 1"); E("buffer_store_dword v6, v7, s[64:67], s9 offen"); E("s_mov_b64 exec, -1")
    Lb(l)
def bf16r(dst, src): E("v_cvt_pk_bf16_f32 %s, %s, %s" % (dst, src, src)); E("v_lshlrev_b32 %s, 16, %s" % (dst, dst))
def vr(a, n=4): return "v[%d:%d]" % (a, a + n - 1)
def ar(a, n=4): return "a[%d:%d]" % (a, a + n - 1)
def poll(loads, chk):
    l = lab("poll")
    E("s_mov_b32 s98, 0"); Lb(l)
    for s in loads: E(s)
    E("s_waitcnt vmcnt(0)"); chk()
    E("s_cbranch_vccz %sd" % l)
    E("s_add_u32 s98, s98, 1"); E("s_cmp_lt_u32 s98, 0x8000"); E("s_cbranch_scc1 " + l)
    Lb(l + "d")
def check(regs, t="v15"):
    r = list(regs)
    E("v_max3_u32 %s, v%d, v%d, v%d" % (t, r[0], r[1], r[2])); r = r[3:]
    while len(r) >= 2: E("v_max3_u32 %s, %s, v%d, v%d" % (t, t, r[0], r[1])); r = r[2:]
    if r: E("v_max_u32 %s, %s, v%d" % (t, t, r[0]))
    E("v_cmp_eq_u32 vcc, -1, %s" % t)
kpos = [0]
def kload(n):
    T, t = n // 8, n % 8
    E("s_add_u32 s10, s80, %d" % (T * 8192))
    VM('K', "buffer_load_dwordx4 %s, v4, s[40:43], s10 offen offset:%d%s" % (ar(4 * n), 64 * t, NT))
def kgroup(cnt, cond=True):
    l = lab("kg")
    if cond: E("s_cmp_lg_u32 s3, 0"); E("s_cbranch_scc1 " + l)
    for _ in range(cnt): kload(kpos[0]); kpos[0] += 1
    if cond: Lb(l)
def vload(u):
    T, r, hf = u // 8, (u // 2) % 4, u % 2
    E("s_add_u32 s10, s80, %d" % (T * 8192))
    io = r * 512 + hf * 256
    if u < NLDSV:
        E("s_add_u32 m0, s81, %d" % (u * 1024 + 4096 - io)); E("s_nop 0")
        VM('V%d' % u, "buffer_load_dwordx4 v5, s[44:47], s10 offen offset:%d%s lds" % (io, NT))
    else:
        VM('V%d' % u, "buffer_load_dwordx4 %s, v5, s[44:47], s10 offen offset:%d%s" % (vr(144 + 4 * (u - NLDSV)), io, NT))
vpos = [0]
def vgroup(cnt):
    cnt = min(cnt, 64 - vpos[0])
    if cnt <= 0: return
    l = lab("vg"); E("s_cmp_lg_u32 s3, 0"); E("s_cbranch_scc1 " + l)
    for _ in range(cnt): vload(vpos[0]); vpos[0] += 1
    Lb(l)
def lane(dst): E("v_and_b32 %s, 63, v0" % dst)
def xaddr():
    lane("v15"); E("v_lshlrev_b32 v1, 4, v15"); E("v_min_u32 v2, 47, v15"); E("v_lshlrev_b32 v2, 4, v2"); E("v_add_u32 v2, 1024, v2")
    E("s_mul_i32 s8, s7, 896"); E("s_add_u32 s8, s8, %d" % XRES)
    E("v_lshrrev_b32 v3, 1, v1"); E("v_add_u32 v3, s8, v3"); E("v_lshrrev_b32 v14, 1, v2"); E("v_add_u32 v14, s8, v14")
def xfront(sbase, P):
    xaddr()
    E("ds_read_b64 v[8:9], v3"); E("ds_read_b64 v[10:11], v14")
    E("s_lshl_b32 s9, s7, 11"); E("s_add_u32 s9, s9, %s" % sbase)
    loads = []
    for p in range(P):
        if p: loads.append("s_add_u32 s8, s9, %d" % (p * 8192))
        so = "s8" if p else "s9"
        loads.append("buffer_load_dwordx4 %s, v1, s[64:67], %s offen sc1" % (vr(16 + 8 * p), so))
        loads.append("buffer_load_dwordx4 %s, v2, s[64:67], %s offen sc1" % (vr(20 + 8 * p), so))
    def chk():
        st = 1
        while st < P:
            for p in range(0, P, 2 * st):
                for q in range(0, 8, 2): E("v_pk_add_f32 %s, %s, %s" % (vr(16 + 8 * p + q, 2), vr(16 + 8 * p + q, 2), vr(16 + 8 * (p + st) + q, 2)))
            st *= 2
        E("v_pk_add_f32 v[24:25], v[16:17], v[18:19]"); E("v_pk_add_f32 v[26:27], v[20:21], v[22:23]")
        E("v_pk_add_f32 v[24:25], v[24:25], v[26:27]"); E("v_add_f32 v24, v24, v25"); E("v_cmp_u_f32 vcc, v24, v24")
    poll(loads, chk)
    E("s_waitcnt lgkmcnt(0)")
    for q in range(4):
        E("v_cvt_pk_bf16_f32 v24, v%d, v%d" % (16 + 2 * q, 17 + 2 * q))
        E("v_lshlrev_b32 v25, 16, v24"); E("v_and_b32 v26, 0xffff0000, v24")
        E("v_lshlrev_b32 v27, 16, v%d" % (8 + q)); E("v_and_b32 v28, 0xffff0000, v%d" % (8 + q))
        E("v_add_f32 v25, v25, v27"); E("v_add_f32 v26, v26, v28")
        E("v_cvt_pk_bf16_f32 v%d, v25, v26" % (8 + q))
def xunpack():
    for q in range(4): E("v_lshlrev_b32 v%d, 16, v%d" % (16 + 2 * q, 8 + q)); E("v_and_b32 v%d, 0xffff0000, v%d" % (17 + 2 * q, 8 + q))
    E("ds_write_b64 v3, v[8:9]"); E("ds_write_b64 v14, v[10:11]")
def layernorm(act):
    E("v_add_f32 v24, v16, v17"); E("v_add_f32 v26, v18, v19"); E("v_mul_f32 v25, v16, v16"); E("v_add_f32 v24, v24, v26")
    for q in (17, 18, 19): E("v_fmac_f32 v25, v%d, v%d" % (q, q))
    E("s_mov_b32 exec_hi, 0xffff")
    for q in (20, 21, 22, 23): E("v_add_f32 v24, v24, v%d" % q); E("v_fmac_f32 v25, v%d, v%d" % (q, q))
    E("s_mov_b32 exec_hi, -1"); E("s_nop 1")
    for c in ["row_shr:1 row_mask:0xf bank_mask:0xf bound_ctrl:0", "row_shr:2 row_mask:0xf bank_mask:0xf bound_ctrl:0", "row_shr:4 row_mask:0xf bank_mask:0xf bound_ctrl:0",
              "row_shr:8 row_mask:0xf bank_mask:0xf bound_ctrl:0", "row_bcast:15 row_mask:0xa bank_mask:0xf", "row_bcast:31 row_mask:0xc bank_mask:0xf"]:
        E("v_add_f32_dpp v24, v24, v24 " + c); E("v_add_f32_dpp v25, v25, v25 " + c); E("s_nop 0")
    E("v_readlane_b32 s8, v24, 63"); E("v_readlane_b32 s9, v25, 63")
    E("s_mul_i32 s10, s7, %d" % PITCH); E("s_add_u32 s10, s10, %d" % act)
    E("v_mov_b32 v26, %s" % f32(1 / 448)); E("v_mul_f32 v24, s8, v26"); E("v_mul_f32 v25, s9, v26")
    E("v_fma_f32 v25, -v24, v24, v25"); E("v_max_f32 v25, 0, v25")
    E("v_cvt_pk_bf16_f32 v26, v24, v25"); E("v_lshlrev_b32 v24, 16, v26"); E("v_and_b32 v25, 0xffff0000, v26")
    E("v_add_f32 v25, %s, v25" % f32(1e-5)); bf16r("v25", "v25")
    E("v_sqrt_f32 v25, v25")
    for q in range(8): E("v_sub_f32 v%d, v%d, v24" % (16 + q, 16 + q))
    bf16r("v25", "v25"); E("v_rcp_f32 v25, v25")
    for q in range(4):
        E("v_cvt_pk_bf16_f32 v26, v%d, v%d" % (16 + 2 * q, 17 + 2 * q)); E("v_lshlrev_b32 v%d, 16, v26" % (16 + 2 * q)); E("v_and_b32 v%d, 0xffff0000, v26" % (17 + 2 * q))
    for q in range(8): E("v_mul_f32 v%d, v%d, v25" % (16 + q, 16 + q))
    for q in range(4): E("v_cvt_pk_bf16_f32 v%d, v%d, v%d" % (24 + q, 16 + 2 * q, 17 + 2 * q))
    E("v_lshrrev_b32 v1, 1, v1"); E("v_add_u32 v1, s10, v1"); E("v_lshrrev_b32 v2, 1, v2"); E("v_add_u32 v2, s10, v2")
    E("ds_write_b64 v1, v[24:25]"); E("ds_write_b64 v2, v[26:27]")
def bar(): E("s_waitcnt lgkmcnt(0)"); E("s_barrier")
def dense(T, act):
    E("v_bfe_u32 v1, v0, 2, 2"); E("v_mul_u32_u24 v1, %d, v1" % PITCH); E("v_bfe_u32 v2, v0, 4, 2"); E("v_lshl_add_u32 v1, v2, 4, v1")
    for t in range(8): E("ds_read_b128 %s, v1 offset:%d" % (vr(32 + 4 * t), act + 64 * t))
    issued = 8
    for t in range(T):
        E("s_waitcnt lgkmcnt(%d)" % (issued - 1 - t))
        acc = vr(24 + 4 * (t & 1))
        E("v_mfma_f32_16x16x32_bf16 %s, %s, %s, %s" % (acc, vr(32 + 4 * (t % 8)), vr(RW + 4 * t), "0" if t < 2 else acc))
        if issued < T: E("ds_read_b128 %s, v1 offset:%d" % (vr(32 + 4 * (issued % 8)), act + 64 * issued)); issued += 1
    E("v_bfe_u32 v1, v0, 4, 2"); E("v_and_b32 v2, 15, v0"); E("s_nop 6"); E("v_add_f32 v24, v24, v28")
def worker(wave, limit, body):
    l = lab("wk")
    E("s_cmp_lg_u32 s7, %d" % wave); E("s_cbranch_scc1 " + l)
    if limit: E("s_cmp_ge_u32 s13, %d" % limit); E("s_cbranch_scc1 " + l)
    body(); Lb(l)

hdr = open("cdna_kernels/%s.s.ref" % NAME).read().split("\n")
for l in hdr:
    if l.startswith("; @launch"): out.append("; @launch grid=(256,1,1) block=(256,1,1) lds=%d" % LDS_TOTAL)
    elif l.startswith(";"): out.append(l)
    else: break
out += ['.amdgcn_target "amdgcn-amd-amdhsa--gfx950"', ".text", ".globl %s_kernel" % NAME, ".p2align 8",
        ".type %s_kernel,@function" % NAME, "%s_kernel:" % NAME]
E("s_cmp_ge_u32 s2, 256"); E("s_cbranch_scc1 Lend")
E("s_load_dwordx16 s[16:31], s[0:1], 0"); E("s_load_dwordx8 s[32:39], s[0:1], 64")
E("v_lshrrev_b32 v1, 6, v0"); E("s_and_b32 s4, s2, 7"); E("v_readfirstlane_b32 s7, v1")
E("s_lshr_b32 s13, s2, 3"); E("s_and_b32 s5, s13, 3"); E("s_lshr_b32 s6, s2, 5"); E("s_mov_b32 s3, 0")
E("v_and_b32 v1, 15, v0"); E("v_bfe_u32 v2, v0, 4, 2")
E("v_lshlrev_b32 v4, 9, v1"); E("v_lshl_add_u32 v4, v2, 4, v4")
E("v_lshlrev_b32 v5, 11, v2"); E("v_lshl_add_u32 v5, v1, 4, v5")
E("s_lshl_b32 s8, s5, 3"); E("s_add_u32 s8, s8, s4"); E("s_lshl_b32 s9, s8, 21"); E("s_lshl_b32 s10, s6, 18"); E("s_add_u32 s9, s9, s10")
E("s_lshl_b32 s80, s7, 16"); E("s_mul_i32 s81, s7, %d" % (NLDSV * 1024)); E("s_add_u32 s81, s81, %d" % (VBASE - 4096))
E("s_min_u32 s14, s13, 27"); E("s_min_u32 s15, s13, 13")
E("s_lshl_b32 s84, s8, 13"); E("s_lshl_b32 s10, s6, 10"); E("s_add_u32 s84, s84, s10")
E("s_lshl_b32 s85, s8, 7"); E("s_lshl_b32 s10, s6, 3"); E("s_add_u32 s85, s85, s10"); E("s_add_u32 s85, s85, 0x%x" % MLB)
E("s_mov_b32 s86, 0")
E("s_mov_b32 s82, 0x%x" % QB0)
E("s_lshl_b32 s83, s4, 5"); E("s_add_u32 s83, s83, s13"); E("s_lshl_b32 s83, s83, 5")
E("s_mul_i32 s87, s4, 28"); E("s_add_u32 s87, s87, s14"); E("s_lshl_b32 s87, s87, 4")
E("s_lshr_b32 s88, s4, 1")
E("s_and_b32 s89, s4, 1"); E("s_mul_i32 s89, s89, 14"); E("s_add_u32 s89, s89, s15")
E("s_mov_b32 s99, %s" % f32(0.0625 * 1.4426950408889634))
E("s_waitcnt lgkmcnt(0)")
def srd(d, lo, hi, n, add=None):
    if add: E("s_add_u32 s%d, s%d, %s" % (d, lo, add)); E("s_addc_u32 s%d, s%d, 0" % (d + 1, hi))
    else: E("s_mov_b32 s%d, s%d" % (d, lo)); E("s_mov_b32 s%d, s%d" % (d + 1, hi))
    E("s_mov_b32 s%d, 0x%x" % (d + 2, n)); E("s_mov_b32 s%d, 0x00020000" % (d + 3))
srd(40, 18, 19, 262144, "s9"); srd(44, 20, 21, 262144, "s9")
srd(64, 38, 39, 0x400000); srd(68, 16, 17, 3584); srd(72, 34, 35, 3584); srd(76, 36, 37, 256)
kgroup(2, False)
for r in range(4): E("v_mov_b32 v%d, -1" % (24 + r))
E("v_lshlrev_b32 v1, 4, v0"); E("s_lshl_b32 s8, s2, 12")
VM('clr', "buffer_store_dwordx4 v[24:27], v1, s[64:67], s8 offen sc1")
def qaddr(): E("v_lshlrev_b32 v1, 13, v1"); E("v_lshl_add_u32 v1, v2, 1, v1"); E("s_add_u32 s8, s82, s83"); E("s_mov_b32 exec_lo, 0x55555555"); E("s_mov_b32 exec_hi, 0x55555555")
def clrq():
    E("v_bfe_u32 v1, v0, 4, 2"); E("v_and_b32 v2, 15, v0"); qaddr()
    E("buffer_store_dword v24, v1, s[64:67], s8 offen sc1"); E("s_mov_b64 exec, -1")
worker(0, 0, clrq)
xaddr()
E("v_lshrrev_b32 v6, 1, v1"); E("v_lshrrev_b32 v7, 1, v2"); E("s_mul_i32 s8, s7, 896")
VM('x', "buffer_load_dwordx2 v[8:9], v6, s[68:71], s8 offen"); VM('x', "buffer_load_dwordx2 v[10:11], v7, s[68:71], s8 offen")
srd(48, 22, 23, 448 * 4096 * 2); E("s_mov_b32 s92, s83"); E("s_add_u32 s94, s92, 16"); E("s_movk_i32 s93, 8192")
E("s_mov_b32 s52, s22"); E("s_mov_b32 s53, s23")
E("s_cmp_eq_u32 s7, 0"); E("s_cbranch_scc1 Lwsel")
E("s_mov_b32 s48, s28"); E("s_mov_b32 s49, s29"); E("s_mov_b32 s52, s30"); E("s_mov_b32 s53, s31"); E("s_mov_b32 s50, 0x%x" % (448 * 1792 * 2))
E("s_mov_b32 s92, s87"); E("s_mov_b32 s94, s87"); E("s_movk_i32 s93, 3584")
E("s_cmp_eq_u32 s7, 1"); E("s_cbranch_scc1 Lwsel")
E("s_mov_b32 s48, s24"); E("s_mov_b32 s49, s25"); E("s_mov_b32 s52, s24"); E("s_mov_b32 s53, s25"); E("s_mov_b32 s50, 0x%x" % (4096 * 448 * 2))
E("s_mul_i32 s92, s4, %d" % (512 * 896)); E("s_lshl_b32 s8, s14, 5"); E("s_add_u32 s92, s92, s8"); E("s_add_u32 s94, s92, 16"); E("s_movk_i32 s93, 896")
E("s_cmp_eq_u32 s7, 2"); E("s_cbranch_scc1 Lwsel")
E("s_mov_b32 s48, s32"); E("s_mov_b32 s49, s33"); E("s_mov_b32 s52, s32"); E("s_mov_b32 s53, s33"); E("s_mov_b32 s50, 0x%x" % (1792 * 448 * 2))
E("s_mul_i32 s92, s88, %d" % (448 * 896)); E("s_lshl_b32 s8, s89, 5"); E("s_add_u32 s92, s92, s8"); E("s_add_u32 s94, s92, 16")
Lb("Lwsel")
E("s_mov_b32 s54, s50"); E("s_mov_b32 s55, 0x00020000")
lane("v15"); E("v_mul_lo_u32 v6, v15, s93"); E("s_lshl_b32 s93, s93, 6")
for f in range(8):
    VM('w', "buffer_load_dwordx4 %s, v6, s[48:51], s92 offen" % vr(RW + 8 * f))
    VM('w', "buffer_load_dwordx4 %s, v6, s[52:55], s94 offen" % vr(RW + 8 * f + 4))
    if f < 7: E("s_add_u32 s92, s92, s93"); E("s_add_u32 s94, s94, s93")
kgroup(4, False)
stamp()
wait_tag('x')
E("s_branch Lq_ln")
Lb("Lloop")
E("s_add_u32 s8, s86, 0x%x" % X2P); E("s_mov_b32 s91, s8")
xfront("s91", 4)
E("s_cmp_eq_u32 s3, 2"); E("s_cbranch_scc1 Lfinal")
E("s_add_u32 s86, s86, 0x%x" % LSTEP); E("s_mov_b32 s82, 0x%x" % QB1)
Lb("Lq_ln")
stamp()
xunpack()
layernorm(ACT0)
E("s_cmp_lg_u32 s3, 0"); E("s_cbranch_scc1 Lnotr")
kgroup(4, False)
lane("v15"); E("v_lshlrev_b32 v6, 5, v15"); E("v_add_u32 v6, s81, v6")
wait_tag('w')
for f in range(8):
    E("ds_write_b128 v6, %s offset:%d" % (vr(RW + 8 * f), 4096 + f * 2048)); E("ds_write_b128 v6, %s offset:%d" % (vr(RW + 8 * f + 4), 4096 + f * 2048 + 16))
kgroup(4, False)
E("v_bfe_u32 v6, v0, 4, 2"); E("v_lshlrev_b32 v6, 8, v6"); E("v_bfe_u32 v7, v0, 2, 2"); E("v_lshl_add_u32 v6, v7, 5, v6")
E("v_and_b32 v7, 3, v0"); E("v_lshl_add_u32 v6, v7, 3, v6"); E("v_add_u32 v6, s81, v6")
E("s_waitcnt lgkmcnt(0)")
for f in range(16):
    E("ds_read_b64_tr_b16 %s, v6 offset:%d" % (vr(RW + 4 * f, 2), 4096 + f * 1024)); E("ds_read_b64_tr_b16 %s, v6 offset:%d" % (vr(RW + 4 * f + 2, 2), 4096 + f * 1024 + 128))
    if f % 4 == 3 and f < 15: E("s_waitcnt lgkmcnt(4)")
Lb("Lnotr")
bar()
def qbody():
    dense(14, ACT0)
    E("s_nop 1"); E("v_mov_b32_dpp v25, v24 quad_perm:[1,0,3,2] row_mask:0xf bank_mask:0xf")
    E("v_cvt_pk_bf16_f32 v24, v24, v25"); E("v_min_u32 v24, -2, v24"); qaddr()
    E("buffer_store_dword v24, v1, s[64:67], s8 offen sc1")
    l = lab("sig"); E("s_cmp_lg_u32 s3, 0"); E("s_cbranch_scc1 " + l)
    E("s_mov_b64 exec, 1"); E("s_and_b32 s9, s2, 15"); E("s_lshl_b32 s9, s9, 4"); E("v_mov_b32 v25, 1"); E("v_mov_b32 v26, 0")
    E("buffer_atomic_add v25, v26, s[76:79], s9 offen sc1")
    Lb(l); E("s_mov_b64 exec, -1")
worker(0, 0, qbody)
stamp()
lane("v15"); E("v_lshlrev_b32 v1, 4, v15"); E("v_add_u32 v3, s81, v1")
E("v_bfe_u32 v2, v0, 3, 1"); E("v_lshlrev_b32 v2, 9, v2"); E("v_bfe_u32 v6, v0, 4, 2"); E("v_lshl_add_u32 v2, v6, 4, v2")
E("v_and_b32 v6, 1, v0"); E("v_lshlrev_b32 v6, 4, v6"); E("v_mov_b32 v7, 0xffff"); E("v_lshlrev_b32 v7, v6, v7"); E("v_bfe_u32 v6, v0, 1, 2")
for r in range(4): E("v_cmp_eq_u32 vcc, %d, v6" % r); E("s_nop 1"); E("v_cndmask_b32 v%d, 0, v7, vcc" % (8 + r))
E("s_lshl_b32 s8, s5, 13"); E("s_lshl_b32 s9, s4, 10"); E("s_add_u32 s90, s8, s9"); E("s_add_u32 s90, s90, s82")
qload = "buffer_load_dwordx4 v[16:19], v1, s[64:67], s90 offen sc1"
E("s_cmp_lg_u32 s3, 0"); E("s_cbranch_scc1 Lqpoll")
E("v_and_b32 v6, 15, v0"); E("v_lshlrev_b32 v6, 4, v6")
while kpos[0] < 64:
    kload(kpos[0]); kpos[0] += 1
    if kpos[0] == OPT['p1']: VM('cnt', "buffer_load_dword v7, v6, s[76:79], 0 offen sc1")
    if kpos[0] == OPT['pq']:
        wait_tag('cnt')
        E("s_mov_b32 s98, 0"); Lb("Lcnt")
        E("v_cmp_gt_u32 vcc, 16, v7"); E("s_cbranch_vccz Lcntd")
        E("buffer_load_dword v7, v6, s[76:79], 0 offen sc1"); E("s_waitcnt vmcnt(0)")
        E("s_add_u32 s98, s98, 1"); E("s_cmp_lt_u32 s98, 0x8000"); E("s_cbranch_scc1 Lcnt")
        Lb("Lcntd")
        VM('q', qload)
for u in range(8): vload(u)
vpos[0] = 8
wait_tag('q')
check(range(16, 20))
E("s_cbranch_vccz Lattn")
Lb("Lqpoll")
poll([qload], lambda: check(range(16, 20)))
Lb("Lattn")
stamp()
E("ds_write_b128 v1, v[16:19] offset:%d" % QL)
E("s_waitcnt lgkmcnt(0)")
def round_tile(T, first):
    s = 32 + 4 * T
    return ["v_cvt_pk_bf16_f32 v6, v%d, v%d" % (s, s + 1), "v_cvt_pk_bf16_f32 v7, v%d, v%d" % (s + 2, s + 3),
            "v_lshlrev_b32 v%d, 16, v6" % s, "v_and_b32 v%d, 0xffff0000, v6" % (s + 1),
            "v_lshlrev_b32 v%d, 16, v7" % (s + 2), "v_and_b32 v%d, 0xffff0000, v7" % (s + 3),
            ("v_max_f32 v12, v%d, v%d" % (s, s + 1)) if first else ("v_max3_f32 v12, v12, v%d, v%d" % (s, s + 1)),
            "v_max3_f32 v12, v12, v%d, v%d" % (s + 2, s + 3)]
seq = [(G, t) for G in range(4) for t in range(8)]
for i in range(4): E("ds_read_b128 %s, v2 offset:%d" % (vr(64 + 4 * i), QL + 64 * seq[i][1]))
for i, (G, t) in enumerate(seq):
    if t == 0:
        vgroup(4)
        E("s_waitcnt vmcnt(%d)" % min(63, len(vm) - 1 - [j for j, x in enumerate(vm) if x == 'K'][16 * G + 15]))
        extra = (round_tile(2 * G - 2, G == 1) + round_tile(2 * G - 1, False)) if G else []
        extra = [None] * 4 + extra[:12] if extra else []
        tail = (round_tile(2 * G - 2, G == 1) + round_tile(2 * G - 1, False))[12:] if G else []
    E("s_waitcnt lgkmcnt(%d)" % min(3, len(seq) - 1 - i))
    for d in range(2):
        T = 2 * G + d
        E("v_mfma_f32_16x16x32_bf16 %s, %s, %s, %s" % (vr(32 + 4 * T), ar(32 * T + 4 * t), vr(64 + 4 * (i % 4)), "0" if t == 0 else vr(32 + 4 * T)))
        if extra and extra[2 * t + d]: E(extra[2 * t + d])
    if i + 4 < len(seq): E("ds_read_b128 %s, v2 offset:%d" % (vr(64 + 4 * (i % 4)), QL + 64 * seq[i + 4][1]))
    if t == 7:
        for s in tail: E(s)
lg = []
def ldsread(u): E("ds_read_b128 %s, v3 offset:%d" % (vr(64 + 4 * (u % 4)), 4096 + u * 1024)); lg.append(u)
wait_tag('V3')
for u in range(4): ldsread(u)
E("s_nop 3")
for s in round_tile(6, False): E(s)
for s in round_tile(7, False): E(s)
E("v_mov_b32 v6, v12"); E("s_nop 1"); E("v_permlane16_swap_b32 v12, v6"); E("s_nop 1"); E("v_max_f32 v12, v12, v6")
E("v_mov_b32 v6, v12"); E("s_nop 1"); E("v_permlane32_swap_b32 v12, v6"); E("s_nop 1"); E("v_max_f32 v12, v12, v6")
E("v_mul_f32 v14, s99, v12"); E("v_mov_b32 v13, 0")
def ptile(T):
    s = 32 + 4 * T
    return ["v_fma_f32 v%d, v%d, s99, -v14" % (s + r, s + r) for r in range(4)] + ["v_exp_f32 v%d, v%d" % (s + r, s + r) for r in range(4)] + \
           ["v_add_f32 v13, v13, v%d" % (s + r) for r in range(4)] + ["v_cvt_pk_bf16_f32 v%d, v%d, v%d" % (s + r, s + r, s + r) for r in range(4)]
def bmk(k): return ["v_and_b32 v%d, v%d, v%d" % (16 + 4 * (k & 1) + r, 32 + k, 8 + r) for r in range(4)]
for s in ptile(0): E(s)
for s in bmk(0): E(s)
for k in range(32):
    pt = ptile(k // 4 + 1)[4 * (k % 4): 4 * (k % 4) + 4] if k < 28 else []
    nb = bmk(k + 1) if k < 31 else []
    if k % 4 == 3 and k < 28: first, second = pt, nb
    else: first, second = pt, nb
    b = 16 + 4 * (k & 1)
    vgroup(2)
    for hf in range(2):
        u = 2 * k + hf
        if u < NLDSV:
            E("s_waitcnt lgkmcnt(%d)" % (len(lg) - 1 - lg.index(u))); A = vr(64 + 4 * (u % 4))
        else:
            wait_tag('V%d' % u); A = vr(144 + 4 * (u - NLDSV))
        if hf == 0: E("s_nop 0")
        acc = vr(24 + 4 * hf)
        E("v_mfma_f32_16x16x32_bf16 %s, %s, %s, %s" % (acc, A, vr(b), "0" if k == 0 else acc))
        if u + 4 < NLDSV:
            if u % 2 == 0: wait_tag('V%d' % (u + 5))
            ldsread(u + 4)
        for s in (first if hf == 0 else second): E(s)
E("v_mov_b32 v6, v13"); E("s_nop 1"); E("v_permlane16_swap_b32 v13, v6"); E("s_nop 1"); E("v_add_f32 v13, v13, v6")
E("v_mov_b32 v6, v13"); E("s_nop 1"); E("v_permlane32_swap_b32 v13, v6"); E("s_nop 1"); E("v_add_f32 v13, v13, v6")
E("v_bfe_u32 v6, v0, 3, 1"); E("v_lshlrev_b32 v7, 10, v6"); E("v_bfe_u32 v1, v0, 4, 2"); E("v_lshl_add_u32 v7, v1, 5, v7")
E("v_and_b32 v1, 7, v0"); E("v_lshl_add_u32 v7, v1, 2, v7"); E("s_lshl_b32 s8, s7, 11"); E("v_add_u32 v7, s8, v7")
E("s_lshl_b32 s8, s7, 4"); E("v_lshl_add_u32 v6, v6, 3, s8")
E("s_barrier")
for hf in range(2):
    for r in range(4): E("ds_write_b32 v7, v%d offset:%d" % (24 + 4 * hf + r, OM + (r * 2 + hf) * 128))
E("s_mov_b64 exec, 0x101"); E("ds_write_b64 v6, v[12:13] offset:%d" % ML); E("s_mov_b64 exec, -1")
E("v_lshlrev_b32 v1, 3, v0"); E("v_lshrrev_b32 v2, 7, v0"); E("v_lshlrev_b32 v3, 3, v2")
E("v_lshlrev_b32 v6, 9, v2"); E("v_bfe_u32 v7, v0, 4, 1"); E("v_lshl_add_u32 v6, v7, 8, v6"); E("v_bfe_u32 v7, v0, 2, 2"); E("v_lshl_add_u32 v6, v7, 6, v6")
E("v_bfe_u32 v7, v0, 5, 2"); E("v_lshl_add_u32 v6, v7, 4, v6"); E("v_and_b32 v7, 3, v0"); E("v_lshl_add_u32 v6, v7, 2, v6")
E("v_lshlrev_b32 v7, 6, v2"); E("s_add_u32 s8, s84, s86"); E("s_add_u32 s9, s85, s86")
bar()
for w in range(4): E("ds_read_b64 %s, v3 offset:%d" % (vr(40 + 2 * w, 2), ML + 16 * w))
for w in range(4): E("ds_read_b64 %s, v1 offset:%d" % (vr(32 + 2 * w, 2), OM + 2048 * w))
E("s_waitcnt lgkmcnt(4)")
E("v_max_f32 v26, v40, v42"); E("v_max3_f32 v26, v26, v44, v46")
for w in range(4): E("v_sub_f32 v%d, v%d, v26" % (40 + 2 * w, 40 + 2 * w)); E("v_mul_f32 v%d, s99, v%d" % (40 + 2 * w, 40 + 2 * w))
for w in range(4): E("v_exp_f32 v%d, v%d" % (40 + 2 * w, 40 + 2 * w))
E("s_waitcnt lgkmcnt(0)")
E("v_mul_f32 v24, v40, v32"); E("v_mul_f32 v25, v40, v33"); E("v_mul_f32 v27, v40, v41")
for w in range(1, 4):
    E("v_fmac_f32 v24, v%d, v%d" % (40 + 2 * w, 32 + 2 * w)); E("v_fmac_f32 v25, v%d, v%d" % (40 + 2 * w, 33 + 2 * w)); E("v_fmac_f32 v27, v%d, v%d" % (40 + 2 * w, 41 + 2 * w))
E("v_cvt_pk_bf16_f32 v24, v24, v25"); E("v_min_u32 v24, -2, v24"); E("v_min_u32 v26, -2, v26"); E("v_min_u32 v27, -2, v27")
E("buffer_store_dword v24, v6, s[64:67], s8 offen sc1")
E("s_and_b32 s10, s7, 1"); E("s_cmp_lg_u32 s10, 0"); E("s_cbranch_scc1 Lnoml")
E("s_mov_b64 exec, 1"); E("buffer_store_dwordx2 v[26:27], v7, s[64:67], s9 offen sc1"); E("s_mov_b64 exec, -1")
Lb("Lnoml")
stamp()
E("s_cmp_ge_u32 s13, 28"); E("s_cbranch_scc1 Lskipw")
lane("v15"); E("v_lshlrev_b32 v1, 4, v15"); E("v_lshrrev_b32 v2, 5, v15"); E("v_lshlrev_b32 v2, 6, v2")
E("s_lshl_b32 s8, s7, 3"); E("s_add_u32 s8, s8, s4"); E("s_lshl_b32 s9, s8, 13"); E("s_add_u32 s9, s9, s86"); E("s_add_u32 s10, s9, 4096")
E("s_lshl_b32 s11, s8, 7"); E("s_add_u32 s11, s11, s86"); E("s_add_u32 s11, s11, 0x%x" % MLB)
loads = ["buffer_load_dwordx4 %s, v2, s[64:67], s11 offen offset:%d sc1" % (vr(48 + 4 * q), 16 * q) for q in range(4)]
loads += ["buffer_load_dwordx4 %s, v1, s[64:67], %s offen offset:%d sc1" % (vr(16 + 4 * s), "s9" if s < 4 else "s10", (s % 4) * 1024) for s in range(8)]
poll(loads, lambda: check(range(16, 64)))
stamp()
E("v_max3_f32 v6, v48, v50, v52"); E("v_max3_f32 v6, v6, v54, v56"); E("v_max3_f32 v6, v6, v58, v60"); E("v_max_f32 v6, v6, v62")
for s in range(8): E("v_sub_f32 v%d, v%d, v6" % (48 + 2 * s, 48 + 2 * s)); E("v_mul_f32 v%d, s99, v%d" % (48 + 2 * s, 48 + 2 * s))
for s in range(8): E("v_exp_f32 v%d, v%d" % (48 + 2 * s, 48 + 2 * s))
E("v_mul_f32 v7, v48, v49")
for s in range(1, 8): E("v_fmac_f32 v7, v%d, v%d" % (48 + 2 * s, 49 + 2 * s))
E("v_rcp_f32 v7, v7")
for s in range(8):
    for q in range(4):
        t = 72 + 2 * (q & 1)
        E("v_lshlrev_b32 v%d, 16, v%d" % (t, 16 + 4 * s + q)); E("v_and_b32 v%d, 0xffff0000, v%d" % (t + 1, 16 + 4 * s + q))
        if s == 0: E("v_pk_mul_f32 %s, %s, %s op_sel_hi:[1,0]" % (vr(64 + 2 * q, 2), vr(t, 2), vr(48, 2)))
        else: E("v_pk_fma_f32 %s, %s, %s, %s op_sel_hi:[1,0,1]" % (vr(64 + 2 * q, 2), vr(t, 2), vr(48 + 2 * s, 2), vr(64 + 2 * q, 2)))
for q in range(8): E("v_mul_f32 v%d, v%d, v7" % (64 + q, 64 + q))
for q in range(4): E("v_cvt_pk_bf16_f32 v%d, v%d, v%d" % (16 + q, 64 + 2 * q, 65 + 2 * q))
E("s_mul_i32 s8, s7, %d" % PITCH); E("v_add_u32 v1, s8, v1")
E("ds_write_b128 v1, v[16:19] offset:%d" % ACT1)
Lb("Lskipw")
bar()
def xstore(base, kr, cgp):
    E("v_lshlrev_b32 v1, 11, v1"); E("v_lshl_add_u32 v1, v2, 2, v1"); E("v_min_u32 v24, -2, v24")
    E("s_lshl_b32 s8, %s, 13" % kr); E("s_lshl_b32 s9, %s, 6" % cgp); E("s_add_u32 s8, s8, s9"); E("s_add_u32 s8, s8, s86"); E("s_add_u32 s8, s8, 0x%x" % base)
    E("buffer_store_dword v24, v1, s[64:67], s8 offen sc1")
worker(2, 28, lambda: (dense(16, ACT1), xstore(X1P, "s4", "s13")))
stamp(2)
E("s_add_u32 s91, s86, 0x%x" % X1P)
xfront("s91", 8)
stamp()
xunpack(); layernorm(ACT0); bar()
def gbody():
    dense(14, ACT0)
    bf16r("v24", "v24"); E("s_nop 1"); E("v_mov_b32_dpp v28, v24 row_ror:8 row_mask:0xf bank_mask:0xf")
    k2 = -2 * 0.7978845608028654 * 1.4426950408889634
    E("v_mul_f32 v26, v24, v24"); E("v_mov_b32 v25, %s" % f32(k2)); E("v_fmac_f32 v25, %s, v26" % f32(k2 * 0.044715))
    E("v_mul_f32 v25, v25, v24"); E("v_exp_f32 v25, v25"); E("s_nop 0"); E("v_add_f32 v25, 1.0, v25"); E("v_rcp_f32 v25, v25"); E("s_nop 0")
    E("v_mul_f32 v25, v25, v24"); bf16r("v25", "v25"); E("v_mul_f32 v25, v25, v28")
    E("v_lshlrev_b32 v1, 12, v1"); E("v_lshl_add_u32 v1, v2, 1, v1")
    E("v_mov_b32_dpp v26, v25 quad_perm:[1,0,3,2] row_mask:0xf bank_mask:0xf")
    E("v_cvt_pk_bf16_f32 v24, v25, v26"); E("v_min_u32 v24, -2, v24")
    E("s_add_u32 s8, s86, s87"); E("s_add_u32 s8, s8, 0x%x" % AB)
    E("s_mov_b32 exec_lo, 0x00550055"); E("s_mov_b32 exec_hi, 0x00550055")
    E("buffer_store_dword v24, v1, s[64:67], s8 offen sc1"); E("s_mov_b64 exec, -1")
worker(1, 28, gbody)
stamp(1)
E("s_cmp_ge_u32 s13, 14"); E("s_cbranch_scc1 Lskipd")
lane("v15"); E("v_min_u32 v1, 55, v15"); E("v_lshlrev_b32 v1, 4, v1")
E("s_lshl_b32 s8, s7, 12"); E("s_mul_i32 s9, s88, 896"); E("s_add_u32 s9, s9, s8"); E("s_add_u32 s9, s9, s86"); E("s_add_u32 s9, s9, 0x%x" % AB)
poll(["buffer_load_dwordx4 v[16:19], v1, s[64:67], s9 offen sc1"], lambda: check(range(16, 20)))
stamp()
E("s_mul_i32 s8, s7, %d" % PITCH); E("v_add_u32 v1, s8, v1")
E("ds_write_b128 v1, v[16:19] offset:%d" % ACT1)
bar()
worker(3, 0, lambda: (dense(14, ACT1), xstore(X2P, "s88", "s89")))
stamp(3)
Lb("Lskipd")
E("s_add_u32 s3, s3, 1")
E("s_cmp_eq_u32 s3, 2"); E("s_cbranch_scc0 Lloop")
E("s_cmp_eq_u32 s2, 255"); E("s_cbranch_scc1 Lloop")
E("s_branch Lend")
Lb("Lfinal")
E("v_lshrrev_b32 v1, 1, v1"); E("v_lshrrev_b32 v2, 1, v2"); E("s_mul_i32 s8, s7, 896")
E("buffer_store_dwordx2 v[8:9], v1, s[72:75], s8 offen")
E("s_mov_b32 exec_hi, 0xffff")
E("buffer_store_dwordx2 v[10:11], v2, s[72:75], s8 offen")
E("s_mov_b32 s3, 1")
stamp()
Lb("Lend")
E("s_endpgm")
out += ['.section .rodata,"a"', ".p2align 6", ".amdhsa_kernel %s_kernel" % NAME,
        "  .amdhsa_next_free_vgpr 512", "  .amdhsa_next_free_sgpr 102", "  .amdhsa_accum_offset 256",
        "  .amdhsa_group_segment_fixed_size 0", "  .amdhsa_kernarg_size 96", "  .amdhsa_user_sgpr_count 2",
        "  .amdhsa_user_sgpr_kernarg_segment_ptr 1", "  .amdhsa_system_sgpr_workgroup_id_x 1", ".end_amdhsa_kernel"]
open(sys.argv[1], "w").write("\n".join(out) + "\n")
```

```python
import sys, struct
NAME = "interleave_layers__gqa_block_cached__geglu_ffn__decode"
OPT = dict(nt=1, stamps=0, p1=28, pq=46, lazy=8, k0=2, k1=4, k2=4, k3=4)
for a in sys.argv[2:]:
    k, v = a.split('='); OPT[k] = int(v)
out = []
def E(s): out.append("    " + s)
def Lb(s): out.append(s + ":")
def f32(x): return "0x%08x" % struct.unpack('<I', struct.pack('<f', x))[0]
NT = " nt" if OPT['nt'] else ""
NLDSV = 36; VBASE = 16384; LDS_TOTAL = 163840
ACT0 = 0; OM = 0; ACT1 = 8192; QL = 8192; XRES = 12544; ML = 16128; PITCH = 1088
OB = 0; XS1 = 0x40000; XS2 = 0x44000; AB = 0x58000; MLB = 0x5C000; QB1 = 0xE0000; QB0 = 0x100000; LSTEP = 0x80000; STP = 0x300000
RW = 80
vm = []
def VM(tag, s): vm.append(tag); E(s)
def wait_tag(tag):
    idx = max(i for i, t in enumerate(vm) if t == tag)
    E("s_waitcnt vmcnt(%d)" % min(len(vm) - 1 - idx, 63))
uid = [0]
def lab(p): uid[0] += 1; return "L%s%d" % (p, uid[0])
stamp_n = [0]
def stamp(wave=0):
    if not OPT['stamps']: return
    n = stamp_n[0]; stamp_n[0] += 1; l = lab("st")
    E("s_cmp_lg_u32 s7, %d" % wave); E("s_cbranch_scc1 " + l)
    E("s_memrealtime s[8:9]"); E("s_waitcnt lgkmcnt(0)")
    E("v_mov_b32 v6, s8"); E("s_lshl_b32 s9, s2, 8"); E("s_lshl_b32 s8, s3, 7"); E("s_add_u32 s9, s9, s8")
    E("s_add_u32 s9, s9, 0x%x" % (STP + n * 4)); E("v_mov_b32 v7, 0")
    E("s_mov_b64 exec, 1"); E("buffer_store_dword v6, v7, s[64:67], s9 offen"); E("s_mov_b64 exec, -1")
    Lb(l)
def bf16r(dst, src): E("v_cvt_pk_bf16_f32 %s, %s, %s" % (dst, src, src)); E("v_lshlrev_b32 %s, 16, %s" % (dst, dst))
def vr(a, n=4): return "v[%d:%d]" % (a, a + n - 1)
def ar(a, n=4): return "a[%d:%d]" % (a, a + n - 1)
def poll(loads, chk, sleep=0):
    l = lab("poll")
    E("s_mov_b32 s98, 0"); Lb(l)
    for s in loads: E(s)
    E("s_waitcnt vmcnt(0)"); chk()
    E("s_cbranch_vccz %sd" % l)
    if sleep: E("s_sleep %d" % sleep)
    E("s_add_u32 s98, s98, 1"); E("s_cmp_lt_u32 s98, 0x8000"); E("s_cbranch_scc1 " + l)
    Lb(l + "d")
def check(regs, t="v15"):
    r = list(regs)
    E("v_max3_u32 %s, v%d, v%d, v%d" % (t, r[0], r[1], r[2])); r = r[3:]
    while len(r) >= 2: E("v_max3_u32 %s, %s, v%d, v%d" % (t, t, r[0], r[1])); r = r[2:]
    if r: E("v_max_u32 %s, %s, v%d" % (t, t, r[0]))
    E("v_cmp_eq_u32 vcc, -1, %s" % t)
kpos = [0]
def kload(n):
    T, t = n // 8, n % 8
    E("s_add_u32 s10, s80, %d" % (T * 8192))
    VM('K', "buffer_load_dwordx4 %s, v4, s[40:43], s10 offen offset:%d%s" % (ar(4 * n), 64 * t, NT))
def kgroup(cnt, cond=True):
    l = lab("kg")
    if cond: E("s_cmp_lg_u32 s3, 0"); E("s_cbranch_scc1 " + l)
    for _ in range(cnt): kload(kpos[0]); kpos[0] += 1
    if cond: Lb(l)
def vload(u):
    T, r, hf = u // 8, (u // 2) % 4, u % 2
    E("s_add_u32 s10, s80, %d" % (T * 8192))
    io = r * 512 + hf * 256
    if u < NLDSV:
        E("s_add_u32 m0, s81, %d" % (u * 1024 + 4096 - io)); E("s_nop 0")
        VM('V%d' % u, "buffer_load_dwordx4 v5, s[44:47], s10 offen offset:%d%s lds" % (io, NT))
    else:
        VM('V%d' % u, "buffer_load_dwordx4 %s, v5, s[44:47], s10 offen offset:%d%s" % (vr(144 + 4 * (u - NLDSV)), io, NT))
vpos = [0]
def vgroup(cnt):
    cnt = min(cnt, 64 - vpos[0])
    if cnt <= 0: return
    l = lab("vg"); E("s_cmp_lg_u32 s3, 0"); E("s_cbranch_scc1 " + l)
    for _ in range(cnt): vload(vpos[0]); vpos[0] += 1
    Lb(l)
def lane(dst): E("v_and_b32 %s, 63, v0" % dst)
def xaddr():
    lane("v15"); E("v_lshlrev_b32 v1, 4, v15"); E("v_min_u32 v2, 47, v15"); E("v_lshlrev_b32 v2, 4, v2"); E("v_add_u32 v2, 1024, v2")
    E("s_mul_i32 s8, s7, 896"); E("s_add_u32 s8, s8, %d" % XRES)
    E("v_lshrrev_b32 v3, 1, v1"); E("v_add_u32 v3, s8, v3"); E("v_lshrrev_b32 v14, 1, v2"); E("v_add_u32 v14, s8, v14")
def xfront(off, P, sleep=0, first=True):
    if first:
        xaddr()
        E("ds_read_b64 v[8:9], v3"); E("ds_read_b64 v[10:11], v14")
        E("v_lshlrev_b32 v6, 1, v1"); E("v_lshlrev_b32 v7, 1, v2")
    E("s_lshl_b32 s9, s7, 12"); E("s_add_u32 s9, s9, %s" % off)
    loads = ["buffer_load_dwordx4 %s, v%d, s[64:67], s9 offen offset:%d sc1" % (vr(32 + 4 * i), 6 + i // 2, 16 * (i & 1)) for i in range(4)]
    def chk():
        E("v_and_b32 v24, v32, v34"); E("v_and_b32 v25, v36, v38"); E("v_and_b32 v26, v40, v42"); E("v_and_b32 v27, v44, v46")
        E("v_and_b32 v24, v24, v25"); E("v_and_b32 v26, v26, v27"); E("v_and_b32 v24, v24, v26"); E("v_and_b32 v24, %d, v24" % P)
        E("v_cmp_eq_u32 vcc, 0, v24")
    poll(loads, chk, sleep)
    for q in range(8): E("v_lshrrev_b32 v%d, 31, v%d" % (16 + q, 32 + 2 * q)); E("v_cvt_f32_i32 v%d, v%d" % (32 + 2 * q, 32 + 2 * q))
    for q in range(8): E("v_add_u32 v%d, v%d, v%d" % (16 + q, 16 + q, 33 + 2 * q))
    for q in range(8): E("v_cvt_f32_i32 v%d, v%d" % (16 + q, 16 + q))
    for q in range(8): E("v_fmac_f32 v%d, s97, v%d" % (16 + q, 32 + 2 * q))
    E("s_waitcnt lgkmcnt(0)")
    for q in range(4):
        E("v_cvt_pk_bf16_f32 v24, v%d, v%d" % (16 + 2 * q, 17 + 2 * q))
        E("v_lshlrev_b32 v25, 16, v24"); E("v_and_b32 v26, 0xffff0000, v24")
        E("v_lshlrev_b32 v27, 16, v%d" % (8 + q)); E("v_and_b32 v28, 0xffff0000, v%d" % (8 + q))
        E("v_add_f32 v25, v25, v27"); E("v_add_f32 v26, v26, v28")
        E("v_cvt_pk_bf16_f32 v%d, v25, v26" % (8 + q))
def xunpack():
    for q in range(4): E("v_lshlrev_b32 v%d, 16, v%d" % (16 + 2 * q, 8 + q)); E("v_and_b32 v%d, 0xffff0000, v%d" % (17 + 2 * q, 8 + q))
    E("ds_write_b64 v3, v[8:9]"); E("ds_write_b64 v14, v[10:11]")
def layernorm(act):
    E("v_add_f32 v24, v16, v17"); E("v_add_f32 v26, v18, v19"); E("v_mul_f32 v25, v16, v16"); E("v_add_f32 v24, v24, v26")
    for q in (17, 18, 19): E("v_fmac_f32 v25, v%d, v%d" % (q, q))
    E("s_mov_b32 exec_hi, 0xffff")
    for q in (20, 21, 22, 23): E("v_add_f32 v24, v24, v%d" % q); E("v_fmac_f32 v25, v%d, v%d" % (q, q))
    E("s_mov_b32 exec_hi, -1"); E("s_nop 1")
    for c in ["row_shr:1 row_mask:0xf bank_mask:0xf bound_ctrl:0", "row_shr:2 row_mask:0xf bank_mask:0xf bound_ctrl:0", "row_shr:4 row_mask:0xf bank_mask:0xf bound_ctrl:0",
              "row_shr:8 row_mask:0xf bank_mask:0xf bound_ctrl:0", "row_bcast:15 row_mask:0xa bank_mask:0xf", "row_bcast:31 row_mask:0xc bank_mask:0xf"]:
        E("v_add_f32_dpp v24, v24, v24 " + c); E("v_add_f32_dpp v25, v25, v25 " + c); E("s_nop 0")
    E("v_readlane_b32 s8, v24, 63"); E("v_readlane_b32 s9, v25, 63")
    E("s_mul_i32 s10, s7, %d" % PITCH); E("s_add_u32 s10, s10, %d" % act)
    E("v_mov_b32 v26, %s" % f32(1 / 448)); E("v_mul_f32 v24, s8, v26"); E("v_mul_f32 v25, s9, v26")
    E("v_fma_f32 v25, -v24, v24, v25"); E("v_max_f32 v25, 0, v25")
    E("v_cvt_pk_bf16_f32 v26, v24, v25"); E("v_lshlrev_b32 v24, 16, v26"); E("v_and_b32 v25, 0xffff0000, v26")
    E("v_add_f32 v25, %s, v25" % f32(1e-5)); bf16r("v25", "v25")
    E("v_sqrt_f32 v25, v25")
    for q in range(8): E("v_sub_f32 v%d, v%d, v24" % (16 + q, 16 + q))
    bf16r("v25", "v25"); E("v_rcp_f32 v25, v25")
    for q in range(4):
        E("v_cvt_pk_bf16_f32 v26, v%d, v%d" % (16 + 2 * q, 17 + 2 * q)); E("v_lshlrev_b32 v%d, 16, v26" % (16 + 2 * q)); E("v_and_b32 v%d, 0xffff0000, v26" % (17 + 2 * q))
    for q in range(8): E("v_mul_f32 v%d, v%d, v25" % (16 + q, 16 + q))
    for q in range(4): E("v_cvt_pk_bf16_f32 v%d, v%d, v%d" % (24 + q, 16 + 2 * q, 17 + 2 * q))
    E("v_lshrrev_b32 v1, 1, v1"); E("v_add_u32 v1, s10, v1"); E("v_lshrrev_b32 v2, 1, v2"); E("v_add_u32 v2, s10, v2")
    E("ds_write_b64 v1, v[24:25]"); E("ds_write_b64 v2, v[26:27]")
def bar(): E("s_waitcnt lgkmcnt(0)"); E("s_barrier")
def dense(T, act, RW=80):
    E("v_bfe_u32 v1, v0, 2, 2"); E("v_mul_u32_u24 v1, %d, v1" % PITCH); E("v_bfe_u32 v2, v0, 4, 2"); E("v_lshl_add_u32 v1, v2, 4, v1")
    for t in range(min(8, T)): E("ds_read_b128 %s, v1 offset:%d" % (vr(32 + 4 * t), act + 64 * t))
    issued = min(8, T)
    for t in range(T):
        E("s_waitcnt lgkmcnt(%d)" % (issued - 1 - t))
        acc = vr(24 + 4 * (t & 1))
        E("v_mfma_f32_16x16x32_bf16 %s, %s, %s, %s" % (acc, vr(32 + 4 * (t % 8)), vr(RW + 4 * t), "0" if t < 2 else acc))
        if issued < T: E("ds_read_b128 %s, v1 offset:%d" % (vr(32 + 4 * (issued % 8)), act + 64 * issued)); issued += 1
    E("v_bfe_u32 v1, v0, 4, 2"); E("v_and_b32 v2, 15, v0"); E("s_nop 6"); E("v_add_f32 v24, v24, v28")
def worker(wave, limit, body):
    l = lab("wk")
    E("s_cmp_lg_u32 s7, %d" % wave); E("s_cbranch_scc1 " + l)
    if limit: E("s_cmp_ge_u32 s13, %d" % limit); E("s_cbranch_scc1 " + l)
    body(); Lb(l)

hdr = open("cdna_kernels/%s.s.ref" % NAME).read().split("\n")
for l in hdr:
    if l.startswith("; @launch"): out.append("; @launch grid=(256,1,1) block=(256,1,1) lds=%d" % LDS_TOTAL)
    elif l.startswith(";"): out.append(l)
    else: break
out += ['.amdgcn_target "amdgcn-amd-amdhsa--gfx950"', ".text", ".globl %s_kernel" % NAME, ".p2align 8",
        ".type %s_kernel,@function" % NAME, "%s_kernel:" % NAME]
E("s_cmp_ge_u32 s2, 256"); E("s_cbranch_scc1 Lend")
E("s_load_dwordx16 s[16:31], s[0:1], 0"); E("s_load_dwordx8 s[32:39], s[0:1], 64")
E("v_lshrrev_b32 v1, 6, v0"); E("s_and_b32 s4, s2, 7"); E("v_readfirstlane_b32 s7, v1")
E("s_lshr_b32 s13, s2, 3"); E("s_and_b32 s5, s13, 3"); E("s_lshr_b32 s6, s2, 5"); E("s_mov_b32 s3, 0")
E("v_and_b32 v1, 15, v0"); E("v_bfe_u32 v2, v0, 4, 2")
E("v_lshlrev_b32 v4, 9, v1"); E("v_lshl_add_u32 v4, v2, 4, v4")
E("v_lshlrev_b32 v5, 11, v2"); E("v_lshl_add_u32 v5, v1, 4, v5")
E("s_lshl_b32 s8, s5, 3"); E("s_add_u32 s8, s8, s4"); E("s_lshl_b32 s9, s8, 21"); E("s_lshl_b32 s10, s6, 18"); E("s_add_u32 s9, s9, s10")
E("s_lshl_b32 s80, s7, 16"); E("s_mul_i32 s81, s7, %d" % (NLDSV * 1024)); E("s_add_u32 s81, s81, %d" % (VBASE - 4096))

E("s_lshl_b32 s84, s8, 13"); E("s_lshl_b32 s10, s6, 10"); E("s_add_u32 s84, s84, s10")
E("s_lshl_b32 s85, s8, 7"); E("s_lshl_b32 s10, s6, 3"); E("s_add_u32 s85, s85, s10"); E("s_add_u32 s85, s85, 0x%x" % MLB)
E("s_mov_b32 s86, 0")
E("s_mov_b32 s82, 0x%x" % QB0)
E("s_lshl_b32 s11, s7, 4")
E("s_lshl_b32 s83, s2, 7"); E("s_lshl_b32 s10, s7, 5"); E("s_add_u32 s83, s83, s10")
E("s_sub_u32 s87, s2, 64"); E("s_lshl_b32 s87, s87, 6"); E("s_add_u32 s87, s87, s11")
E("s_max_u32 s14, s13, 15"); E("s_sub_u32 s14, s14, 15"); E("s_min_u32 s14, s14, 13")
E("s_cmp_ge_u32 s14, 7"); E("s_cselect_b32 s88, 1, 0"); E("s_mul_i32 s10, s88, 7"); E("s_sub_u32 s14, s14, s10")
E("s_lshl_b32 s89, s14, 6"); E("s_add_u32 s89, s89, s11")
E("s_mov_b32 s12, 0"); E("s_cmp_ge_u32 s13, 8"); E("s_cselect_b32 s12, 1, s12"); E("s_cmp_ge_u32 s13, 15"); E("s_cselect_b32 s12, 2, s12")
E("s_cmp_ge_u32 s13, 29"); E("s_cselect_b32 s12, 3, s12")
E("s_mov_b32 s99, %s" % f32(0.0625 * 1.4426950408889634))
E("s_mov_b32 s97, %s" % f32(2.0 ** -32)); E("s_mov_b32 s96, %s" % f32(2.0 ** 32)); E("s_movk_i32 s95, 0xffe0")
E("s_waitcnt lgkmcnt(0)")
def srd(d, lo, hi, n, add=None):
    if add: E("s_add_u32 s%d, s%d, %s" % (d, lo, add)); E("s_addc_u32 s%d, s%d, 0" % (d + 1, hi))
    else: E("s_mov_b32 s%d, s%d" % (d, lo)); E("s_mov_b32 s%d, s%d" % (d + 1, hi))
    E("s_mov_b32 s%d, 0x%x" % (d + 2, n)); E("s_mov_b32 s%d, 0x00020000" % (d + 3))
srd(40, 18, 19, 262144, "s9"); srd(44, 20, 21, 262144, "s9")
srd(64, 38, 39, 0x400000); srd(68, 16, 17, 3584); srd(72, 34, 35, 3584); srd(76, 36, 37, 256)
stamp()
kgroup(OPT['k0'], False)
xaddr()
E("v_lshrrev_b32 v6, 1, v1"); E("v_lshrrev_b32 v7, 1, v2"); E("s_mul_i32 s8, s7, 896")
VM('x', "buffer_load_dwordx2 v[8:9], v6, s[68:71], s8 offen"); VM('x', "buffer_load_dwordx2 v[10:11], v7, s[68:71], s8 offen")
srd(48, 22, 23, 448 * 4096 * 2); E("s_mov_b32 s92, s83"); E("s_add_u32 s94, s92, 16"); E("s_movk_i32 s93, 8192")
E("s_mov_b32 s52, s22"); E("s_mov_b32 s53, s23")
E("s_cmp_eq_u32 s12, 0"); E("s_cbranch_scc1 Lwsel")
E("s_mov_b32 s48, s28"); E("s_mov_b32 s49, s29"); E("s_mov_b32 s52, s30"); E("s_mov_b32 s53, s31"); E("s_mov_b32 s50, 0x%x" % (448 * 1792 * 2))
E("s_mov_b32 s92, s87"); E("s_mov_b32 s94, s87"); E("s_movk_i32 s93, 3584")
E("s_cmp_eq_u32 s12, 1"); E("s_cbranch_scc1 Lwsel")
E("s_mov_b32 s48, s24"); E("s_mov_b32 s49, s25"); E("s_mov_b32 s52, s24"); E("s_mov_b32 s53, s25"); E("s_mov_b32 s50, 0x%x" % (4096 * 448 * 2))
E("s_lshl_b32 s8, s4, 1"); E("s_add_u32 s8, s8, s88"); E("s_mul_i32 s92, s8, %d" % (256 * 896)); E("s_lshl_b32 s8, s89, 1"); E("s_add_u32 s92, s92, s8")
E("s_add_u32 s94, s92, 16"); E("s_movk_i32 s93, 896")
Lb("Lwsel")
E("s_mov_b32 s54, s50"); E("s_mov_b32 s55, 0x00020000")
lane("v15"); E("v_mul_lo_u32 v6, v15, s93"); E("s_lshl_b32 s93, s93, 6")
for f in range(8):
    if f == 4:
        E("s_cmp_lt_u32 s12, 2"); E("s_cbranch_scc1 Lwsel2")
        E("s_mov_b32 s48, s32"); E("s_mov_b32 s49, s33"); E("s_mov_b32 s52, s32"); E("s_mov_b32 s53, s33"); E("s_mov_b32 s50, 0x%x" % (1792 * 448 * 2)); E("s_mov_b32 s54, s50")
        E("s_mul_i32 s92, s4, %d" % (224 * 896)); E("s_lshl_b32 s8, s89, 1"); E("s_add_u32 s92, s92, s8"); E("s_add_u32 s94, s92, 16")
        Lb("Lwsel2")
    VM('w', "buffer_load_dwordx4 %s, v6, s[48:51], s92 offen" % vr(RW + 8 * f))
    VM('w', "buffer_load_dwordx4 %s, v6, s[52:55], s94 offen" % vr(RW + 8 * f + 4))
    if f < 7: E("s_add_u32 s92, s92, s93"); E("s_add_u32 s94, s94, s93")
    if f == 3:
        E("s_and_b32 s8, s2, 0x78"); E("s_cmp_eq_u32 s8, 0x40"); E("s_cselect_b32 s8, 0, -1")
        for r in range(4): E("v_mov_b32 v%d, s8" % (24 + r))
        E("v_lshlrev_b32 v7, 4, v0"); E("s_lshl_b32 s8, s2, 12")
        VM('clr', "buffer_store_dwordx4 v[24:27], v7, s[64:67], s8 offen sc1")
        E("s_cmp_lg_u32 s12, 0"); E("s_cbranch_scc1 Lnoclrq")
        E("v_bfe_u32 v12, v0, 4, 2"); E("v_and_b32 v13, 15, v0"); E("v_lshlrev_b32 v12, 13, v12"); E("v_lshl_add_u32 v12, v13, 1, v12"); E("s_add_u32 s8, s82, s83")
        E("s_mov_b32 exec_lo, 0x55555555"); E("s_mov_b32 exec_hi, 0x55555555")
        E("buffer_store_dword v24, v12, s[64:67], s8 offen sc1"); E("s_mov_b64 exec, -1")
        Lb("Lnoclrq")
def qaddr(): E("v_lshlrev_b32 v1, 13, v1"); E("v_lshl_add_u32 v1, v2, 1, v1"); E("s_add_u32 s8, s82, s83"); E("s_mov_b32 exec_lo, 0x55555555"); E("s_mov_b32 exec_hi, 0x55555555")
kgroup(OPT['k1'], False)
stamp()
wait_tag('x')
xunpack()
E("s_cmp_lg_u32 s12, 0"); E("s_cbranch_scc1 Lnoln0")
layernorm(ACT0)
Lb("Lnoln0")
kgroup(OPT['k2'], False)
lane("v15"); E("v_lshlrev_b32 v6, 5, v15"); E("v_add_u32 v6, s81, v6")
wait_tag('w')
for f in range(8):
    E("ds_write_b128 v6, %s offset:%d" % (vr(RW + 8 * f), 4096 + f * 2048)); E("ds_write_b128 v6, %s offset:%d" % (vr(RW + 8 * f + 4), 4096 + f * 2048 + 16))
kgroup(OPT['k3'], False)
E("v_bfe_u32 v6, v0, 4, 2"); E("v_lshlrev_b32 v6, 8, v6"); E("v_bfe_u32 v7, v0, 2, 2"); E("v_lshl_add_u32 v6, v7, 5, v6")
E("v_and_b32 v7, 3, v0"); E("v_lshl_add_u32 v6, v7, 3, v6"); E("v_add_u32 v6, s81, v6")
E("s_waitcnt lgkmcnt(0)")
for f in range(16):
    E("ds_read_b64_tr_b16 %s, v6 offset:%d" % (vr(RW + 4 * f, 2), 4096 + f * 1024)); E("ds_read_b64_tr_b16 %s, v6 offset:%d" % (vr(RW + 4 * f + 2, 2), 4096 + f * 1024 + 128))
    if f % 4 == 3 and f < 15: E("s_waitcnt lgkmcnt(4)")
bar()
def sig():
    E("s_mov_b64 exec, 1"); E("s_and_b32 s9, s2, 15"); E("s_lshl_b32 s9, s9, 4"); E("v_mov_b32 v25, 1"); E("v_mov_b32 v26, 0")
    E("buffer_atomic_add v25, v26, s[76:79], s9 offen sc1"); E("s_mov_b64 exec, -1")
worker(0, 0, sig)
def qbody():
    dense(14, ACT0)
    E("s_nop 1"); E("v_mov_b32_dpp v25, v24 quad_perm:[1,0,3,2] row_mask:0xf bank_mask:0xf")
    E("v_cvt_pk_bf16_f32 v24, v24, v25"); E("v_min_u32 v24, -2, v24"); qaddr()
    E("buffer_store_dword v24, v1, s[64:67], s8 offen sc1"); E("s_mov_b64 exec, -1")
E("s_cmp_lg_u32 s12, 0"); E("s_cbranch_scc1 Lnoq0")
qbody()
Lb("Lnoq0")
stamp()
Lb("Lloop")

lane("v15"); E("v_lshlrev_b32 v1, 4, v15"); E("v_add_u32 v3, s81, v1")
E("v_bfe_u32 v2, v0, 3, 1"); E("v_lshlrev_b32 v2, 9, v2"); E("v_bfe_u32 v6, v0, 4, 2"); E("v_lshl_add_u32 v2, v6, 4, v2")
E("v_and_b32 v6, 1, v0"); E("v_lshlrev_b32 v6, 4, v6"); E("v_mov_b32 v7, 0xffff"); E("v_lshlrev_b32 v7, v6, v7"); E("v_bfe_u32 v6, v0, 1, 2")
for r in range(4): E("v_cmp_eq_u32 vcc, %d, v6" % r); E("s_nop 1"); E("v_cndmask_b32 v%d, 0, v7, vcc" % (8 + r))
E("s_lshl_b32 s8, s5, 13"); E("s_lshl_b32 s9, s4, 10"); E("s_add_u32 s90, s8, s9"); E("s_add_u32 s90, s90, s82")
qload = "buffer_load_dwordx4 v[16:19], v1, s[64:67], s90 offen sc1"
E("s_cmp_lg_u32 s3, 0"); E("s_cbranch_scc1 Lqpoll1")
E("v_and_b32 v6, 15, v0"); E("v_lshlrev_b32 v6, 4, v6")
while kpos[0] < 64:
    kload(kpos[0]); kpos[0] += 1
    if kpos[0] == OPT['p1']: VM('cnt', "buffer_load_dword v7, v6, s[76:79], 0 offen sc1")
    if kpos[0] == OPT['pq']:
        wait_tag('cnt')
        E("s_mov_b32 s98, 0"); Lb("Lcnt")
        E("v_cmp_gt_u32 vcc, 16, v7"); E("s_cbranch_vccz Lcntd")
        E("buffer_load_dword v7, v6, s[76:79], 0 offen sc1"); E("s_waitcnt vmcnt(0)")
        E("s_add_u32 s98, s98, 1"); E("s_cmp_lt_u32 s98, 0x8000"); E("s_cbranch_scc1 Lcnt")
        Lb("Lcntd")
        VM('q', qload)
for u in range(8): vload(u)
vpos[0] = 8
wait_tag('q')
check(range(16, 20))
E("s_cbranch_vccz Lattn")
Lb("Lqpoll")
poll([qload], lambda: check(range(16, 20)))
Lb("Lattn")
E("ds_write_b128 v1, v[16:19] offset:%d" % QL)
E("s_waitcnt lgkmcnt(0)")
E("s_branch Lattn2")
Lb("Lqpoll1")
worker(0, 0, lambda: (poll([qload], lambda: check(range(16, 20))), E("ds_write_b128 v1, v[16:19] offset:%d" % QL)))
bar()
Lb("Lattn2")
stamp()
def round_tile(T, first):
    s = 32 + 4 * T
    return ["v_cvt_pk_bf16_f32 v6, v%d, v%d" % (s, s + 1), "v_cvt_pk_bf16_f32 v7, v%d, v%d" % (s + 2, s + 3),
            "v_lshlrev_b32 v%d, 16, v6" % s, "v_and_b32 v%d, 0xffff0000, v6" % (s + 1),
            "v_lshlrev_b32 v%d, 16, v7" % (s + 2), "v_and_b32 v%d, 0xffff0000, v7" % (s + 3),
            ("v_max_f32 v12, v%d, v%d" % (s, s + 1)) if first else ("v_max3_f32 v12, v12, v%d, v%d" % (s, s + 1)),
            "v_max3_f32 v12, v12, v%d, v%d" % (s + 2, s + 3)]
seq = [(G, t) for G in range(4) for t in range(8)]
for i in range(4): E("ds_read_b128 %s, v2 offset:%d" % (vr(64 + 4 * i), QL + 64 * seq[i][1]))
for i, (G, t) in enumerate(seq):
    if t == 0:
        vgroup(4)
        E("s_waitcnt vmcnt(%d)" % min(63, len(vm) - 1 - [j for j, x in enumerate(vm) if x == 'K'][16 * G + 15]))
        extra = (round_tile(2 * G - 2, G == 1) + round_tile(2 * G - 1, False)) if G else []
        extra = [None] * 4 + extra[:12] if extra else []
        tail = (round_tile(2 * G - 2, G == 1) + round_tile(2 * G - 1, False))[12:] if G else []
    E("s_waitcnt lgkmcnt(%d)" % min(3, len(seq) - 1 - i))
    for d in range(2):
        T = 2 * G + d
        E("v_mfma_f32_16x16x32_bf16 %s, %s, %s, %s" % (vr(32 + 4 * T), ar(32 * T + 4 * t), vr(64 + 4 * (i % 4)), "0" if t == 0 else vr(32 + 4 * T)))
        if extra and extra[2 * t + d]: E(extra[2 * t + d])
    if i + 4 < len(seq): E("ds_read_b128 %s, v2 offset:%d" % (vr(64 + 4 * (i % 4)), QL + 64 * seq[i + 4][1]))
    if t == 7:
        for s in tail: E(s)
lg = []
def ldsread(u): E("ds_read_b128 %s, v3 offset:%d" % (vr(64 + 4 * (u % 4)), 4096 + u * 1024)); lg.append(u)
wait_tag('V3')
for u in range(4): ldsread(u)
E("s_nop 3")
for s in round_tile(6, False): E(s)
for s in round_tile(7, False): E(s)
E("v_mov_b32 v6, v12"); E("s_nop 1"); E("v_permlane16_swap_b32 v12, v6"); E("s_nop 1"); E("v_max_f32 v12, v12, v6")
E("v_mov_b32 v6, v12"); E("s_nop 1"); E("v_permlane32_swap_b32 v12, v6"); E("s_nop 1"); E("v_max_f32 v12, v12, v6")
E("v_mul_f32 v14, s99, v12"); E("v_mov_b32 v13, 0")
def ptile(T):
    s = 32 + 4 * T
    return ["v_fma_f32 v%d, v%d, s99, -v14" % (s + r, s + r) for r in range(4)] + ["v_exp_f32 v%d, v%d" % (s + r, s + r) for r in range(4)] + \
           ["v_add_f32 v13, v13, v%d" % (s + r) for r in range(4)] + ["v_cvt_pk_bf16_f32 v%d, v%d, v%d" % (s + r, s + r, s + r) for r in range(4)]
def bmk(k): return ["v_and_b32 v%d, v%d, v%d" % (16 + 4 * (k & 1) + r, 32 + k, 8 + r) for r in range(4)]
for s in ptile(0): E(s)
for s in bmk(0): E(s)
for k in range(32):
    pt = ptile(k // 4 + 1)[4 * (k % 4): 4 * (k % 4) + 4] if k < 28 else []
    nb = bmk(k + 1) if k < 31 else []
    if k % 4 == 3 and k < 28: first, second = pt, nb
    else: first, second = pt, nb
    b = 16 + 4 * (k & 1)
    vgroup(2)
    for hf in range(2):
        u = 2 * k + hf
        if u < NLDSV:
            E("s_waitcnt lgkmcnt(%d)" % (len(lg) - 1 - lg.index(u))); A = vr(64 + 4 * (u % 4))
        else:
            wait_tag('V%d' % u); A = vr(144 + 4 * (u - NLDSV))
        if hf == 0: E("s_nop 0")
        acc = vr(24 + 4 * hf)
        E("v_mfma_f32_16x16x32_bf16 %s, %s, %s, %s" % (acc, A, vr(b), "0" if k == 0 else acc))
        if u + 4 < NLDSV:
            if u % 2 == 0: wait_tag('V%d' % (u + 5))
            ldsread(u + 4)
        for s in (first if hf == 0 else second): E(s)
E("v_mov_b32 v6, v13"); E("s_nop 1"); E("v_permlane16_swap_b32 v13, v6"); E("s_nop 1"); E("v_add_f32 v13, v13, v6")
E("v_mov_b32 v6, v13"); E("s_nop 1"); E("v_permlane32_swap_b32 v13, v6"); E("s_nop 1"); E("v_add_f32 v13, v13, v6")
E("v_bfe_u32 v6, v0, 3, 1"); E("v_lshlrev_b32 v7, 10, v6"); E("v_bfe_u32 v1, v0, 4, 2"); E("v_lshl_add_u32 v7, v1, 5, v7")
E("v_and_b32 v1, 7, v0"); E("v_lshl_add_u32 v7, v1, 2, v7"); E("s_lshl_b32 s8, s7, 11"); E("v_add_u32 v7, s8, v7")
E("s_lshl_b32 s8, s7, 4"); E("v_lshl_add_u32 v6, v6, 3, s8")
E("s_barrier")
for hf in range(2):
    for r in range(4): E("ds_write_b32 v7, v%d offset:%d" % (24 + 4 * hf + r, OM + (r * 2 + hf) * 128))
E("s_mov_b64 exec, 0x101"); E("ds_write_b64 v6, v[12:13] offset:%d" % ML); E("s_mov_b64 exec, -1")
E("v_lshlrev_b32 v1, 3, v0"); E("v_lshrrev_b32 v2, 7, v0"); E("v_lshlrev_b32 v3, 3, v2")
E("v_lshlrev_b32 v6, 9, v2"); E("v_bfe_u32 v7, v0, 4, 1"); E("v_lshl_add_u32 v6, v7, 8, v6"); E("v_bfe_u32 v7, v0, 2, 2"); E("v_lshl_add_u32 v6, v7, 6, v6")
E("v_bfe_u32 v7, v0, 5, 2"); E("v_lshl_add_u32 v6, v7, 4, v6"); E("v_and_b32 v7, 3, v0"); E("v_lshl_add_u32 v6, v7, 2, v6")
E("v_lshlrev_b32 v7, 6, v2"); E("s_add_u32 s8, s84, s86"); E("s_add_u32 s9, s85, s86")
bar()
for w in range(4): E("ds_read_b64 %s, v3 offset:%d" % (vr(40 + 2 * w, 2), ML + 16 * w))
for w in range(4): E("ds_read_b64 %s, v1 offset:%d" % (vr(32 + 2 * w, 2), OM + 2048 * w))
E("s_waitcnt lgkmcnt(4)")
E("v_max_f32 v26, v40, v42"); E("v_max3_f32 v26, v26, v44, v46")
for w in range(4): E("v_sub_f32 v%d, v%d, v26" % (40 + 2 * w, 40 + 2 * w)); E("v_mul_f32 v%d, s99, v%d" % (40 + 2 * w, 40 + 2 * w))
for w in range(4): E("v_exp_f32 v%d, v%d" % (40 + 2 * w, 40 + 2 * w))
E("s_waitcnt lgkmcnt(0)")
E("v_mul_f32 v24, v40, v32"); E("v_mul_f32 v25, v40, v33"); E("v_mul_f32 v27, v40, v41")
for w in range(1, 4):
    E("v_fmac_f32 v24, v%d, v%d" % (40 + 2 * w, 32 + 2 * w)); E("v_fmac_f32 v25, v%d, v%d" % (40 + 2 * w, 33 + 2 * w)); E("v_fmac_f32 v27, v%d, v%d" % (40 + 2 * w, 41 + 2 * w))
E("v_cvt_pk_bf16_f32 v24, v24, v25"); E("v_min_u32 v24, -2, v24"); E("v_min_u32 v26, -2, v26"); E("v_min_u32 v27, -2, v27")
E("buffer_store_dword v24, v6, s[64:67], s8 offen sc1")
E("s_and_b32 s10, s7, 1"); E("s_cmp_lg_u32 s10, 0"); E("s_cbranch_scc1 Lnoml")
E("s_mov_b64 exec, 1"); E("buffer_store_dwordx2 v[26:27], v7, s[64:67], s9 offen sc1"); E("s_mov_b64 exec, -1")
Lb("Lnoml")
stamp()

E("s_cmp_eq_u32 s12, 1"); E("s_cbranch_scc1 Lg")
E("s_cmp_eq_u32 s12, 0"); E("s_cbranch_scc1 Lq")
E("s_cmp_eq_u32 s12, 3"); E("s_cbranch_scc1 Lf")
lane("v15"); E("v_lshlrev_b32 v1, 3, v15"); E("v_mov_b32 v2, 0")
E("s_lshl_b32 s8, s7, 3"); E("s_add_u32 s8, s8, s4"); E("s_lshl_b32 s9, s8, 13"); E("s_add_u32 s9, s9, s86"); E("s_lshl_b32 s10, s88, 9"); E("s_add_u32 s9, s9, s10"); E("s_add_u32 s10, s9, 4096")
E("s_lshl_b32 s11, s8, 7"); E("s_add_u32 s11, s11, s86"); E("s_add_u32 s11, s11, 0x%x" % MLB); E("s_lshl_b32 s8, s88, 6"); E("s_add_u32 s11, s11, s8")
loads = ["buffer_load_dwordx4 %s, v2, s[64:67], s11 offen offset:%d sc1" % (vr(48 + 4 * q), 16 * q) for q in range(4)]
loads += ["buffer_load_dwordx2 %s, v1, s[64:67], %s offen offset:%d sc1" % (vr(16 + 2 * s, 2), "s9" if s < 4 else "s10", (s % 4) * 1024) for s in range(8)]
poll(loads, lambda: check(list(range(16, 32)) + list(range(48, 64))))
stamp()
E("v_max3_f32 v6, v48, v50, v52"); E("v_max3_f32 v6, v6, v54, v56"); E("v_max3_f32 v6, v6, v58, v60"); E("v_max_f32 v6, v6, v62")
for s in range(8): E("v_sub_f32 v%d, v%d, v6" % (48 + 2 * s, 48 + 2 * s)); E("v_mul_f32 v%d, s99, v%d" % (48 + 2 * s, 48 + 2 * s))
for s in range(8): E("v_exp_f32 v%d, v%d" % (48 + 2 * s, 48 + 2 * s))
E("v_mul_f32 v7, v48, v49")
for s in range(1, 8): E("v_fmac_f32 v7, v%d, v%d" % (48 + 2 * s, 49 + 2 * s))
E("v_rcp_f32 v7, v7")
for s in range(8):
    for q in range(2):
        t = 72 + 2 * q
        E("v_lshlrev_b32 v%d, 16, v%d" % (t, 16 + 2 * s + q)); E("v_and_b32 v%d, 0xffff0000, v%d" % (t + 1, 16 + 2 * s + q))
        if s == 0: E("v_pk_mul_f32 %s, %s, %s op_sel_hi:[1,0]" % (vr(64 + 2 * q, 2), vr(t, 2), vr(48, 2)))
        else: E("v_pk_fma_f32 %s, %s, %s, %s op_sel_hi:[1,0,1]" % (vr(64 + 2 * q, 2), vr(t, 2), vr(48 + 2 * s, 2), vr(64 + 2 * q, 2)))
for q in range(4): E("v_mul_f32 v%d, v%d, v7" % (64 + q, 64 + q))
for q in range(2): E("v_cvt_pk_bf16_f32 v%d, v%d, v%d" % (16 + q, 64 + 2 * q, 65 + 2 * q))
E("s_mul_i32 s8, s7, %d" % PITCH); E("v_add_u32 v1, s8, v1")
E("ds_write_b64 v1, v[16:17] offset:%d" % ACT1)
bar()
def xatomic(base):
    E("v_rndne_f32 v25, v24"); E("v_sub_f32 v26, v24, v25"); E("v_cvt_i32_f32 v25, v25"); E("v_mul_f32 v26, s96, v26"); E("v_cvt_i32_f32 v24, v26")
    E("v_lshlrev_b32 v1, 12, v1"); E("v_lshl_add_u32 v1, v2, 3, v1")
    E("v_ashrrev_i32 v26, 31, v24"); E("v_add_u32 v25, v25, v26"); E("v_and_or_b32 v24, v24, s95, 1")
    E("s_lshl_b32 s8, s89, 3"); E("s_add_u32 s8, s8, s86"); E("s_add_u32 s8, s8, 0x%x" % base)
    E("buffer_atomic_add_x2 v[24:25], v1, s[64:67], s8 offen sc1")
dense(8, ACT1); xatomic(XS1)
stamp()
E("s_cmp_lg_u32 s88, 0"); E("s_cbranch_scc1 Lnext")
lane("v15"); E("v_min_u32 v1, 27, v15"); E("v_lshlrev_b32 v1, 4, v1")
E("s_lshl_b32 s8, s7, 12"); E("s_mul_i32 s9, s4, 448"); E("s_add_u32 s9, s9, s8"); E("s_add_u32 s9, s9, s86"); E("s_add_u32 s9, s9, 0x%x" % AB)
poll(["buffer_load_dwordx4 v[16:19], v1, s[64:67], s9 offen sc1"], lambda: check(range(16, 20)))
stamp()
E("s_mul_i32 s8, s7, %d" % PITCH); E("v_add_u32 v1, s8, v1")
E("ds_write_b128 v1, v[16:19] offset:%d" % ACT0)
bar()
dense(7, ACT0, RW + 32); xatomic(XS2)
stamp()
E("s_branch Lnext")
Lb("Lg")
xaddr(); E("ds_read_b64 v[8:9], v3"); E("ds_read_b64 v[10:11], v14"); E("v_lshlrev_b32 v6, 1, v1"); E("v_lshlrev_b32 v7, 1, v2")
E("s_cmp_eq_u32 s3, 0"); E("s_cbranch_scc1 Lg1")
xfront("0x%x" % XS2, 8, 0, False)
Lb("Lg1")
E("s_add_u32 s91, s86, 0x%x" % XS1)
xfront("s91", 16, 0, False)
stamp()
xunpack(); layernorm(ACT0); bar()
dense(14, ACT0)
bf16r("v24", "v24"); E("s_nop 1"); E("v_mov_b32_dpp v28, v24 row_ror:8 row_mask:0xf bank_mask:0xf")
k2 = -2 * 0.7978845608028654 * 1.4426950408889634
E("v_mul_f32 v26, v24, v24"); E("v_mov_b32 v25, %s" % f32(k2)); E("v_fmac_f32 v25, %s, v26" % f32(k2 * 0.044715))
E("v_mul_f32 v25, v25, v24"); E("v_exp_f32 v25, v25"); E("s_nop 0"); E("v_add_f32 v25, 1.0, v25"); E("v_rcp_f32 v25, v25"); E("s_nop 0")
E("v_mul_f32 v25, v25, v24"); bf16r("v25", "v25"); E("v_mul_f32 v25, v25, v28")
E("v_lshlrev_b32 v1, 12, v1"); E("v_lshl_add_u32 v1, v2, 1, v1")
E("v_mov_b32_dpp v26, v25 quad_perm:[1,0,3,2] row_mask:0xf bank_mask:0xf")
E("v_cvt_pk_bf16_f32 v24, v25, v26"); E("v_min_u32 v24, -2, v24")
E("s_add_u32 s8, s86, s87"); E("s_add_u32 s8, s8, 0x%x" % AB)
E("s_mov_b32 exec_lo, 0x00550055"); E("s_mov_b32 exec_hi, 0x00550055")
E("buffer_store_dword v24, v1, s[64:67], s8 offen sc1"); E("s_mov_b64 exec, -1")
stamp()
E("s_branch Lnext")
Lb("Lq")
E("s_cmp_lg_u32 s3, 0"); E("s_cbranch_scc1 Lend")
xfront("0x%x" % XS1, 16, OPT['lazy'])
xfront("0x%x" % XS2, 8, 0, False)
stamp()
xunpack(); layernorm(ACT0); bar()
E("s_mov_b32 s82, 0x%x" % QB1)
qbody()
stamp()
E("s_branch Lnext")
Lb("Lf")
E("s_cmp_eq_u32 s3, 0"); E("s_cbranch_scc1 Lnext")
E("s_cmp_lg_u32 s2, 255"); E("s_cbranch_scc1 Lend")
xfront("0x%x" % XS1, 16)
xfront("0x%x" % XS2, 8, 0, False)
xfront("0x%x" % (XS1 + LSTEP), 16, OPT['lazy'], False)
xfront("0x%x" % (XS2 + LSTEP), 8, 0, False)
E("v_lshrrev_b32 v1, 1, v1"); E("v_lshrrev_b32 v2, 1, v2"); E("s_mul_i32 s8, s7, 896")
E("buffer_store_dwordx2 v[8:9], v1, s[72:75], s8 offen")
E("s_mov_b32 exec_hi, 0xffff")
E("buffer_store_dwordx2 v[10:11], v2, s[72:75], s8 offen")
stamp()
E("s_branch Lend")
Lb("Lnext")
E("s_cmp_lg_u32 s3, 0"); E("s_cbranch_scc1 Lend")
E("s_mov_b32 s3, 1"); E("s_mov_b32 s86, 0x%x" % LSTEP); E("s_mov_b32 s82, 0x%x" % QB1)
E("s_branch Lloop")

Lb("Lend")
E("s_endpgm")
out += ['.section .rodata,"a"', ".p2align 6", ".amdhsa_kernel %s_kernel" % NAME,
        "  .amdhsa_next_free_vgpr 512", "  .amdhsa_next_free_sgpr 102", "  .amdhsa_accum_offset 256",
        "  .amdhsa_group_segment_fixed_size 0", "  .amdhsa_kernarg_size 96", "  .amdhsa_user_sgpr_count 2",
        "  .amdhsa_user_sgpr_kernarg_segment_ptr 1", "  .amdhsa_system_sgpr_workgroup_id_x 1", ".end_amdhsa_kernel"]
open(sys.argv[1], "w").write("\n".join(out) + "\n")
```

```python
import sys, struct
NAME = "interleave_layers__gqa_block_cached__geglu_ffn__decode"
OPT = dict(nt=1, stamps=0, p1=40, pq=60, vpre=16, lazy=8, k0=0, k1=6, k2=6, k3=4, trig=1)
for a in sys.argv[2:]:
    k, v = a.split('='); OPT[k] = int(v)
out = []
def E(s): out.append("    " + s)
def Lb(s): out.append(s + ":")
def f32(x): return "0x%08x" % struct.unpack('<I', struct.pack('<f', x))[0]
NT = " nt" if OPT['nt'] else ""
NLDSV = 36; VBASE = 16384; LDS_TOTAL = 163840
ACT0 = 0; OM = 0; ACT1 = 8192; QL = 8192; XRES = 12544; ML = 16128; PITCH = 1088
OB = 0; XS1 = 0x40000; XS2 = 0x44000; AB = 0x58000; MLB = 0x5C000; QB1 = 0xE0000; QB0 = 0x100000; LSTEP = 0x80000; STP = 0x300000
RW = 80
vm = []
def VM(tag, s): vm.append(tag); E(s)
def wait_tag(tag):
    idx = max(i for i, t in enumerate(vm) if t == tag)
    E("s_waitcnt vmcnt(%d)" % min(len(vm) - 1 - idx, 63))
uid = [0]
def lab(p): uid[0] += 1; return "L%s%d" % (p, uid[0])
stamp_n = [0]
def stamp(wave=0):
    if not OPT['stamps']: return
    n = stamp_n[0]; stamp_n[0] += 1; l = lab("st")
    E("s_cmp_lg_u32 s7, %d" % wave); E("s_cbranch_scc1 " + l)
    E("s_memrealtime s[8:9]"); E("s_waitcnt lgkmcnt(0)")
    E("v_mov_b32 v6, s8"); E("s_lshl_b32 s9, s2, 8"); E("s_lshl_b32 s8, s3, 7"); E("s_add_u32 s9, s9, s8")
    E("s_add_u32 s9, s9, 0x%x" % (STP + n * 4)); E("v_mov_b32 v7, 0")
    E("s_mov_b64 exec, 1"); E("buffer_store_dword v6, v7, s[64:67], s9 offen"); E("s_mov_b64 exec, -1")
    Lb(l)
def bf16r(dst, src): E("v_cvt_pk_bf16_f32 %s, %s, %s" % (dst, src, src)); E("v_lshlrev_b32 %s, 16, %s" % (dst, dst))
def vr(a, n=4): return "v[%d:%d]" % (a, a + n - 1)
def ar(a, n=4): return "a[%d:%d]" % (a, a + n - 1)
def poll(loads, chk, sleep=0):
    l = lab("poll")
    E("s_mov_b32 s98, 0"); Lb(l)
    for s in loads: E(s)
    E("s_waitcnt vmcnt(0)"); chk()
    E("s_cbranch_vccz %sd" % l)
    if sleep: E("s_sleep %d" % sleep)
    E("s_add_u32 s98, s98, 1"); E("s_cmp_lt_u32 s98, 0x8000"); E("s_cbranch_scc1 " + l)
    Lb(l + "d")
def check(regs, t="v15"):
    r = list(regs)
    E("v_max3_u32 %s, v%d, v%d, v%d" % (t, r[0], r[1], r[2])); r = r[3:]
    while len(r) >= 2: E("v_max3_u32 %s, %s, v%d, v%d" % (t, t, r[0], r[1])); r = r[2:]
    if r: E("v_max_u32 %s, %s, v%d" % (t, t, r[0]))
    E("v_cmp_eq_u32 vcc, -1, %s" % t)
kpos = [0]
def kload(n):
    T, t = n // 8, n % 8
    E("s_add_u32 s10, s80, %d" % (T * 8192))
    VM('K', "buffer_load_dwordx4 %s, v4, s[40:43], s10 offen offset:%d%s" % (ar(4 * n), 64 * t, NT))
def kgroup(cnt, cond=True):
    l = lab("kg")
    if cond: E("s_cmp_lg_u32 s3, 0"); E("s_cbranch_scc1 " + l)
    for _ in range(cnt): kload(kpos[0]); kpos[0] += 1
    if cond: Lb(l)
def vload(u):
    T, r, hf = u // 8, (u // 2) % 4, u % 2
    E("s_add_u32 s10, s80, %d" % (T * 8192))
    io = r * 512 + hf * 256
    if u < NLDSV:
        E("s_add_u32 m0, s81, %d" % (u * 1024 + 4096 - io)); E("s_nop 0")
        VM('V%d' % u, "buffer_load_dwordx4 v5, s[44:47], s10 offen offset:%d%s lds" % (io, NT))
    else:
        VM('V%d' % u, "buffer_load_dwordx4 %s, v5, s[44:47], s10 offen offset:%d%s" % (vr(144 + 4 * (u - NLDSV)), io, NT))
vpos = [0]
def vgroup(cnt):
    cnt = min(cnt, 64 - vpos[0])
    if cnt <= 0: return
    l = lab("vg"); E("s_cmp_lg_u32 s3, 0"); E("s_cbranch_scc1 " + l)
    for _ in range(cnt): vload(vpos[0]); vpos[0] += 1
    Lb(l)
def lane(dst): E("v_and_b32 %s, 63, v0" % dst)
def xaddr():
    lane("v15"); E("v_lshlrev_b32 v1, 4, v15"); E("v_min_u32 v2, 47, v15"); E("v_lshlrev_b32 v2, 4, v2"); E("v_add_u32 v2, 1024, v2")
    E("s_mul_i32 s8, s7, 896"); E("s_add_u32 s8, s8, %d" % XRES)
    E("v_lshrrev_b32 v3, 1, v1"); E("v_add_u32 v3, s8, v3"); E("v_lshrrev_b32 v14, 1, v2"); E("v_add_u32 v14, s8, v14")
def xinit():
    xaddr()
    E("ds_read_b64 v[8:9], v3"); E("ds_read_b64 v[10:11], v14")
    E("v_lshlrev_b32 v6, 1, v1"); E("v_lshlrev_b32 v7, 1, v2")
def xtrig(off, P):
    if not OPT['trig']: return
    E("s_lshl_b32 s9, s7, 12"); E("s_add_u32 s9, s9, %s" % off); E("s_and_b32 s8, s2, 7"); E("s_mul_i32 s8, s8, 3"); E("s_bfe_u32 s10, s2, 0x20003"); E("s_add_u32 s8, s8, s10")
    E("s_lshl_b32 s8, s8, 7"); E("s_add_u32 s9, s9, s8"); E("v_mov_b32 v25, 0")
    poll(["buffer_load_dword v24, v25, s[64:67], s9 offen sc1"], lambda: (E("v_and_b32 v24, %d, v24" % P), E("v_cmp_eq_u32 vcc, 0, v24")))
def xfront(lst, sleep=0):
    loads = []
    for n, (off, P) in enumerate(lst):
        E("s_lshl_b32 s%d, s7, 12" % (9 + n)); E("s_add_u32 s%d, s%d, %s" % (9 + n, 9 + n, off))
        loads += ["buffer_load_dwordx4 %s, v%d, s[64:67], s%d offen offset:%d sc1" % (vr(32 + 16 * n + 4 * i), 6 + i // 2, 9 + n, 16 * (i & 1)) for i in range(4)]
    def chk():
        for n, (off, P) in enumerate(lst):
            o = 32 + 16 * n
            E("v_and_b32 v24, v%d, v%d" % (o, o + 2)); E("v_and_b32 v25, v%d, v%d" % (o + 4, o + 6)); E("v_and_b32 v26, v%d, v%d" % (o + 8, o + 10)); E("v_and_b32 v27, v%d, v%d" % (o + 12, o + 14))
            E("v_and_b32 v24, v24, v25"); E("v_and_b32 v26, v26, v27"); E("v_and_b32 v24, v24, v26"); E("v_and_b32 v%d, %d, v24" % (28 + n, P))
        if len(lst) == 2: E("v_min_u32 v28, v28, v29")
        E("v_cmp_eq_u32 vcc, 0, v28")
    poll(loads, chk, sleep)
    E("s_waitcnt lgkmcnt(0)")
    for n in range(len(lst)):
        o = 32 + 16 * n
        for q in range(8): E("v_lshrrev_b32 v%d, 31, v%d" % (16 + q, o + 2 * q)); E("v_cvt_f32_i32 v%d, v%d" % (o + 2 * q, o + 2 * q))
        for q in range(8): E("v_add_u32 v%d, v%d, v%d" % (16 + q, 16 + q, o + 1 + 2 * q))
        for q in range(8): E("v_cvt_f32_i32 v%d, v%d" % (16 + q, 16 + q))
        for q in range(8): E("v_fmac_f32 v%d, s97, v%d" % (16 + q, o + 2 * q))
        for q in range(4):
            E("v_cvt_pk_bf16_f32 v24, v%d, v%d" % (16 + 2 * q, 17 + 2 * q))
            E("v_lshlrev_b32 v25, 16, v24"); E("v_and_b32 v26, 0xffff0000, v24")
            E("v_lshlrev_b32 v27, 16, v%d" % (8 + q)); E("v_and_b32 v28, 0xffff0000, v%d" % (8 + q))
            E("v_add_f32 v25, v25, v27"); E("v_add_f32 v26, v26, v28")
            E("v_cvt_pk_bf16_f32 v%d, v25, v26" % (8 + q))
def xunpack():
    for q in range(4): E("v_lshlrev_b32 v%d, 16, v%d" % (16 + 2 * q, 8 + q)); E("v_and_b32 v%d, 0xffff0000, v%d" % (17 + 2 * q, 8 + q))
    E("ds_write_b64 v3, v[8:9]"); E("ds_write_b64 v14, v[10:11]")
def layernorm(act):
    E("v_add_f32 v24, v16, v17"); E("v_add_f32 v26, v18, v19"); E("v_mul_f32 v25, v16, v16"); E("v_add_f32 v24, v24, v26")
    for q in (17, 18, 19): E("v_fmac_f32 v25, v%d, v%d" % (q, q))
    E("s_mov_b32 exec_hi, 0xffff")
    for q in (20, 21, 22, 23): E("v_add_f32 v24, v24, v%d" % q); E("v_fmac_f32 v25, v%d, v%d" % (q, q))
    E("s_mov_b32 exec_hi, -1"); E("s_nop 1")
    for c in ["row_shr:1 row_mask:0xf bank_mask:0xf bound_ctrl:0", "row_shr:2 row_mask:0xf bank_mask:0xf bound_ctrl:0", "row_shr:4 row_mask:0xf bank_mask:0xf bound_ctrl:0",
              "row_shr:8 row_mask:0xf bank_mask:0xf bound_ctrl:0", "row_bcast:15 row_mask:0xa bank_mask:0xf", "row_bcast:31 row_mask:0xc bank_mask:0xf"]:
        E("v_add_f32_dpp v24, v24, v24 " + c); E("v_add_f32_dpp v25, v25, v25 " + c); E("s_nop 0")
    E("v_readlane_b32 s8, v24, 63"); E("v_readlane_b32 s9, v25, 63")
    E("s_mul_i32 s10, s7, %d" % PITCH); E("s_add_u32 s10, s10, %d" % act)
    E("v_mov_b32 v26, %s" % f32(1 / 448)); E("v_mul_f32 v24, s8, v26"); E("v_mul_f32 v25, s9, v26")
    E("v_fma_f32 v25, -v24, v24, v25"); E("v_max_f32 v25, 0, v25")
    E("v_cvt_pk_bf16_f32 v26, v24, v25"); E("v_lshlrev_b32 v24, 16, v26"); E("v_and_b32 v25, 0xffff0000, v26")
    E("v_add_f32 v25, %s, v25" % f32(1e-5)); bf16r("v25", "v25")
    E("v_sqrt_f32 v25, v25")
    for q in range(8): E("v_sub_f32 v%d, v%d, v24" % (16 + q, 16 + q))
    bf16r("v25", "v25"); E("v_rcp_f32 v25, v25")
    for q in range(4):
        E("v_cvt_pk_bf16_f32 v26, v%d, v%d" % (16 + 2 * q, 17 + 2 * q)); E("v_lshlrev_b32 v%d, 16, v26" % (16 + 2 * q)); E("v_and_b32 v%d, 0xffff0000, v26" % (17 + 2 * q))
    for q in range(8): E("v_mul_f32 v%d, v%d, v25" % (16 + q, 16 + q))
    for q in range(4): E("v_cvt_pk_bf16_f32 v%d, v%d, v%d" % (24 + q, 16 + 2 * q, 17 + 2 * q))
    E("v_lshrrev_b32 v1, 1, v1"); E("v_add_u32 v1, s10, v1"); E("v_lshrrev_b32 v2, 1, v2"); E("v_add_u32 v2, s10, v2")
    E("ds_write_b64 v1, v[24:25]"); E("ds_write_b64 v2, v[26:27]")
def bar(): E("s_waitcnt lgkmcnt(0)"); E("s_barrier")
def dense(T, act, RW=80):
    E("v_bfe_u32 v1, v0, 2, 2"); E("v_mul_u32_u24 v1, %d, v1" % PITCH); E("v_bfe_u32 v2, v0, 4, 2"); E("v_lshl_add_u32 v1, v2, 4, v1")
    for t in range(min(8, T)): E("ds_read_b128 %s, v1 offset:%d" % (vr(32 + 4 * t), act + 64 * t))
    issued = min(8, T)
    for t in range(T):
        E("s_waitcnt lgkmcnt(%d)" % (issued - 1 - t))
        acc = vr(24 + 4 * (t & 1))
        E("v_mfma_f32_16x16x32_bf16 %s, %s, %s, %s" % (acc, vr(32 + 4 * (t % 8)), vr(RW + 4 * t), "0" if t < 2 else acc))
        if issued < T: E("ds_read_b128 %s, v1 offset:%d" % (vr(32 + 4 * (issued % 8)), act + 64 * issued)); issued += 1
    E("v_bfe_u32 v1, v0, 4, 2"); E("v_and_b32 v2, 15, v0"); E("s_nop 6"); E("v_add_f32 v24, v24, v28")
def worker(wave, limit, body):
    l = lab("wk")
    E("s_cmp_lg_u32 s7, %d" % wave); E("s_cbranch_scc1 " + l)
    if limit: E("s_cmp_ge_u32 s13, %d" % limit); E("s_cbranch_scc1 " + l)
    body(); Lb(l)

hdr = open("cdna_kernels/%s.s.ref" % NAME).read().split("\n")
for l in hdr:
    if l.startswith("; @launch"): out.append("; @launch grid=(256,1,1) block=(256,1,1) lds=%d" % LDS_TOTAL)
    elif l.startswith(";"): out.append(l)
    else: break
out += ['.amdgcn_target "amdgcn-amd-amdhsa--gfx950"', ".text", ".globl %s_kernel" % NAME, ".p2align 8",
        ".type %s_kernel,@function" % NAME, "%s_kernel:" % NAME]
E("s_cmp_ge_u32 s2, 256"); E("s_cbranch_scc1 Lend")
E("s_load_dwordx16 s[16:31], s[0:1], 0"); E("s_load_dwordx8 s[32:39], s[0:1], 64")
E("v_lshrrev_b32 v1, 6, v0"); E("s_and_b32 s4, s2, 7"); E("v_readfirstlane_b32 s7, v1")
E("s_lshr_b32 s13, s2, 3"); E("s_and_b32 s5, s13, 3"); E("s_lshr_b32 s6, s2, 5"); E("s_mov_b32 s3, 0")
E("v_and_b32 v1, 15, v0"); E("v_bfe_u32 v2, v0, 4, 2")
E("v_lshlrev_b32 v4, 9, v1"); E("v_lshl_add_u32 v4, v2, 4, v4")
E("v_lshlrev_b32 v5, 11, v2"); E("v_lshl_add_u32 v5, v1, 4, v5")
E("s_lshl_b32 s8, s5, 3"); E("s_add_u32 s8, s8, s4"); E("s_lshl_b32 s9, s8, 21"); E("s_lshl_b32 s10, s6, 18"); E("s_add_u32 s9, s9, s10")
E("s_lshl_b32 s80, s7, 16"); E("s_mul_i32 s81, s7, %d" % (NLDSV * 1024)); E("s_add_u32 s81, s81, %d" % (VBASE - 4096))

E("s_lshl_b32 s84, s8, 13"); E("s_lshl_b32 s10, s6, 10"); E("s_add_u32 s84, s84, s10")
E("s_lshl_b32 s85, s8, 7"); E("s_lshl_b32 s10, s6, 3"); E("s_add_u32 s85, s85, s10"); E("s_add_u32 s85, s85, 0x%x" % MLB)
E("s_mov_b32 s86, 0")
E("s_mov_b32 s82, 0x%x" % QB0)
E("s_lshl_b32 s11, s7, 4")
E("s_lshl_b32 s83, s2, 7"); E("s_lshl_b32 s10, s7, 5"); E("s_add_u32 s83, s83, s10")
E("s_sub_u32 s87, s2, 64"); E("s_lshl_b32 s87, s87, 6"); E("s_add_u32 s87, s87, s11")
E("s_max_u32 s14, s13, 15"); E("s_sub_u32 s14, s14, 15"); E("s_min_u32 s14, s14, 13")
E("s_cmp_ge_u32 s14, 7"); E("s_cselect_b32 s88, 1, 0"); E("s_mul_i32 s10, s88, 7"); E("s_sub_u32 s14, s14, s10")
E("s_lshl_b32 s89, s14, 6"); E("s_add_u32 s89, s89, s11")
E("s_mov_b32 s12, 0"); E("s_cmp_ge_u32 s13, 8"); E("s_cselect_b32 s12, 1, s12"); E("s_cmp_ge_u32 s13, 15"); E("s_cselect_b32 s12, 2, s12")
E("s_cmp_ge_u32 s13, 29"); E("s_cselect_b32 s12, 3, s12")
E("s_mov_b32 s99, %s" % f32(0.0625 * 1.4426950408889634))
E("s_mov_b32 s97, %s" % f32(2.0 ** -32)); E("s_mov_b32 s96, %s" % f32(2.0 ** 32)); E("s_movk_i32 s95, 0xffe0")
E("s_waitcnt lgkmcnt(0)")
def srd(d, lo, hi, n, add=None):
    if add: E("s_add_u32 s%d, s%d, %s" % (d, lo, add)); E("s_addc_u32 s%d, s%d, 0" % (d + 1, hi))
    else: E("s_mov_b32 s%d, s%d" % (d, lo)); E("s_mov_b32 s%d, s%d" % (d + 1, hi))
    E("s_mov_b32 s%d, 0x%x" % (d + 2, n)); E("s_mov_b32 s%d, 0x00020000" % (d + 3))
srd(40, 18, 19, 262144, "s9"); srd(44, 20, 21, 262144, "s9")
srd(64, 38, 39, 0x400000); srd(68, 16, 17, 3584); srd(72, 34, 35, 3584); srd(76, 36, 37, 256)
stamp()
kgroup(OPT['k0'], False)
xaddr()
E("v_lshrrev_b32 v6, 1, v1"); E("v_lshrrev_b32 v7, 1, v2"); E("s_mul_i32 s8, s7, 896")
VM('x', "buffer_load_dwordx2 v[8:9], v6, s[68:71], s8 offen"); VM('x', "buffer_load_dwordx2 v[10:11], v7, s[68:71], s8 offen")
lane("v15"); E("v_lshrrev_b32 v12, 3, v15"); E("v_and_b32 v13, 7, v15")
for m in range(4): E("v_xor_b32 v%d, %d, v13" % (16 + m, 2 * m))
srd(48, 22, 23, 448 * 4096 * 2); E("s_lshl_b32 s92, s2, 7"); E("s_movk_i32 s93, 8192"); E("s_lshl_b32 s10, s7, 7")
E("s_cmp_eq_u32 s12, 0"); E("s_cbranch_scc1 Lwsel")
E("s_cmp_eq_u32 s12, 1"); E("s_cbranch_scc1 Lwg")
E("s_movk_i32 s93, 896"); E("s_and_b32 s10, s7, 1"); E("s_lshl_b32 s10, s10, 7")
E("s_mov_b32 s48, s24"); E("s_mov_b32 s49, s25"); E("s_mov_b32 s50, 0x%x" % (4096 * 448 * 2))
E("s_lshl_b32 s8, s4, 1"); E("s_add_u32 s8, s8, s88"); E("s_mul_i32 s92, s8, %d" % (256 * 896)); E("s_lshl_b32 s8, s14, 7"); E("s_add_u32 s92, s92, s8")
E("s_cmp_lt_u32 s7, 2"); E("s_cbranch_scc1 Lwsel")
E("s_mov_b32 s48, s32"); E("s_mov_b32 s49, s33"); E("s_mov_b32 s50, 0x%x" % (1792 * 448 * 2))
E("s_mul_i32 s92, s4, %d" % (224 * 896)); E("s_add_u32 s92, s92, s8")
Lb("Lwsel")
E("s_mov_b32 s52, s48"); E("s_mov_b32 s53, s49"); E("s_lshl_b32 s94, s93, 3")
E("s_branch Lwsel2")
Lb("Lwg")
E("s_mov_b32 s48, s28"); E("s_mov_b32 s49, s29"); E("s_mov_b32 s52, s30"); E("s_mov_b32 s53, s31"); E("s_mov_b32 s50, 0x%x" % (448 * 1792 * 2))
E("s_sub_u32 s92, s2, 64"); E("s_lshl_b32 s92, s92, 6"); E("s_movk_i32 s93, 3584"); E("s_mov_b32 s94, 0")
E("v_lshrrev_b32 v12, 2, v15"); E("v_and_b32 v13, 3, v15"); E("v_lshrrev_b32 v6, 5, v15"); E("v_xor_b32 v13, v6, v13")
for m in range(4): E("v_xor_b32 v%d, %d, v13" % (16 + m, 2 * (m >> 1)))
Lb("Lwsel2")
E("s_mov_b32 s54, s50"); E("s_mov_b32 s55, 0x00020000")
E("s_mul_i32 s10, s10, s93"); E("s_add_u32 s92, s92, s10"); E("s_add_u32 s94, s94, s92")
E("v_mul_lo_u32 v12, v12, s93"); E("s_lshl_b32 s93, s93, 4")
for m in range(4): E("v_lshl_add_u32 v%d, v%d, 4, v12" % (16 + m, 16 + m))
E("s_lshl_b32 s11, s7, 14"); E("s_add_u32 s11, s11, %d" % VBASE)
for f in range(8):
    E("s_add_u32 m0, s11, %d" % (2048 * f)); E("s_nop 0")
    VM('w', "buffer_load_dwordx4 v%d, s[48:51], s92 offen lds" % (16 + (2 * f) % 4))
    E("s_add_u32 m0, s11, %d" % (2048 * f + 1024)); E("s_nop 0")
    VM('w', "buffer_load_dwordx4 v%d, s[52:55], s94 offen lds" % (16 + (2 * f + 1) % 4))
    if f < 7: E("s_add_u32 s92, s92, s93"); E("s_add_u32 s94, s94, s93")
    if f == 3:
        E("s_and_b32 s8, s2, 0x78"); E("s_cmp_eq_u32 s8, 0x40"); E("s_cselect_b32 s8, 0, -1")
        for r in range(4): E("v_mov_b32 v%d, s8" % (24 + r))
        E("v_lshlrev_b32 v7, 4, v0"); E("s_lshl_b32 s8, s2, 12")
        VM('clr', "buffer_store_dwordx4 v[24:27], v7, s[64:67], s8 offen sc1")
        E("s_cmp_lg_u32 s12, 0"); E("s_cbranch_scc1 Lnoclrq")
        E("v_bfe_u32 v12, v0, 4, 2"); E("v_and_b32 v13, 15, v0"); E("v_lshlrev_b32 v12, 13, v12"); E("v_lshl_add_u32 v12, v13, 1, v12"); E("s_add_u32 s8, s82, s83")
        E("s_mov_b32 exec_lo, 0x55555555"); E("s_mov_b32 exec_hi, 0x55555555")
        E("buffer_store_dword v24, v12, s[64:67], s8 offen sc1"); E("s_mov_b64 exec, -1")
        Lb("Lnoclrq")
def qaddr(): E("v_lshlrev_b32 v1, 13, v1"); E("v_lshl_add_u32 v1, v2, 1, v1"); E("s_add_u32 s8, s82, s83"); E("s_mov_b32 exec_lo, 0x55555555"); E("s_mov_b32 exec_hi, 0x55555555")
kgroup(OPT['k1'], False)
stamp()
wait_tag('x')
xunpack()
E("s_cmp_lg_u32 s12, 0"); E("s_cbranch_scc1 Lnoln0")
layernorm(ACT0)
Lb("Lnoln0")
kgroup(OPT['k2'], False)
E("v_bfe_u32 v12, v0, 4, 2"); E("v_bfe_u32 v13, v0, 2, 2"); E("v_xor_b32 v7, s7, v12"); E("v_and_b32 v15, 3, v0")
E("v_lshl_add_u32 v6, v12, 3, v13"); E("v_lshlrev_b32 v6, 7, v6"); E("v_lshl_add_u32 v6, v7, 5, v6"); E("v_lshl_add_u32 v6, v15, 3, v6"); E("v_add_u32 v16, 512, v6")
E("s_cmp_lg_u32 s12, 1"); E("s_cbranch_scc1 Ltra")
E("v_and_b32 v6, 1, v12"); E("v_lshl_add_u32 v6, v6, 3, v13"); E("v_lshlrev_b32 v6, 6, v6"); E("v_lshrrev_b32 v12, 1, v12"); E("v_lshl_add_u32 v6, v12, 11, v6")
E("v_lshl_add_u32 v6, v7, 4, v6"); E("v_lshrrev_b32 v12, 1, v15"); E("v_lshl_add_u32 v6, v12, 10, v6"); E("v_and_b32 v12, 1, v15"); E("v_lshl_add_u32 v6, v12, 3, v6"); E("v_add_u32 v16, 256, v6")
Lb("Ltra")
E("v_add_u32 v6, %d, v6" % VBASE); E("v_add_u32 v16, %d, v16" % VBASE)
wait_tag('w')
E("s_barrier")
for f in range(16):
    E("ds_read_b64_tr_b16 %s, v6 offset:%d" % (vr(RW + 4 * f, 2), f * 4096)); E("ds_read_b64_tr_b16 %s, v16 offset:%d" % (vr(RW + 4 * f + 2, 2), f * 4096))
    if f % 4 == 3 and f < 15: E("s_waitcnt lgkmcnt(4)")
kgroup(OPT['k3'], False)
bar()
def sig():
    E("s_mov_b64 exec, 1"); E("s_and_b32 s9, s2, 15"); E("s_lshl_b32 s9, s9, 4"); E("v_mov_b32 v25, 1"); E("v_mov_b32 v26, 0")
    E("buffer_atomic_add v25, v26, s[76:79], s9 offen sc1"); E("s_mov_b64 exec, -1")
worker(0, 0, sig)
def qbody():
    dense(14, ACT0)
    E("s_nop 1"); E("v_mov_b32_dpp v25, v24 quad_perm:[1,0,3,2] row_mask:0xf bank_mask:0xf")
    E("v_cvt_pk_bf16_f32 v24, v24, v25"); E("v_min_u32 v24, -2, v24"); qaddr()
    E("buffer_store_dword v24, v1, s[64:67], s8 offen sc1"); E("s_mov_b64 exec, -1")
E("s_cmp_lg_u32 s12, 0"); E("s_cbranch_scc1 Lnoq0")
qbody()
Lb("Lnoq0")
stamp()
Lb("Lloop")

lane("v15"); E("v_lshlrev_b32 v1, 4, v15"); E("v_add_u32 v3, s81, v1")
E("v_bfe_u32 v2, v0, 3, 1"); E("v_lshlrev_b32 v2, 9, v2"); E("v_bfe_u32 v6, v0, 4, 2"); E("v_lshl_add_u32 v2, v6, 4, v2")
E("v_and_b32 v6, 1, v0"); E("v_lshlrev_b32 v6, 4, v6"); E("v_mov_b32 v7, 0xffff"); E("v_lshlrev_b32 v7, v6, v7"); E("v_bfe_u32 v6, v0, 1, 2")
for r in range(4): E("v_cmp_eq_u32 vcc, %d, v6" % r); E("s_nop 1"); E("v_cndmask_b32 v%d, 0, v7, vcc" % (8 + r))
E("s_lshl_b32 s8, s5, 13"); E("s_lshl_b32 s9, s4, 10"); E("s_add_u32 s90, s8, s9"); E("s_add_u32 s90, s90, s82")
qload = "buffer_load_dwordx4 v[16:19], v1, s[64:67], s90 offen sc1"
E("s_cmp_lg_u32 s3, 0"); E("s_cbranch_scc1 Lqpoll1")
E("v_and_b32 v6, 15, v0"); E("v_lshlrev_b32 v6, 4, v6")
pos = kpos[0]
while pos < 64 + OPT['vpre']:
    if pos < 64: kload(pos); kpos[0] += 1
    else: vload(pos - 64); vpos[0] += 1
    pos += 1
    if pos == OPT['p1']: VM('cnt', "buffer_load_dword v7, v6, s[76:79], 0 offen sc1")
    if pos == OPT['pq']:
        wait_tag('cnt')
        E("s_mov_b32 s98, 0"); Lb("Lcnt")
        E("v_cmp_gt_u32 vcc, 16, v7"); E("s_cbranch_vccz Lcntd")
        E("buffer_load_dword v7, v6, s[76:79], 0 offen sc1"); E("s_waitcnt vmcnt(0)")
        E("s_add_u32 s98, s98, 1"); E("s_cmp_lt_u32 s98, 0x8000"); E("s_cbranch_scc1 Lcnt")
        Lb("Lcntd")
        VM('q', qload)
wait_tag('q')
check(range(16, 20))
E("s_cbranch_vccz Lattn")
Lb("Lqpoll")
poll([qload], lambda: check(range(16, 20)))
Lb("Lattn")
E("ds_write_b128 v1, v[16:19] offset:%d" % QL)
E("s_waitcnt lgkmcnt(0)")
E("s_branch Lattn2")
Lb("Lqpoll1")
worker(0, 0, lambda: (poll([qload], lambda: check(range(16, 20))), E("ds_write_b128 v1, v[16:19] offset:%d" % QL)))
bar()
Lb("Lattn2")
stamp()
def round_tile(T, first):
    s = 32 + 4 * T
    return ["v_cvt_pk_bf16_f32 v6, v%d, v%d" % (s, s + 1), "v_cvt_pk_bf16_f32 v7, v%d, v%d" % (s + 2, s + 3),
            "v_lshlrev_b32 v%d, 16, v6" % s, "v_and_b32 v%d, 0xffff0000, v6" % (s + 1),
            "v_lshlrev_b32 v%d, 16, v7" % (s + 2), "v_and_b32 v%d, 0xffff0000, v7" % (s + 3),
            ("v_max_f32 v12, v%d, v%d" % (s, s + 1)) if first else ("v_max3_f32 v12, v12, v%d, v%d" % (s, s + 1)),
            "v_max3_f32 v12, v12, v%d, v%d" % (s + 2, s + 3)]
seq = [(G, t) for G in range(4) for t in range(8)]
for i in range(4): E("ds_read_b128 %s, v2 offset:%d" % (vr(64 + 4 * i), QL + 64 * seq[i][1]))
for i, (G, t) in enumerate(seq):
    if t == 0:
        vgroup(4)
        E("s_waitcnt vmcnt(%d)" % min(63, len(vm) - 1 - [j for j, x in enumerate(vm) if x == 'K'][16 * G + 15]))
        extra = (round_tile(2 * G - 2, G == 1) + round_tile(2 * G - 1, False)) if G else []
        extra = [None] * 4 + extra[:12] if extra else []
        tail = (round_tile(2 * G - 2, G == 1) + round_tile(2 * G - 1, False))[12:] if G else []
    E("s_waitcnt lgkmcnt(%d)" % min(3, len(seq) - 1 - i))
    for d in range(2):
        T = 2 * G + d
        E("v_mfma_f32_16x16x32_bf16 %s, %s, %s, %s" % (vr(32 + 4 * T), ar(32 * T + 4 * t), vr(64 + 4 * (i % 4)), "0" if t == 0 else vr(32 + 4 * T)))
        if extra and extra[2 * t + d]: E(extra[2 * t + d])
    if i + 4 < len(seq): E("ds_read_b128 %s, v2 offset:%d" % (vr(64 + 4 * (i % 4)), QL + 64 * seq[i + 4][1]))
    if t == 7:
        for s in tail: E(s)
lg = []
def ldsread(u): E("ds_read_b128 %s, v3 offset:%d" % (vr(64 + 4 * (u % 4)), 4096 + u * 1024)); lg.append(u)
wait_tag('V3')
for u in range(4): ldsread(u)
E("s_nop 3")
for s in round_tile(6, False): E(s)
for s in round_tile(7, False): E(s)
E("v_mov_b32 v6, v12"); E("s_nop 1"); E("v_permlane16_swap_b32 v12, v6"); E("s_nop 1"); E("v_max_f32 v12, v12, v6")
E("v_mov_b32 v6, v12"); E("s_nop 1"); E("v_permlane32_swap_b32 v12, v6"); E("s_nop 1"); E("v_max_f32 v12, v12, v6")
E("v_mul_f32 v14, s99, v12"); E("v_mov_b32 v13, 0")
def ptile(T):
    s = 32 + 4 * T
    return ["v_fma_f32 v%d, v%d, s99, -v14" % (s + r, s + r) for r in range(4)] + ["v_exp_f32 v%d, v%d" % (s + r, s + r) for r in range(4)] + \
           ["v_add_f32 v13, v13, v%d" % (s + r) for r in range(4)] + ["v_cvt_pk_bf16_f32 v%d, v%d, v%d" % (s + r, s + r, s + r) for r in range(4)]
def bmk(k): return ["v_and_b32 v%d, v%d, v%d" % (16 + 4 * (k & 1) + r, 32 + k, 8 + r) for r in range(4)]
for s in ptile(0): E(s)
for s in bmk(0): E(s)
for k in range(32):
    pt = ptile(k // 4 + 1)[4 * (k % 4): 4 * (k % 4) + 4] if k < 28 else []
    nb = bmk(k + 1) if k < 31 else []
    if k % 4 == 3 and k < 28: first, second = pt, nb
    else: first, second = pt, nb
    b = 16 + 4 * (k & 1)
    vgroup(2)
    for hf in range(2):
        u = 2 * k + hf
        if u < NLDSV:
            E("s_waitcnt lgkmcnt(%d)" % (len(lg) - 1 - lg.index(u))); A = vr(64 + 4 * (u % 4))
        else:
            wait_tag('V%d' % u); A = vr(144 + 4 * (u - NLDSV))
        if hf == 0: E("s_nop 0")
        acc = vr(24 + 4 * hf)
        E("v_mfma_f32_16x16x32_bf16 %s, %s, %s, %s" % (acc, A, vr(b), "0" if k == 0 else acc))
        if u + 4 < NLDSV:
            if u % 2 == 0: wait_tag('V%d' % (u + 5))
            ldsread(u + 4)
        for s in (first if hf == 0 else second): E(s)
E("v_mov_b32 v6, v13"); E("s_nop 1"); E("v_permlane16_swap_b32 v13, v6"); E("s_nop 1"); E("v_add_f32 v13, v13, v6")
E("v_mov_b32 v6, v13"); E("s_nop 1"); E("v_permlane32_swap_b32 v13, v6"); E("s_nop 1"); E("v_add_f32 v13, v13, v6")
E("v_bfe_u32 v6, v0, 3, 1"); E("v_lshlrev_b32 v7, 10, v6"); E("v_bfe_u32 v1, v0, 4, 2"); E("v_lshl_add_u32 v7, v1, 5, v7")
E("v_and_b32 v1, 7, v0"); E("v_lshl_add_u32 v7, v1, 2, v7"); E("s_lshl_b32 s8, s7, 11"); E("v_add_u32 v7, s8, v7")
E("s_lshl_b32 s8, s7, 4"); E("v_lshl_add_u32 v6, v6, 3, s8")
E("s_barrier")
for hf in range(2):
    for r in range(4): E("ds_write_b32 v7, v%d offset:%d" % (24 + 4 * hf + r, OM + (r * 2 + hf) * 128))
E("s_mov_b64 exec, 0x101"); E("ds_write_b64 v6, v[12:13] offset:%d" % ML); E("s_mov_b64 exec, -1")
E("v_lshlrev_b32 v1, 3, v0"); E("v_lshrrev_b32 v2, 7, v0"); E("v_lshlrev_b32 v3, 3, v2")
E("v_lshlrev_b32 v6, 9, v2"); E("v_bfe_u32 v7, v0, 4, 1"); E("v_lshl_add_u32 v6, v7, 8, v6"); E("v_bfe_u32 v7, v0, 2, 2"); E("v_lshl_add_u32 v6, v7, 6, v6")
E("v_bfe_u32 v7, v0, 5, 2"); E("v_lshl_add_u32 v6, v7, 4, v6"); E("v_and_b32 v7, 3, v0"); E("v_lshl_add_u32 v6, v7, 2, v6")
E("v_lshlrev_b32 v7, 6, v2"); E("s_add_u32 s8, s84, s86"); E("s_add_u32 s9, s85, s86")
bar()
for w in range(4): E("ds_read_b64 %s, v3 offset:%d" % (vr(40 + 2 * w, 2), ML + 16 * w))
for w in range(4): E("ds_read_b64 %s, v1 offset:%d" % (vr(32 + 2 * w, 2), OM + 2048 * w))
E("s_waitcnt lgkmcnt(4)")
E("v_max_f32 v26, v40, v42"); E("v_max3_f32 v26, v26, v44, v46")
for w in range(4): E("v_sub_f32 v%d, v%d, v26" % (40 + 2 * w, 40 + 2 * w)); E("v_mul_f32 v%d, s99, v%d" % (40 + 2 * w, 40 + 2 * w))
for w in range(4): E("v_exp_f32 v%d, v%d" % (40 + 2 * w, 40 + 2 * w))
E("s_waitcnt lgkmcnt(0)")
E("v_mul_f32 v24, v40, v32"); E("v_mul_f32 v25, v40, v33"); E("v_mul_f32 v27, v40, v41")
for w in range(1, 4):
    E("v_fmac_f32 v24, v%d, v%d" % (40 + 2 * w, 32 + 2 * w)); E("v_fmac_f32 v25, v%d, v%d" % (40 + 2 * w, 33 + 2 * w)); E("v_fmac_f32 v27, v%d, v%d" % (40 + 2 * w, 41 + 2 * w))
E("v_cvt_pk_bf16_f32 v24, v24, v25"); E("v_min_u32 v24, -2, v24"); E("v_min_u32 v26, -2, v26"); E("v_min_u32 v27, -2, v27")
E("buffer_store_dword v24, v6, s[64:67], s8 offen sc1")
E("s_and_b32 s10, s7, 1"); E("s_cmp_lg_u32 s10, 0"); E("s_cbranch_scc1 Lnoml")
E("s_mov_b64 exec, 1"); E("buffer_store_dwordx2 v[26:27], v7, s[64:67], s9 offen sc1"); E("s_mov_b64 exec, -1")
Lb("Lnoml")
stamp()

E("s_cmp_eq_u32 s12, 1"); E("s_cbranch_scc1 Lg")
E("s_cmp_eq_u32 s12, 0"); E("s_cbranch_scc1 Lq")
E("s_cmp_eq_u32 s12, 3"); E("s_cbranch_scc1 Lf")
lane("v15"); E("v_lshlrev_b32 v1, 3, v15"); E("v_and_b32 v2, 56, v1")
E("s_lshl_b32 s8, s7, 3"); E("s_add_u32 s8, s8, s4"); E("s_lshl_b32 s9, s8, 13"); E("s_add_u32 s9, s9, s86"); E("s_lshl_b32 s10, s88, 9"); E("s_add_u32 s9, s9, s10"); E("s_add_u32 s10, s9, 4096")
E("s_lshl_b32 s11, s8, 7"); E("s_add_u32 s11, s11, s86"); E("s_add_u32 s11, s11, 0x%x" % MLB); E("s_lshl_b32 s8, s88, 6"); E("s_add_u32 s11, s11, s8")
loads = ["buffer_load_dwordx2 v[32:33], v2, s[64:67], s11 offen sc1"]
loads += ["buffer_load_dwordx2 %s, v1, s[64:67], %s offen offset:%d sc1" % (vr(16 + 2 * s, 2), "s9" if s < 4 else "s10", (s % 4) * 1024) for s in range(8)]
poll(loads, lambda: check(range(16, 34)))
stamp()
D3 = ["quad_perm:[1,0,3,2] row_mask:0xf bank_mask:0xf", "quad_perm:[2,3,0,1] row_mask:0xf bank_mask:0xf", "row_half_mirror row_mask:0xf bank_mask:0xf"]
def unp(s):
    for q in range(2): E("v_lshlrev_b32 v%d, 16, v%d" % (40 + 4 * s + 2 * q, 16 + 2 * s + q)); E("v_and_b32 v%d, 0xffff0000, v%d" % (41 + 4 * s + 2 * q, 16 + 2 * s + q))
E("v_max_f32_dpp v6, v32, v32 " + D3[0]); unp(0)
E("v_max_f32_dpp v6, v6, v6 " + D3[1]); unp(1)
E("v_max_f32_dpp v6, v6, v6 " + D3[2]); unp(2)
E("v_sub_f32 v6, v32, v6"); E("v_mul_f32 v6, s99, v6"); E("v_exp_f32 v6, v6"); unp(3)
E("v_mul_f32 v7, v6, v33"); unp(4)
E("v_add_f32_dpp v7, v7, v7 " + D3[0]); unp(5)
E("v_add_f32_dpp v7, v7, v7 " + D3[1]); unp(6)
E("v_add_f32_dpp v7, v7, v7 " + D3[2]); unp(7)
for s in range(8): E("v_readlane_b32 s%d, v6, %d" % (16 + s, s))
E("v_rcp_f32 v7, v7")
for s in range(8):
    for q in range(4):
        if s == 0: E("v_mul_f32 v%d, s16, v%d" % (72 + q, 40 + q))
        else: E("v_fmac_f32 v%d, s%d, v%d" % (72 + q, 16 + s, 40 + 4 * s + q))
for q in range(4): E("v_mul_f32 v%d, v%d, v7" % (72 + q, 72 + q))
for q in range(2): E("v_cvt_pk_bf16_f32 v%d, v%d, v%d" % (16 + q, 72 + 2 * q, 73 + 2 * q))
E("s_mul_i32 s8, s7, %d" % PITCH); E("v_add_u32 v1, s8, v1")
E("ds_write_b64 v1, v[16:17] offset:%d" % ACT1)
bar()
def xatomic(base):
    E("v_rndne_f32 v25, v24"); E("v_sub_f32 v26, v24, v25"); E("v_cvt_i32_f32 v25, v25"); E("v_mul_f32 v26, s96, v26"); E("v_cvt_i32_f32 v24, v26")
    E("v_lshlrev_b32 v1, 12, v1"); E("v_lshl_add_u32 v1, v2, 3, v1")
    E("v_ashrrev_i32 v26, 31, v24"); E("v_add_u32 v25, v25, v26"); E("v_and_or_b32 v24, v24, s95, 1")
    E("s_lshl_b32 s8, s89, 3"); E("s_add_u32 s8, s8, s86"); E("s_add_u32 s8, s8, 0x%x" % base)
    E("buffer_atomic_add_x2 v[24:25], v1, s[64:67], s8 offen sc1")
dense(8, ACT1); xatomic(XS1)
stamp()
E("s_cmp_lg_u32 s88, 0"); E("s_cbranch_scc1 Lnext")
lane("v15"); E("v_min_u32 v1, 27, v15"); E("v_lshlrev_b32 v1, 4, v1")
E("s_lshl_b32 s8, s7, 12"); E("s_mul_i32 s9, s4, 448"); E("s_add_u32 s9, s9, s8"); E("s_add_u32 s9, s9, s86"); E("s_add_u32 s9, s9, 0x%x" % AB)
poll(["buffer_load_dwordx4 v[16:19], v1, s[64:67], s9 offen sc1"], lambda: check(range(16, 20)))
stamp()
E("s_mul_i32 s8, s7, %d" % PITCH); E("v_add_u32 v1, s8, v1")
E("ds_write_b128 v1, v[16:19] offset:%d" % ACT0)
bar()
dense(7, ACT0, RW + 32); xatomic(XS2)
stamp()
E("s_branch Lnext")
Lb("Lg")
xinit()
E("s_cmp_eq_u32 s3, 0"); E("s_cbranch_scc1 Lg1")
xfront([("0x%x" % XS2, 8)])
Lb("Lg1")
E("s_add_u32 s91, s86, 0x%x" % XS1)
xtrig("s91", 16)
xfront([("s91", 16)])
stamp()
xunpack(); layernorm(ACT0); bar()
dense(14, ACT0)
bf16r("v24", "v24"); E("s_nop 1"); E("v_mov_b32_dpp v28, v24 row_ror:8 row_mask:0xf bank_mask:0xf")
k2 = -2 * 0.7978845608028654 * 1.4426950408889634
E("v_mul_f32 v26, v24, v24"); E("v_mov_b32 v25, %s" % f32(k2)); E("v_fmac_f32 v25, %s, v26" % f32(k2 * 0.044715))
E("v_mul_f32 v25, v25, v24"); E("v_exp_f32 v25, v25"); E("s_nop 0"); E("v_add_f32 v25, 1.0, v25"); E("v_rcp_f32 v25, v25"); E("s_nop 0")
E("v_mul_f32 v25, v25, v24"); bf16r("v25", "v25"); E("v_mul_f32 v25, v25, v28")
E("v_lshlrev_b32 v1, 12, v1"); E("v_lshl_add_u32 v1, v2, 1, v1")
E("v_mov_b32_dpp v26, v25 quad_perm:[1,0,3,2] row_mask:0xf bank_mask:0xf")
E("v_cvt_pk_bf16_f32 v24, v25, v26"); E("v_min_u32 v24, -2, v24")
E("s_add_u32 s8, s86, s87"); E("s_add_u32 s8, s8, 0x%x" % AB)
E("s_mov_b32 exec_lo, 0x00550055"); E("s_mov_b32 exec_hi, 0x00550055")
E("buffer_store_dword v24, v1, s[64:67], s8 offen sc1"); E("s_mov_b64 exec, -1")
stamp()
E("s_branch Lnext")
Lb("Lq")
E("s_cmp_lg_u32 s3, 0"); E("s_cbranch_scc1 Lend")
xinit()
xtrig("0x%x" % XS2, 8)
xfront([("0x%x" % XS1, 16), ("0x%x" % XS2, 8)])
stamp()
xunpack(); layernorm(ACT0); bar()
E("s_mov_b32 s82, 0x%x" % QB1)
qbody()
stamp()
E("s_branch Lnext")
Lb("Lf")
E("s_cmp_eq_u32 s3, 0"); E("s_cbranch_scc1 Lnext")
E("s_cmp_lg_u32 s2, 255"); E("s_cbranch_scc1 Lend")
xinit()
xfront([("0x%x" % XS1, 16), ("0x%x" % XS2, 8)])
xfront([("0x%x" % (XS1 + LSTEP), 16)], OPT['lazy'])
xfront([("0x%x" % (XS2 + LSTEP), 8)])
E("v_lshrrev_b32 v1, 1, v1"); E("v_lshrrev_b32 v2, 1, v2"); E("s_mul_i32 s8, s7, 896")
E("buffer_store_dwordx2 v[8:9], v1, s[72:75], s8 offen")
E("s_mov_b32 exec_hi, 0xffff")
E("buffer_store_dwordx2 v[10:11], v2, s[72:75], s8 offen")
stamp()
E("s_branch Lend")
Lb("Lnext")
E("s_cmp_lg_u32 s3, 0"); E("s_cbranch_scc1 Lend")
E("s_mov_b32 s3, 1"); E("s_mov_b32 s86, 0x%x" % LSTEP); E("s_mov_b32 s82, 0x%x" % QB1)
E("s_branch Lloop")

Lb("Lend")
E("s_endpgm")
out += ['.section .rodata,"a"', ".p2align 6", ".amdhsa_kernel %s_kernel" % NAME,
        "  .amdhsa_next_free_vgpr 512", "  .amdhsa_next_free_sgpr 102", "  .amdhsa_accum_offset 256",
        "  .amdhsa_group_segment_fixed_size 0", "  .amdhsa_kernarg_size 96", "  .amdhsa_user_sgpr_count 2",
        "  .amdhsa_user_sgpr_kernarg_segment_ptr 1", "  .amdhsa_system_sgpr_workgroup_id_x 1", ".end_amdhsa_kernel"]
open(sys.argv[1], "w").write("\n".join(out) + "\n")
```

```python
import sys, struct
NAME = "interleave_layers__gqa_block_cached__geglu_ffn__decode"
OPT = dict(nt=1, stamps=0, p1=40, pq=60, vpre=16, lazy=8, k0=0, k1=6, k2=6, k3=4, trig=1, wnt=1, dbg=0)
for a in sys.argv[2:]:
    k, v = a.split('='); OPT[k] = int(v)
out = []
def E(s): out.append("    " + s)
def Lb(s): out.append(s + ":")
def f32(x): return "0x%08x" % struct.unpack('<I', struct.pack('<f', x))[0]
NT = ["", " nt", " sc1 nt", " sc0 sc1 nt", " sc0 nt", " sc1"][OPT['nt']]; WNT = ["", " nt"][OPT['wnt']]
NLDSV = 36; VBASE = 16384; LDS_TOTAL = 163840
ACT0 = 0; OM = 0; ACT1 = 8192; QL = 8192; XRES = 12544; ML = 16128; PITCH = 1088
OB = 0; XS1 = 0x40000; XS2 = 0x44000; AB = 0x58000; MLB = 0x5C000; QB1 = 0xE0000; QB0 = 0x100000; LSTEP = 0x80000; STP = 0x300000
RW = 80
vm = []
def VM(tag, s): vm.append(tag); E(s)
def wait_tag(tag):
    idx = max(i for i, t in enumerate(vm) if t == tag)
    E("s_waitcnt vmcnt(%d)" % min(len(vm) - 1 - idx, 63))
uid = [0]
def lab(p): uid[0] += 1; return "L%s%d" % (p, uid[0])
stamp_n = [0]
def stamp(wave=0):
    if not OPT['stamps']: return
    n = stamp_n[0]; stamp_n[0] += 1; l = lab("st")
    E("s_cmp_lg_u32 s7, %d" % wave); E("s_cbranch_scc1 " + l)
    E("s_memrealtime s[8:9]"); E("s_waitcnt lgkmcnt(0)")
    E("v_mov_b32 v6, s8"); E("s_lshl_b32 s9, s2, 8"); E("s_lshl_b32 s8, s3, 7"); E("s_add_u32 s9, s9, s8")
    E("s_add_u32 s9, s9, 0x%x" % (STP + n * 4)); E("v_mov_b32 v7, 0")
    E("s_mov_b64 exec, 1"); E("buffer_store_dword v6, v7, s[64:67], s9 offen"); E("s_mov_b64 exec, -1")
    Lb(l)
def bf16r(dst, src): E("v_cvt_pk_bf16_f32 %s, %s, %s" % (dst, src, src)); E("v_lshlrev_b32 %s, 16, %s" % (dst, dst))
def vr(a, n=4): return "v[%d:%d]" % (a, a + n - 1)
def ar(a, n=4): return "a[%d:%d]" % (a, a + n - 1)
def poll(loads, chk, sleep=0):
    l = lab("poll")
    E("s_mov_b32 s98, 0"); Lb(l)
    for s in loads: E(s)
    E("s_waitcnt vmcnt(0)"); chk()
    E("s_cbranch_vccz %sd" % l)
    if sleep: E("s_sleep %d" % sleep)
    E("s_add_u32 s98, s98, 1"); E("s_cmp_lt_u32 s98, 0x8000"); E("s_cbranch_scc1 " + l)
    Lb(l + "d")
def check(regs, t="v15"):
    r = list(regs)
    E("v_max3_u32 %s, v%d, v%d, v%d" % (t, r[0], r[1], r[2])); r = r[3:]
    while len(r) >= 2: E("v_max3_u32 %s, %s, v%d, v%d" % (t, t, r[0], r[1])); r = r[2:]
    if r: E("v_max_u32 %s, %s, v%d" % (t, t, r[0]))
    E("v_cmp_eq_u32 vcc, -1, %s" % t)
kpos = [0]
def kload(n):
    T, t = n // 8, n % 8
    E("s_add_u32 s10, s80, %d" % (T * 8192))
    VM('K', "buffer_load_dwordx4 %s, v4, s[40:43], s10 offen offset:%d%s" % (ar(4 * n), 64 * t, NT))
def kgroup(cnt, cond=True):
    l = lab("kg")
    if cond: E("s_cmp_lg_u32 s3, 0"); E("s_cbranch_scc1 " + l)
    for _ in range(cnt): kload(kpos[0]); kpos[0] += 1
    if cond: Lb(l)
def vload(u):
    T, r, hf = u // 8, (u // 2) % 4, u % 2
    E("s_add_u32 s10, s80, %d" % (T * 8192))
    io = r * 512 + hf * 256
    if u < NLDSV:
        E("s_add_u32 m0, s81, %d" % (u * 1024 + 4096 - io)); E("s_nop 0")
        VM('V%d' % u, "buffer_load_dwordx4 v5, s[44:47], s10 offen offset:%d%s lds" % (io, NT))
    else:
        VM('V%d' % u, "buffer_load_dwordx4 %s, v5, s[44:47], s10 offen offset:%d%s" % (vr(144 + 4 * (u - NLDSV)), io, NT))
vpos = [0]
def vgroup(cnt):
    cnt = min(cnt, 64 - vpos[0])
    if cnt <= 0: return
    l = lab("vg"); E("s_cmp_lg_u32 s3, 0"); E("s_cbranch_scc1 " + l)
    for _ in range(cnt): vload(vpos[0]); vpos[0] += 1
    Lb(l)
def lane(dst): E("v_and_b32 %s, 63, v0" % dst)
def xaddr():
    lane("v15"); E("v_lshlrev_b32 v1, 4, v15"); E("v_min_u32 v2, 47, v15"); E("v_lshlrev_b32 v2, 4, v2"); E("v_add_u32 v2, 1024, v2")
    E("s_mul_i32 s8, s7, 896"); E("s_add_u32 s8, s8, %d" % XRES)
    E("v_lshrrev_b32 v3, 1, v1"); E("v_add_u32 v3, s8, v3"); E("v_lshrrev_b32 v14, 1, v2"); E("v_add_u32 v14, s8, v14")
def xinit():
    xaddr()
    E("ds_read_b64 v[8:9], v3"); E("ds_read_b64 v[10:11], v14")
    E("v_lshlrev_b32 v6, 1, v1"); E("v_lshlrev_b32 v7, 1, v2")
def xtrig(off, P):
    if not OPT['trig']: return
    E("s_lshl_b32 s9, s7, 12"); E("s_add_u32 s9, s9, %s" % off); E("s_and_b32 s8, s2, 7"); E("s_mul_i32 s8, s8, 3"); E("s_bfe_u32 s10, s2, 0x20003"); E("s_add_u32 s8, s8, s10")
    E("s_lshl_b32 s8, s8, 7"); E("s_add_u32 s9, s9, s8"); E("v_mov_b32 v25, 0")
    poll(["buffer_load_dword v24, v25, s[64:67], s9 offen sc1"], lambda: (E("v_and_b32 v24, %d, v24" % P), E("v_cmp_eq_u32 vcc, 0, v24")))
def xfront(lst, sleep=0):
    loads = []
    for n, (off, P) in enumerate(lst):
        E("s_lshl_b32 s%d, s7, 12" % (9 + n)); E("s_add_u32 s%d, s%d, %s" % (9 + n, 9 + n, off))
        loads += ["buffer_load_dwordx4 %s, v%d, s[64:67], s%d offen offset:%d sc1" % (vr(32 + 16 * n + 4 * i), 6 + i // 2, 9 + n, 16 * (i & 1)) for i in range(4)]
    def chk():
        for n, (off, P) in enumerate(lst):
            o = 32 + 16 * n
            E("v_and_b32 v24, v%d, v%d" % (o, o + 2)); E("v_and_b32 v25, v%d, v%d" % (o + 4, o + 6)); E("v_and_b32 v26, v%d, v%d" % (o + 8, o + 10)); E("v_and_b32 v27, v%d, v%d" % (o + 12, o + 14))
            E("v_and_b32 v24, v24, v25"); E("v_and_b32 v26, v26, v27"); E("v_and_b32 v24, v24, v26"); E("v_and_b32 v%d, %d, v24" % (28 + n, P))
        if len(lst) == 2: E("v_min_u32 v28, v28, v29")
        E("v_cmp_eq_u32 vcc, 0, v28")
    poll(loads, chk, sleep)
    E("s_waitcnt lgkmcnt(0)")
    for n in range(len(lst)):
        o = 32 + 16 * n
        for q in range(8): E("v_lshrrev_b32 v%d, 31, v%d" % (16 + q, o + 2 * q)); E("v_cvt_f32_i32 v%d, v%d" % (o + 2 * q, o + 2 * q))
        for q in range(8): E("v_add_u32 v%d, v%d, v%d" % (16 + q, 16 + q, o + 1 + 2 * q))
        for q in range(8): E("v_cvt_f32_i32 v%d, v%d" % (16 + q, 16 + q))
        for q in range(8): E("v_fmac_f32 v%d, s97, v%d" % (16 + q, o + 2 * q))
        for q in range(4):
            E("v_cvt_pk_bf16_f32 v24, v%d, v%d" % (16 + 2 * q, 17 + 2 * q))
            E("v_lshlrev_b32 v25, 16, v24"); E("v_and_b32 v26, 0xffff0000, v24")
            E("v_lshlrev_b32 v27, 16, v%d" % (8 + q)); E("v_and_b32 v28, 0xffff0000, v%d" % (8 + q))
            E("v_add_f32 v25, v25, v27"); E("v_add_f32 v26, v26, v28")
            E("v_cvt_pk_bf16_f32 v%d, v25, v26" % (8 + q))
def xunpack():
    for q in range(4): E("v_lshlrev_b32 v%d, 16, v%d" % (16 + 2 * q, 8 + q)); E("v_and_b32 v%d, 0xffff0000, v%d" % (17 + 2 * q, 8 + q))
    E("ds_write_b64 v3, v[8:9]"); E("ds_write_b64 v14, v[10:11]")
def layernorm(act):
    E("v_add_f32 v24, v16, v17"); E("v_add_f32 v26, v18, v19"); E("v_mul_f32 v25, v16, v16"); E("v_add_f32 v24, v24, v26")
    for q in (17, 18, 19): E("v_fmac_f32 v25, v%d, v%d" % (q, q))
    E("s_mov_b32 exec_hi, 0xffff")
    for q in (20, 21, 22, 23): E("v_add_f32 v24, v24, v%d" % q); E("v_fmac_f32 v25, v%d, v%d" % (q, q))
    E("s_mov_b32 exec_hi, -1"); E("s_nop 1")
    for c in ["row_shr:1 row_mask:0xf bank_mask:0xf bound_ctrl:0", "row_shr:2 row_mask:0xf bank_mask:0xf bound_ctrl:0", "row_shr:4 row_mask:0xf bank_mask:0xf bound_ctrl:0",
              "row_shr:8 row_mask:0xf bank_mask:0xf bound_ctrl:0", "row_bcast:15 row_mask:0xa bank_mask:0xf", "row_bcast:31 row_mask:0xc bank_mask:0xf"]:
        E("v_add_f32_dpp v24, v24, v24 " + c); E("v_add_f32_dpp v25, v25, v25 " + c); E("s_nop 0")
    E("v_readlane_b32 s8, v24, 63"); E("v_readlane_b32 s9, v25, 63")
    E("s_mul_i32 s10, s7, %d" % PITCH); E("s_add_u32 s10, s10, %d" % act)
    E("v_mov_b32 v26, %s" % f32(1 / 448)); E("v_mul_f32 v24, s8, v26"); E("v_mul_f32 v25, s9, v26")
    E("v_fma_f32 v25, -v24, v24, v25"); E("v_max_f32 v25, 0, v25")
    E("v_cvt_pk_bf16_f32 v26, v24, v25"); E("v_lshlrev_b32 v24, 16, v26"); E("v_and_b32 v25, 0xffff0000, v26")
    E("v_add_f32 v25, %s, v25" % f32(1e-5)); bf16r("v25", "v25")
    E("v_sqrt_f32 v25, v25")
    for q in range(8): E("v_sub_f32 v%d, v%d, v24" % (16 + q, 16 + q))
    bf16r("v25", "v25"); E("v_rcp_f32 v25, v25")
    for q in range(4):
        E("v_cvt_pk_bf16_f32 v26, v%d, v%d" % (16 + 2 * q, 17 + 2 * q)); E("v_lshlrev_b32 v%d, 16, v26" % (16 + 2 * q)); E("v_and_b32 v%d, 0xffff0000, v26" % (17 + 2 * q))
    for q in range(8): E("v_mul_f32 v%d, v%d, v25" % (16 + q, 16 + q))
    for q in range(4): E("v_cvt_pk_bf16_f32 v%d, v%d, v%d" % (24 + q, 16 + 2 * q, 17 + 2 * q))
    E("v_lshrrev_b32 v1, 1, v1"); E("v_add_u32 v1, s10, v1"); E("v_lshrrev_b32 v2, 1, v2"); E("v_add_u32 v2, s10, v2")
    E("ds_write_b64 v1, v[24:25]"); E("ds_write_b64 v2, v[26:27]")
def bar(): E("s_waitcnt lgkmcnt(0)"); E("s_barrier")
def dense(T, act, RW=80):
    E("v_bfe_u32 v1, v0, 2, 2"); E("v_mul_u32_u24 v1, %d, v1" % PITCH); E("v_bfe_u32 v2, v0, 4, 2"); E("v_lshl_add_u32 v1, v2, 4, v1")
    for t in range(min(8, T)): E("ds_read_b128 %s, v1 offset:%d" % (vr(32 + 4 * t), act + 64 * t))
    issued = min(8, T)
    for t in range(T):
        E("s_waitcnt lgkmcnt(%d)" % (issued - 1 - t))
        acc = vr(24 + 4 * (t & 1))
        E("v_mfma_f32_16x16x32_bf16 %s, %s, %s, %s" % (acc, vr(32 + 4 * (t % 8)), vr(RW + 4 * t), "0" if t < 2 else acc))
        if issued < T: E("ds_read_b128 %s, v1 offset:%d" % (vr(32 + 4 * (issued % 8)), act + 64 * issued)); issued += 1
    E("v_bfe_u32 v1, v0, 4, 2"); E("v_and_b32 v2, 15, v0"); E("s_nop 6"); E("v_add_f32 v24, v24, v28")
def worker(wave, limit, body):
    l = lab("wk")
    E("s_cmp_lg_u32 s7, %d" % wave); E("s_cbranch_scc1 " + l)
    if limit: E("s_cmp_ge_u32 s13, %d" % limit); E("s_cbranch_scc1 " + l)
    body(); Lb(l)

hdr = open("cdna_kernels/%s.s.ref" % NAME).read().split("\n")
for l in hdr:
    if l.startswith("; @launch"): out.append("; @launch grid=(256,1,1) block=(256,1,1) lds=%d" % LDS_TOTAL)
    elif l.startswith(";"): out.append(l)
    else: break
out += ['.amdgcn_target "amdgcn-amd-amdhsa--gfx950"', ".text", ".globl %s_kernel" % NAME, ".p2align 8",
        ".type %s_kernel,@function" % NAME, "%s_kernel:" % NAME]
E("s_cmp_ge_u32 s2, 256"); E("s_cbranch_scc1 Lend")
if OPT['dbg']: E("s_memrealtime s[100:101]")
def dbgt(n):
    if not OPT['dbg']: return
    l = lab("dbg")
    E("s_cmp_lg_u32 s7, 0"); E("s_cbranch_scc1 " + l)
    E("s_memrealtime s[8:9]"); E("s_waitcnt lgkmcnt(0)"); E("s_sub_u32 s8, s8, s100"); E("v_mov_b32 v6, s8"); E("v_mov_b32 v7, 0")
    E("s_mov_b64 exec, 1"); E("buffer_atomic_umax v6, v7, s[76:79], 0 offen offset:%d sc1" % (4 * n)); E("s_mov_b64 exec, -1")
    Lb(l)
E("s_load_dwordx16 s[16:31], s[0:1], 0"); E("s_load_dwordx8 s[32:39], s[0:1], 64")
E("v_lshrrev_b32 v1, 6, v0"); E("s_and_b32 s4, s2, 7"); E("v_readfirstlane_b32 s7, v1")
E("s_lshr_b32 s13, s2, 3"); E("s_and_b32 s5, s13, 3"); E("s_lshr_b32 s6, s2, 5"); E("s_mov_b32 s3, 0")
E("v_and_b32 v1, 15, v0"); E("v_bfe_u32 v2, v0, 4, 2")
E("v_lshlrev_b32 v4, 9, v1"); E("v_lshl_add_u32 v4, v2, 4, v4")
E("v_lshlrev_b32 v5, 11, v2"); E("v_lshl_add_u32 v5, v1, 4, v5")
E("s_lshl_b32 s8, s5, 3"); E("s_add_u32 s8, s8, s4"); E("s_lshl_b32 s9, s8, 21"); E("s_lshl_b32 s10, s6, 18"); E("s_add_u32 s9, s9, s10")
E("s_lshl_b32 s80, s7, 16"); E("s_mul_i32 s81, s7, %d" % (NLDSV * 1024)); E("s_add_u32 s81, s81, %d" % (VBASE - 4096))

E("s_lshl_b32 s84, s8, 13"); E("s_lshl_b32 s10, s6, 10"); E("s_add_u32 s84, s84, s10")
E("s_lshl_b32 s85, s8, 7"); E("s_lshl_b32 s10, s6, 3"); E("s_add_u32 s85, s85, s10"); E("s_add_u32 s85, s85, 0x%x" % MLB)
E("s_mov_b32 s86, 0")
E("s_mov_b32 s82, 0x%x" % QB0)
E("s_lshl_b32 s11, s7, 4")
E("s_lshl_b32 s83, s2, 7"); E("s_lshl_b32 s10, s7, 5"); E("s_add_u32 s83, s83, s10")
E("s_sub_u32 s87, s2, 64"); E("s_lshl_b32 s87, s87, 6"); E("s_add_u32 s87, s87, s11")
E("s_max_u32 s14, s13, 15"); E("s_sub_u32 s14, s14, 15"); E("s_min_u32 s14, s14, 13")
E("s_cmp_ge_u32 s14, 7"); E("s_cselect_b32 s88, 1, 0"); E("s_mul_i32 s10, s88, 7"); E("s_sub_u32 s14, s14, s10")
E("s_lshl_b32 s89, s14, 6"); E("s_add_u32 s89, s89, s11")
E("s_mov_b32 s12, 0"); E("s_cmp_ge_u32 s13, 8"); E("s_cselect_b32 s12, 1, s12"); E("s_cmp_ge_u32 s13, 15"); E("s_cselect_b32 s12, 2, s12")
E("s_cmp_ge_u32 s13, 29"); E("s_cselect_b32 s12, 3, s12")
E("s_mov_b32 s99, %s" % f32(0.0625 * 1.4426950408889634))
E("s_mov_b32 s97, %s" % f32(2.0 ** -32)); E("s_mov_b32 s96, %s" % f32(2.0 ** 32)); E("s_movk_i32 s95, 0xffe0")
E("s_waitcnt lgkmcnt(0)")
def srd(d, lo, hi, n, add=None):
    if add: E("s_add_u32 s%d, s%d, %s" % (d, lo, add)); E("s_addc_u32 s%d, s%d, 0" % (d + 1, hi))
    else: E("s_mov_b32 s%d, s%d" % (d, lo)); E("s_mov_b32 s%d, s%d" % (d + 1, hi))
    E("s_mov_b32 s%d, 0x%x" % (d + 2, n)); E("s_mov_b32 s%d, 0x00020000" % (d + 3))
srd(40, 18, 19, 262144, "s9"); srd(44, 20, 21, 262144, "s9")
srd(64, 38, 39, 0x400000); srd(68, 16, 17, 3584); srd(72, 34, 35, 3584); srd(76, 36, 37, 256)
stamp()
kgroup(OPT['k0'], False)
xaddr()
E("v_lshrrev_b32 v6, 1, v1"); E("v_lshrrev_b32 v7, 1, v2"); E("s_mul_i32 s8, s7, 896")
VM('x', "buffer_load_dwordx2 v[8:9], v6, s[68:71], s8 offen"); VM('x', "buffer_load_dwordx2 v[10:11], v7, s[68:71], s8 offen")
lane("v15"); E("v_lshrrev_b32 v12, 3, v15"); E("v_and_b32 v13, 7, v15")
for m in range(4): E("v_xor_b32 v%d, %d, v13" % (16 + m, 2 * m))
srd(48, 22, 23, 448 * 4096 * 2); E("s_lshl_b32 s92, s2, 7"); E("s_movk_i32 s93, 8192"); E("s_lshl_b32 s10, s7, 7")
E("s_cmp_eq_u32 s12, 0"); E("s_cbranch_scc1 Lwsel")
E("s_cmp_eq_u32 s12, 1"); E("s_cbranch_scc1 Lwg")
E("s_movk_i32 s93, 896"); E("s_and_b32 s10, s7, 1"); E("s_lshl_b32 s10, s10, 7")
E("s_mov_b32 s48, s24"); E("s_mov_b32 s49, s25"); E("s_mov_b32 s50, 0x%x" % (4096 * 448 * 2))
E("s_lshl_b32 s8, s4, 1"); E("s_add_u32 s8, s8, s88"); E("s_mul_i32 s92, s8, %d" % (256 * 896)); E("s_lshl_b32 s8, s14, 7"); E("s_add_u32 s92, s92, s8")
E("s_cmp_lt_u32 s7, 2"); E("s_cbranch_scc1 Lwsel")
E("s_mov_b32 s48, s32"); E("s_mov_b32 s49, s33"); E("s_mov_b32 s50, 0x%x" % (1792 * 448 * 2))
E("s_mul_i32 s92, s4, %d" % (224 * 896)); E("s_add_u32 s92, s92, s8")
Lb("Lwsel")
E("s_mov_b32 s52, s48"); E("s_mov_b32 s53, s49"); E("s_lshl_b32 s94, s93, 3")
E("s_branch Lwsel2")
Lb("Lwg")
E("s_mov_b32 s48, s28"); E("s_mov_b32 s49, s29"); E("s_mov_b32 s52, s30"); E("s_mov_b32 s53, s31"); E("s_mov_b32 s50, 0x%x" % (448 * 1792 * 2))
E("s_sub_u32 s92, s2, 64"); E("s_lshl_b32 s92, s92, 6"); E("s_movk_i32 s93, 3584"); E("s_mov_b32 s94, 0")
E("v_lshrrev_b32 v12, 2, v15"); E("v_and_b32 v13, 3, v15"); E("v_lshrrev_b32 v6, 5, v15"); E("v_xor_b32 v13, v6, v13")
for m in range(4): E("v_xor_b32 v%d, %d, v13" % (16 + m, 2 * (m >> 1)))
Lb("Lwsel2")
E("s_mov_b32 s54, s50"); E("s_mov_b32 s55, 0x00020000")
E("s_mul_i32 s10, s10, s93"); E("s_add_u32 s92, s92, s10"); E("s_add_u32 s94, s94, s92")
E("v_mul_lo_u32 v12, v12, s93"); E("s_lshl_b32 s93, s93, 4")
for m in range(4): E("v_lshl_add_u32 v%d, v%d, 4, v12" % (16 + m, 16 + m))
E("s_lshl_b32 s11, s7, 14"); E("s_add_u32 s11, s11, %d" % VBASE)
for f in range(8):
    E("s_add_u32 m0, s11, %d" % (2048 * f)); E("s_nop 0")
    VM('w', "buffer_load_dwordx4 v%d, s[48:51], s92 offen%s lds" % (16 + (2 * f) % 4, WNT))
    E("s_add_u32 m0, s11, %d" % (2048 * f + 1024)); E("s_nop 0")
    VM('w', "buffer_load_dwordx4 v%d, s[52:55], s94 offen%s lds" % (16 + (2 * f + 1) % 4, WNT))
    if f < 7: E("s_add_u32 s92, s92, s93"); E("s_add_u32 s94, s94, s93")
    if f == 3:
        E("s_and_b32 s8, s2, 0x78"); E("s_cmp_eq_u32 s8, 0x40"); E("s_cselect_b32 s8, 0, -1")
        for r in range(4): E("v_mov_b32 v%d, s8" % (24 + r))
        E("v_lshlrev_b32 v7, 4, v0"); E("s_lshl_b32 s8, s2, 12")
        VM('clr', "buffer_store_dwordx4 v[24:27], v7, s[64:67], s8 offen sc1")
        E("s_cmp_lg_u32 s12, 0"); E("s_cbranch_scc1 Lnoclrq")
        E("v_bfe_u32 v12, v0, 4, 2"); E("v_and_b32 v13, 15, v0"); E("v_lshlrev_b32 v12, 13, v12"); E("v_lshl_add_u32 v12, v13, 1, v12"); E("s_add_u32 s8, s82, s83")
        E("s_mov_b32 exec_lo, 0x55555555"); E("s_mov_b32 exec_hi, 0x55555555")
        E("buffer_store_dword v24, v12, s[64:67], s8 offen sc1"); E("s_mov_b64 exec, -1")
        Lb("Lnoclrq")
def qaddr(): E("v_lshlrev_b32 v1, 13, v1"); E("v_lshl_add_u32 v1, v2, 1, v1"); E("s_add_u32 s8, s82, s83"); E("s_mov_b32 exec_lo, 0x55555555"); E("s_mov_b32 exec_hi, 0x55555555")
kgroup(OPT['k1'], False)
stamp()
wait_tag('x')
xunpack()
E("s_cmp_lg_u32 s12, 0"); E("s_cbranch_scc1 Lnoln0")
layernorm(ACT0)
Lb("Lnoln0")
kgroup(OPT['k2'], False)
E("v_bfe_u32 v12, v0, 4, 2"); E("v_bfe_u32 v13, v0, 2, 2"); E("v_xor_b32 v7, s7, v12"); E("v_and_b32 v15, 3, v0")
E("v_lshl_add_u32 v6, v12, 3, v13"); E("v_lshlrev_b32 v6, 7, v6"); E("v_lshl_add_u32 v6, v7, 5, v6"); E("v_lshl_add_u32 v6, v15, 3, v6"); E("v_add_u32 v16, 512, v6")
E("s_cmp_lg_u32 s12, 1"); E("s_cbranch_scc1 Ltra")
E("v_and_b32 v6, 1, v12"); E("v_lshl_add_u32 v6, v6, 3, v13"); E("v_lshlrev_b32 v6, 6, v6"); E("v_lshrrev_b32 v12, 1, v12"); E("v_lshl_add_u32 v6, v12, 11, v6")
E("v_lshl_add_u32 v6, v7, 4, v6"); E("v_lshrrev_b32 v12, 1, v15"); E("v_lshl_add_u32 v6, v12, 10, v6"); E("v_and_b32 v12, 1, v15"); E("v_lshl_add_u32 v6, v12, 3, v6"); E("v_add_u32 v16, 256, v6")
Lb("Ltra")
E("v_add_u32 v6, %d, v6" % VBASE); E("v_add_u32 v16, %d, v16" % VBASE)
wait_tag('w')
E("s_barrier")
for f in range(16):
    E("ds_read_b64_tr_b16 %s, v6 offset:%d" % (vr(RW + 4 * f, 2), f * 4096)); E("ds_read_b64_tr_b16 %s, v16 offset:%d" % (vr(RW + 4 * f + 2, 2), f * 4096))
    if f % 4 == 3 and f < 15: E("s_waitcnt lgkmcnt(4)")
kgroup(OPT['k3'], False)
bar()
def sig():
    E("s_mov_b64 exec, 1"); E("s_and_b32 s9, s2, 15"); E("s_lshl_b32 s9, s9, 4"); E("v_mov_b32 v25, 1"); E("v_mov_b32 v26, 0")
    E("buffer_atomic_add v25, v26, s[76:79], s9 offen sc1"); E("s_mov_b64 exec, -1")
worker(0, 0, sig)
def qbody():
    dense(14, ACT0)
    E("s_nop 1"); E("v_mov_b32_dpp v25, v24 quad_perm:[1,0,3,2] row_mask:0xf bank_mask:0xf")
    E("v_cvt_pk_bf16_f32 v24, v24, v25"); E("v_min_u32 v24, -2, v24"); qaddr()
    E("buffer_store_dword v24, v1, s[64:67], s8 offen sc1"); E("s_mov_b64 exec, -1")
E("s_cmp_lg_u32 s12, 0"); E("s_cbranch_scc1 Lnoq0")
qbody()
Lb("Lnoq0")
dbgt(3)
stamp()
Lb("Lloop")

lane("v15"); E("v_lshlrev_b32 v1, 4, v15"); E("v_add_u32 v3, s81, v1")
E("v_bfe_u32 v2, v0, 3, 1"); E("v_lshlrev_b32 v2, 9, v2"); E("v_bfe_u32 v6, v0, 4, 2"); E("v_lshl_add_u32 v2, v6, 4, v2")
E("v_and_b32 v6, 1, v0"); E("v_lshlrev_b32 v6, 4, v6"); E("v_mov_b32 v7, 0xffff"); E("v_lshlrev_b32 v7, v6, v7"); E("v_bfe_u32 v6, v0, 1, 2")
for r in range(4): E("v_cmp_eq_u32 vcc, %d, v6" % r); E("s_nop 1"); E("v_cndmask_b32 v%d, 0, v7, vcc" % (8 + r))
E("s_lshl_b32 s8, s5, 13"); E("s_lshl_b32 s9, s4, 10"); E("s_add_u32 s90, s8, s9"); E("s_add_u32 s90, s90, s82")
qload = "buffer_load_dwordx4 v[16:19], v1, s[64:67], s90 offen sc1"
E("s_cmp_lg_u32 s3, 0"); E("s_cbranch_scc1 Lqpoll1")
E("v_and_b32 v6, 15, v0"); E("v_lshlrev_b32 v6, 4, v6")
pos = kpos[0]
while pos < 64 + OPT['vpre']:
    if pos < 64: kload(pos); kpos[0] += 1
    else: vload(pos - 64); vpos[0] += 1
    pos += 1
    if pos == OPT['p1']: VM('cnt', "buffer_load_dword v7, v6, s[76:79], 0 offen sc1")
    if pos == OPT['pq']:
        wait_tag('cnt')
        E("s_mov_b32 s98, 0"); Lb("Lcnt")
        E("v_cmp_gt_u32 vcc, 16, v7"); E("s_cbranch_vccz Lcntd")
        E("buffer_load_dword v7, v6, s[76:79], 0 offen sc1"); E("s_waitcnt vmcnt(0)")
        E("s_add_u32 s98, s98, 1"); E("s_cmp_lt_u32 s98, 0x8000"); E("s_cbranch_scc1 Lcnt")
        Lb("Lcntd")
        VM('q', qload)
wait_tag('q')
check(range(16, 20))
E("s_cbranch_vccz Lattn")
Lb("Lqpoll")
poll([qload], lambda: check(range(16, 20)))
Lb("Lattn")
E("ds_write_b128 v1, v[16:19] offset:%d" % QL)
E("s_waitcnt lgkmcnt(0)")
E("s_branch Lattn2")
Lb("Lqpoll1")
worker(0, 0, lambda: (poll([qload], lambda: check(range(16, 20))), E("ds_write_b128 v1, v[16:19] offset:%d" % QL)))
bar()
Lb("Lattn2")
stamp()
def round_tile(T, first):
    s = 32 + 4 * T
    return ["v_cvt_pk_bf16_f32 v6, v%d, v%d" % (s, s + 1), "v_cvt_pk_bf16_f32 v7, v%d, v%d" % (s + 2, s + 3),
            "v_lshlrev_b32 v%d, 16, v6" % s, "v_and_b32 v%d, 0xffff0000, v6" % (s + 1),
            "v_lshlrev_b32 v%d, 16, v7" % (s + 2), "v_and_b32 v%d, 0xffff0000, v7" % (s + 3),
            ("v_max_f32 v12, v%d, v%d" % (s, s + 1)) if first else ("v_max3_f32 v12, v12, v%d, v%d" % (s, s + 1)),
            "v_max3_f32 v12, v12, v%d, v%d" % (s + 2, s + 3)]
seq = [(G, t) for G in range(4) for t in range(8)]
for i in range(4): E("ds_read_b128 %s, v2 offset:%d" % (vr(64 + 4 * i), QL + 64 * seq[i][1]))
for i, (G, t) in enumerate(seq):
    if t == 0:
        vgroup(4)
        E("s_waitcnt vmcnt(%d)" % min(63, len(vm) - 1 - [j for j, x in enumerate(vm) if x == 'K'][16 * G + 15]))
        extra = (round_tile(2 * G - 2, G == 1) + round_tile(2 * G - 1, False)) if G else []
        extra = [None] * 4 + extra[:12] if extra else []
        tail = (round_tile(2 * G - 2, G == 1) + round_tile(2 * G - 1, False))[12:] if G else []
    E("s_waitcnt lgkmcnt(%d)" % min(3, len(seq) - 1 - i))
    for d in range(2):
        T = 2 * G + d
        E("v_mfma_f32_16x16x32_bf16 %s, %s, %s, %s" % (vr(32 + 4 * T), ar(32 * T + 4 * t), vr(64 + 4 * (i % 4)), "0" if t == 0 else vr(32 + 4 * T)))
        if extra and extra[2 * t + d]: E(extra[2 * t + d])
    if i + 4 < len(seq): E("ds_read_b128 %s, v2 offset:%d" % (vr(64 + 4 * (i % 4)), QL + 64 * seq[i + 4][1]))
    if t == 7:
        for s in tail: E(s)
lg = []
def ldsread(u): E("ds_read_b128 %s, v3 offset:%d" % (vr(64 + 4 * (u % 4)), 4096 + u * 1024)); lg.append(u)
wait_tag('V3')
for u in range(4): ldsread(u)
E("s_nop 3")
for s in round_tile(6, False): E(s)
for s in round_tile(7, False): E(s)
E("v_mov_b32 v6, v12"); E("s_nop 1"); E("v_permlane16_swap_b32 v12, v6"); E("s_nop 1"); E("v_max_f32 v12, v12, v6")
E("v_mov_b32 v6, v12"); E("s_nop 1"); E("v_permlane32_swap_b32 v12, v6"); E("s_nop 1"); E("v_max_f32 v12, v12, v6")
E("v_mul_f32 v14, s99, v12"); E("v_mov_b32 v13, 0")
def ptile(T):
    s = 32 + 4 * T
    return ["v_fma_f32 v%d, v%d, s99, -v14" % (s + r, s + r) for r in range(4)] + ["v_exp_f32 v%d, v%d" % (s + r, s + r) for r in range(4)] + \
           ["v_add_f32 v13, v13, v%d" % (s + r) for r in range(4)] + ["v_cvt_pk_bf16_f32 v%d, v%d, v%d" % (s + r, s + r, s + r) for r in range(4)]
def bmk(k): return ["v_and_b32 v%d, v%d, v%d" % (16 + 4 * (k & 1) + r, 32 + k, 8 + r) for r in range(4)]
for s in ptile(0): E(s)
for s in bmk(0): E(s)
for k in range(32):
    pt = ptile(k // 4 + 1)[4 * (k % 4): 4 * (k % 4) + 4] if k < 28 else []
    nb = bmk(k + 1) if k < 31 else []
    if k % 4 == 3 and k < 28: first, second = pt, nb
    else: first, second = pt, nb
    b = 16 + 4 * (k & 1)
    vgroup(2)
    for hf in range(2):
        u = 2 * k + hf
        if u < NLDSV:
            E("s_waitcnt lgkmcnt(%d)" % (len(lg) - 1 - lg.index(u))); A = vr(64 + 4 * (u % 4))
        else:
            wait_tag('V%d' % u); A = vr(144 + 4 * (u - NLDSV))
        if hf == 0: E("s_nop 0")
        acc = vr(24 + 4 * hf)
        E("v_mfma_f32_16x16x32_bf16 %s, %s, %s, %s" % (acc, A, vr(b), "0" if k == 0 else acc))
        if u + 4 < NLDSV:
            if u % 2 == 0: wait_tag('V%d' % (u + 5))
            ldsread(u + 4)
        for s in (first if hf == 0 else second): E(s)
E("v_mov_b32 v6, v13"); E("s_nop 1"); E("v_permlane16_swap_b32 v13, v6"); E("s_nop 1"); E("v_add_f32 v13, v13, v6")
E("v_mov_b32 v6, v13"); E("s_nop 1"); E("v_permlane32_swap_b32 v13, v6"); E("s_nop 1"); E("v_add_f32 v13, v13, v6")
E("v_bfe_u32 v6, v0, 3, 1"); E("v_lshlrev_b32 v7, 10, v6"); E("v_bfe_u32 v1, v0, 4, 2"); E("v_lshl_add_u32 v7, v1, 5, v7")
E("v_and_b32 v1, 7, v0"); E("v_lshl_add_u32 v7, v1, 2, v7"); E("s_lshl_b32 s8, s7, 11"); E("v_add_u32 v7, s8, v7")
E("s_lshl_b32 s8, s7, 4"); E("v_lshl_add_u32 v6, v6, 3, s8")
E("s_barrier")
for hf in range(2):
    for r in range(4): E("ds_write_b32 v7, v%d offset:%d" % (24 + 4 * hf + r, OM + (r * 2 + hf) * 128))
E("s_mov_b64 exec, 0x101"); E("ds_write_b64 v6, v[12:13] offset:%d" % ML); E("s_mov_b64 exec, -1")
E("v_lshlrev_b32 v1, 3, v0"); E("v_lshrrev_b32 v2, 7, v0"); E("v_lshlrev_b32 v3, 3, v2")
E("v_lshlrev_b32 v6, 9, v2"); E("v_bfe_u32 v7, v0, 4, 1"); E("v_lshl_add_u32 v6, v7, 8, v6"); E("v_bfe_u32 v7, v0, 2, 2"); E("v_lshl_add_u32 v6, v7, 6, v6")
E("v_bfe_u32 v7, v0, 5, 2"); E("v_lshl_add_u32 v6, v7, 4, v6"); E("v_and_b32 v7, 3, v0"); E("v_lshl_add_u32 v6, v7, 2, v6")
E("v_lshlrev_b32 v7, 6, v2"); E("s_add_u32 s8, s84, s86"); E("s_add_u32 s9, s85, s86")
bar()
for w in range(4): E("ds_read_b64 %s, v3 offset:%d" % (vr(40 + 2 * w, 2), ML + 16 * w))
for w in range(4): E("ds_read_b64 %s, v1 offset:%d" % (vr(32 + 2 * w, 2), OM + 2048 * w))
E("s_waitcnt lgkmcnt(4)")
E("v_max_f32 v26, v40, v42"); E("v_max3_f32 v26, v26, v44, v46")
for w in range(4): E("v_sub_f32 v%d, v%d, v26" % (40 + 2 * w, 40 + 2 * w)); E("v_mul_f32 v%d, s99, v%d" % (40 + 2 * w, 40 + 2 * w))
for w in range(4): E("v_exp_f32 v%d, v%d" % (40 + 2 * w, 40 + 2 * w))
E("s_waitcnt lgkmcnt(0)")
E("v_mul_f32 v24, v40, v32"); E("v_mul_f32 v25, v40, v33"); E("v_mul_f32 v27, v40, v41")
for w in range(1, 4):
    E("v_fmac_f32 v24, v%d, v%d" % (40 + 2 * w, 32 + 2 * w)); E("v_fmac_f32 v25, v%d, v%d" % (40 + 2 * w, 33 + 2 * w)); E("v_fmac_f32 v27, v%d, v%d" % (40 + 2 * w, 41 + 2 * w))
E("v_cvt_pk_bf16_f32 v24, v24, v25"); E("v_min_u32 v24, -2, v24"); E("v_min_u32 v26, -2, v26"); E("v_min_u32 v27, -2, v27")
E("buffer_store_dword v24, v6, s[64:67], s8 offen sc1")
E("s_and_b32 s10, s7, 1"); E("s_cmp_lg_u32 s10, 0"); E("s_cbranch_scc1 Lnoml")
E("s_mov_b64 exec, 1"); E("buffer_store_dwordx2 v[26:27], v7, s[64:67], s9 offen sc1"); E("s_mov_b64 exec, -1")
Lb("Lnoml")
stamp()

if OPT['dbg']:
    E("s_cmp_lg_u32 s3, 0"); E("s_cbranch_scc1 Ldbg1"); dbgt(1); Lb("Ldbg1")
E("s_cmp_eq_u32 s12, 1"); E("s_cbranch_scc1 Lg")
E("s_cmp_eq_u32 s12, 0"); E("s_cbranch_scc1 Lq")
E("s_cmp_eq_u32 s12, 3"); E("s_cbranch_scc1 Lf")
lane("v15"); E("v_lshlrev_b32 v1, 3, v15"); E("v_and_b32 v2, 56, v1")
E("s_lshl_b32 s8, s7, 3"); E("s_add_u32 s8, s8, s4"); E("s_lshl_b32 s9, s8, 13"); E("s_add_u32 s9, s9, s86"); E("s_lshl_b32 s10, s88, 9"); E("s_add_u32 s9, s9, s10"); E("s_add_u32 s10, s9, 4096")
E("s_lshl_b32 s11, s8, 7"); E("s_add_u32 s11, s11, s86"); E("s_add_u32 s11, s11, 0x%x" % MLB); E("s_lshl_b32 s8, s88, 6"); E("s_add_u32 s11, s11, s8")
loads = ["buffer_load_dwordx2 v[32:33], v2, s[64:67], s11 offen sc1"]
loads += ["buffer_load_dwordx2 %s, v1, s[64:67], %s offen offset:%d sc1" % (vr(16 + 2 * s, 2), "s9" if s < 4 else "s10", (s % 4) * 1024) for s in range(8)]
poll(loads, lambda: check(range(16, 34)))
stamp()
D3 = ["quad_perm:[1,0,3,2] row_mask:0xf bank_mask:0xf", "quad_perm:[2,3,0,1] row_mask:0xf bank_mask:0xf", "row_half_mirror row_mask:0xf bank_mask:0xf"]
def unp(s):
    for q in range(2): E("v_lshlrev_b32 v%d, 16, v%d" % (40 + 4 * s + 2 * q, 16 + 2 * s + q)); E("v_and_b32 v%d, 0xffff0000, v%d" % (41 + 4 * s + 2 * q, 16 + 2 * s + q))
E("v_max_f32_dpp v6, v32, v32 " + D3[0]); unp(0)
E("v_max_f32_dpp v6, v6, v6 " + D3[1]); unp(1)
E("v_max_f32_dpp v6, v6, v6 " + D3[2]); unp(2)
E("v_sub_f32 v6, v32, v6"); E("v_mul_f32 v6, s99, v6"); E("v_exp_f32 v6, v6"); unp(3)
E("v_mul_f32 v7, v6, v33"); unp(4)
E("v_add_f32_dpp v7, v7, v7 " + D3[0]); unp(5)
E("v_add_f32_dpp v7, v7, v7 " + D3[1]); unp(6)
E("v_add_f32_dpp v7, v7, v7 " + D3[2]); unp(7)
for s in range(8): E("v_readlane_b32 s%d, v6, %d" % (16 + s, s))
E("v_rcp_f32 v7, v7")
for s in range(8):
    for q in range(4):
        if s == 0: E("v_mul_f32 v%d, s16, v%d" % (72 + q, 40 + q))
        else: E("v_fmac_f32 v%d, s%d, v%d" % (72 + q, 16 + s, 40 + 4 * s + q))
for q in range(4): E("v_mul_f32 v%d, v%d, v7" % (72 + q, 72 + q))
for q in range(2): E("v_cvt_pk_bf16_f32 v%d, v%d, v%d" % (16 + q, 72 + 2 * q, 73 + 2 * q))
E("s_mul_i32 s8, s7, %d" % PITCH); E("v_add_u32 v1, s8, v1")
E("ds_write_b64 v1, v[16:17] offset:%d" % ACT1)
bar()
def xatomic(base):
    E("v_rndne_f32 v25, v24"); E("v_sub_f32 v26, v24, v25"); E("v_cvt_i32_f32 v25, v25"); E("v_mul_f32 v26, s96, v26"); E("v_cvt_i32_f32 v24, v26")
    E("v_lshlrev_b32 v1, 12, v1"); E("v_lshl_add_u32 v1, v2, 3, v1")
    E("v_ashrrev_i32 v26, 31, v24"); E("v_add_u32 v25, v25, v26"); E("v_and_or_b32 v24, v24, s95, 1")
    E("s_lshl_b32 s8, s89, 3"); E("s_add_u32 s8, s8, s86"); E("s_add_u32 s8, s8, 0x%x" % base)
    E("buffer_atomic_add_x2 v[24:25], v1, s[64:67], s8 offen sc1")
dense(8, ACT1); xatomic(XS1)
stamp()
E("s_cmp_lg_u32 s88, 0"); E("s_cbranch_scc1 Lnext")
lane("v15"); E("v_min_u32 v1, 27, v15"); E("v_lshlrev_b32 v1, 4, v1")
E("s_lshl_b32 s8, s7, 12"); E("s_mul_i32 s9, s4, 448"); E("s_add_u32 s9, s9, s8"); E("s_add_u32 s9, s9, s86"); E("s_add_u32 s9, s9, 0x%x" % AB)
poll(["buffer_load_dwordx4 v[16:19], v1, s[64:67], s9 offen sc1"], lambda: check(range(16, 20)))
stamp()
E("s_mul_i32 s8, s7, %d" % PITCH); E("v_add_u32 v1, s8, v1")
E("ds_write_b128 v1, v[16:19] offset:%d" % ACT0)
bar()
dense(7, ACT0, RW + 32); xatomic(XS2)
stamp()
E("s_branch Lnext")
Lb("Lg")
xinit()
E("s_cmp_eq_u32 s3, 0"); E("s_cbranch_scc1 Lg1")
xfront([("0x%x" % XS2, 8)])
Lb("Lg1")
E("s_add_u32 s91, s86, 0x%x" % XS1)
xtrig("s91", 16)
xfront([("s91", 16)])
stamp()
xunpack(); layernorm(ACT0); bar()
dense(14, ACT0)
bf16r("v24", "v24"); E("s_nop 1"); E("v_mov_b32_dpp v28, v24 row_ror:8 row_mask:0xf bank_mask:0xf")
k2 = -2 * 0.7978845608028654 * 1.4426950408889634
E("v_mul_f32 v26, v24, v24"); E("v_mov_b32 v25, %s" % f32(k2)); E("v_fmac_f32 v25, %s, v26" % f32(k2 * 0.044715))
E("v_mul_f32 v25, v25, v24"); E("v_exp_f32 v25, v25"); E("s_nop 0"); E("v_add_f32 v25, 1.0, v25"); E("v_rcp_f32 v25, v25"); E("s_nop 0")
E("v_mul_f32 v25, v25, v24"); bf16r("v25", "v25"); E("v_mul_f32 v25, v25, v28")
E("v_lshlrev_b32 v1, 12, v1"); E("v_lshl_add_u32 v1, v2, 1, v1")
E("v_mov_b32_dpp v26, v25 quad_perm:[1,0,3,2] row_mask:0xf bank_mask:0xf")
E("v_cvt_pk_bf16_f32 v24, v25, v26"); E("v_min_u32 v24, -2, v24")
E("s_add_u32 s8, s86, s87"); E("s_add_u32 s8, s8, 0x%x" % AB)
E("s_mov_b32 exec_lo, 0x00550055"); E("s_mov_b32 exec_hi, 0x00550055")
E("buffer_store_dword v24, v1, s[64:67], s8 offen sc1"); E("s_mov_b64 exec, -1")
stamp()
E("s_branch Lnext")
Lb("Lq")
E("s_cmp_lg_u32 s3, 0"); E("s_cbranch_scc1 Lend")
xinit()
xtrig("0x%x" % XS2, 8)
xfront([("0x%x" % XS1, 16), ("0x%x" % XS2, 8)])
stamp()
xunpack(); layernorm(ACT0); bar()
E("s_mov_b32 s82, 0x%x" % QB1)
qbody()
stamp()
E("s_branch Lnext")
Lb("Lf")
E("s_cmp_eq_u32 s3, 0"); E("s_cbranch_scc1 Lnext")
E("s_cmp_lg_u32 s2, 255"); E("s_cbranch_scc1 Lend")
xinit()
xfront([("0x%x" % XS1, 16), ("0x%x" % XS2, 8)])
xfront([("0x%x" % (XS1 + LSTEP), 16)], OPT['lazy'])
xfront([("0x%x" % (XS2 + LSTEP), 8)])
E("v_lshrrev_b32 v1, 1, v1"); E("v_lshrrev_b32 v2, 1, v2"); E("s_mul_i32 s8, s7, 896")
E("buffer_store_dwordx2 v[8:9], v1, s[72:75], s8 offen")
E("s_mov_b32 exec_hi, 0xffff")
E("buffer_store_dwordx2 v[10:11], v2, s[72:75], s8 offen")
stamp()
dbgt(2)
E("s_branch Lend")
Lb("Lnext")
E("s_cmp_lg_u32 s3, 0"); E("s_cbranch_scc1 Lend")
E("s_mov_b32 s3, 1"); E("s_mov_b32 s86, 0x%x" % LSTEP); E("s_mov_b32 s82, 0x%x" % QB1)
E("s_branch Lloop")

Lb("Lend")
E("s_endpgm")
out += ['.section .rodata,"a"', ".p2align 6", ".amdhsa_kernel %s_kernel" % NAME,
        "  .amdhsa_next_free_vgpr 512", "  .amdhsa_next_free_sgpr 102", "  .amdhsa_accum_offset 256",
        "  .amdhsa_group_segment_fixed_size 0", "  .amdhsa_kernarg_size 96", "  .amdhsa_user_sgpr_count 2",
        "  .amdhsa_user_sgpr_kernarg_segment_ptr 1", "  .amdhsa_system_sgpr_workgroup_id_x 1", ".end_amdhsa_kernel"]
open(sys.argv[1], "w").write("\n".join(out) + "\n")
```

```python
import sys, struct
NAME = "interleave_layers__gqa_block_cached__geglu_ffn__decode"
OPT = dict(nt=1, stamps=0, p1=40, pq=60, vpre=16, lazy=8, k0=0, k1=6, k2=6, k3=4, trig=1, wnt=1, dbg=0)
for a in sys.argv[2:]:
    k, v = a.split('='); OPT[k] = int(v)
out = []
def E(s): out.append("    " + s)
def Lb(s): out.append(s + ":")
def f32(x): return "0x%08x" % struct.unpack('<I', struct.pack('<f', x))[0]
NT = ["", " nt", " sc1 nt", " sc0 sc1 nt", " sc0 nt", " sc1"][OPT['nt']]; WNT = ["", " nt"][OPT['wnt']]
NLDSV = 36; VBASE = 16384; LDS_TOTAL = 163840
ACT0 = 0; OM = 0; ACT1 = 8192; QL = 8192; XRES = 12544; ML = 16128; PITCH = 1088
OB = 0; XS1 = 0x40000; XS2 = 0x44000; AB = 0x58000; MLB = 0x5C000; QB1 = 0xE0000; QB0 = 0x100000; LSTEP = 0x80000; STP = 0x300000
RW = 80
vm = []
def VM(tag, s): vm.append(tag); E(s)
def wait_tag(tag):
    idx = max(i for i, t in enumerate(vm) if t == tag)
    E("s_waitcnt vmcnt(%d)" % min(len(vm) - 1 - idx, 63))
uid = [0]
def lab(p): uid[0] += 1; return "L%s%d" % (p, uid[0])
stamp_n = [0]
def stamp(wave=0):
    if not OPT['stamps']: return
    n = stamp_n[0]; stamp_n[0] += 1; l = lab("st")
    E("s_cmp_lg_u32 s7, %d" % wave); E("s_cbranch_scc1 " + l)
    E("s_memrealtime s[8:9]"); E("s_waitcnt lgkmcnt(0)")
    E("v_mov_b32 v6, s8"); E("s_lshl_b32 s9, s2, 8"); E("s_lshl_b32 s8, s3, 7"); E("s_add_u32 s9, s9, s8")
    E("s_add_u32 s9, s9, 0x%x" % (STP + n * 4)); E("v_mov_b32 v7, 0")
    E("s_mov_b64 exec, 1"); E("buffer_store_dword v6, v7, s[64:67], s9 offen"); E("s_mov_b64 exec, -1")
    Lb(l)
def bf16r(dst, src): E("v_cvt_pk_bf16_f32 %s, %s, %s" % (dst, src, src)); E("v_lshlrev_b32 %s, 16, %s" % (dst, dst))
def vr(a, n=4): return "v[%d:%d]" % (a, a + n - 1)
def ar(a, n=4): return "a[%d:%d]" % (a, a + n - 1)
def poll(loads, chk, sleep=0):
    l = lab("poll")
    E("s_mov_b32 s98, 0"); Lb(l)
    for s in loads: E(s)
    E("s_waitcnt vmcnt(0)"); chk()
    E("s_cbranch_vccz %sd" % l)
    if sleep: E("s_sleep %d" % sleep)
    E("s_add_u32 s98, s98, 1"); E("s_cmp_lt_u32 s98, 0x8000"); E("s_cbranch_scc1 " + l)
    Lb(l + "d")
def check(regs, t="v15"):
    r = list(regs)
    E("v_max3_u32 %s, v%d, v%d, v%d" % (t, r[0], r[1], r[2])); r = r[3:]
    while len(r) >= 2: E("v_max3_u32 %s, %s, v%d, v%d" % (t, t, r[0], r[1])); r = r[2:]
    if r: E("v_max_u32 %s, %s, v%d" % (t, t, r[0]))
    E("v_cmp_eq_u32 vcc, -1, %s" % t)
kpos = [0]
def kload(n):
    T, t = n // 8, n % 8
    E("s_add_u32 s10, s80, %d" % (T * 8192))
    VM('K', "buffer_load_dwordx4 %s, v4, s[40:43], s10 offen offset:%d%s" % (ar(4 * n), 64 * t, NT))
def kgroup(cnt, cond=True):
    l = lab("kg")
    if cond: E("s_cmp_lg_u32 s3, 0"); E("s_cbranch_scc1 " + l)
    for _ in range(cnt): kload(kpos[0]); kpos[0] += 1
    if cond: Lb(l)
def inlds(u): return u % 2 == 0 or u < 8
def lslot(u): return u if u < 8 else 8 + (u // 2 - 4)
def vload(u):
    T, r, hf = u // 8, (u // 2) % 4, u % 2
    E("s_add_u32 s10, s80, %d" % (T * 8192))
    io = r * 512 + hf * 256
    if inlds(u):
        E("s_add_u32 m0, s81, %d" % (lslot(u) * 1024 + 4096 - io)); E("s_nop 0")
        VM('V%d' % u, "buffer_load_dwordx4 v5, s[44:47], s10 offen offset:%d%s lds" % (io, NT))
    else:
        VM('V%d' % u, "buffer_load_dwordx4 %s, v5, s[44:47], s10 offen offset:%d%s" % (vr(144 + 4 * (u // 2 - 4)), io, NT))
vpos = [0]
def vgroup(cnt):
    cnt = min(cnt, 64 - vpos[0])
    for _ in range(cnt): vload(vpos[0]); vpos[0] += 1
def lane(dst): E("v_and_b32 %s, 63, v0" % dst)
def xaddr():
    lane("v15"); E("v_lshlrev_b32 v1, 4, v15"); E("v_min_u32 v2, 47, v15"); E("v_lshlrev_b32 v2, 4, v2"); E("v_add_u32 v2, 1024, v2")
    E("s_mul_i32 s8, s7, 896"); E("s_add_u32 s8, s8, %d" % XRES)
    E("v_lshrrev_b32 v3, 1, v1"); E("v_add_u32 v3, s8, v3"); E("v_lshrrev_b32 v14, 1, v2"); E("v_add_u32 v14, s8, v14")
def xinit():
    xaddr()
    E("ds_read_b64 v[8:9], v3"); E("ds_read_b64 v[10:11], v14")
    E("v_lshlrev_b32 v6, 1, v1"); E("v_lshlrev_b32 v7, 1, v2")
def xtrig(off, P):
    if not OPT['trig']: return
    E("s_lshl_b32 s9, s7, 12"); E("s_add_u32 s9, s9, %s" % off); E("s_and_b32 s8, s2, 7"); E("s_mul_i32 s8, s8, 3"); E("s_bfe_u32 s10, s2, 0x20003"); E("s_add_u32 s8, s8, s10")
    E("s_lshl_b32 s8, s8, 7"); E("s_add_u32 s9, s9, s8"); E("v_mov_b32 v25, 0")
    poll(["buffer_load_dword v24, v25, s[64:67], s9 offen sc1"], lambda: (E("v_and_b32 v24, %d, v24" % P), E("v_cmp_eq_u32 vcc, 0, v24")))
def xfront(lst, sleep=0):
    loads = []
    for n, (off, P) in enumerate(lst):
        E("s_lshl_b32 s%d, s7, 12" % (9 + n)); E("s_add_u32 s%d, s%d, %s" % (9 + n, 9 + n, off))
        loads += ["buffer_load_dwordx4 %s, v%d, s[64:67], s%d offen offset:%d sc1" % (vr(32 + 16 * n + 4 * i), 6 + i // 2, 9 + n, 16 * (i & 1)) for i in range(4)]
    def chk():
        for n, (off, P) in enumerate(lst):
            o = 32 + 16 * n
            E("v_and_b32 v24, v%d, v%d" % (o, o + 2)); E("v_and_b32 v25, v%d, v%d" % (o + 4, o + 6)); E("v_and_b32 v26, v%d, v%d" % (o + 8, o + 10)); E("v_and_b32 v27, v%d, v%d" % (o + 12, o + 14))
            E("v_and_b32 v24, v24, v25"); E("v_and_b32 v26, v26, v27"); E("v_and_b32 v24, v24, v26"); E("v_and_b32 v%d, %d, v24" % (28 + n, P))
        if len(lst) == 2: E("v_min_u32 v28, v28, v29")
        E("v_cmp_eq_u32 vcc, 0, v28")
    poll(loads, chk, sleep)
    E("s_waitcnt lgkmcnt(0)")
    for n in range(len(lst)):
        o = 32 + 16 * n
        for q in range(8): E("v_lshrrev_b32 v%d, 31, v%d" % (16 + q, o + 2 * q)); E("v_cvt_f32_i32 v%d, v%d" % (o + 2 * q, o + 2 * q))
        for q in range(8): E("v_add_u32 v%d, v%d, v%d" % (16 + q, 16 + q, o + 1 + 2 * q))
        for q in range(8): E("v_cvt_f32_i32 v%d, v%d" % (16 + q, 16 + q))
        for q in range(8): E("v_fmac_f32 v%d, s97, v%d" % (16 + q, o + 2 * q))
        for q in range(4):
            E("v_cvt_pk_bf16_f32 v24, v%d, v%d" % (16 + 2 * q, 17 + 2 * q))
            E("v_lshlrev_b32 v25, 16, v24"); E("v_and_b32 v26, 0xffff0000, v24")
            E("v_lshlrev_b32 v27, 16, v%d" % (8 + q)); E("v_and_b32 v28, 0xffff0000, v%d" % (8 + q))
            E("v_add_f32 v25, v25, v27"); E("v_add_f32 v26, v26, v28")
            E("v_cvt_pk_bf16_f32 v%d, v25, v26" % (8 + q))
def xunpack():
    for q in range(4): E("v_lshlrev_b32 v%d, 16, v%d" % (16 + 2 * q, 8 + q)); E("v_and_b32 v%d, 0xffff0000, v%d" % (17 + 2 * q, 8 + q))
    E("ds_write_b64 v3, v[8:9]"); E("ds_write_b64 v14, v[10:11]")
def layernorm(act):
    E("v_add_f32 v24, v16, v17"); E("v_add_f32 v26, v18, v19"); E("v_mul_f32 v25, v16, v16"); E("v_add_f32 v24, v24, v26")
    for q in (17, 18, 19): E("v_fmac_f32 v25, v%d, v%d" % (q, q))
    E("s_mov_b32 exec_hi, 0xffff")
    for q in (20, 21, 22, 23): E("v_add_f32 v24, v24, v%d" % q); E("v_fmac_f32 v25, v%d, v%d" % (q, q))
    E("s_mov_b32 exec_hi, -1"); E("s_nop 1")
    for c in ["row_shr:1 row_mask:0xf bank_mask:0xf bound_ctrl:0", "row_shr:2 row_mask:0xf bank_mask:0xf bound_ctrl:0", "row_shr:4 row_mask:0xf bank_mask:0xf bound_ctrl:0",
              "row_shr:8 row_mask:0xf bank_mask:0xf bound_ctrl:0", "row_bcast:15 row_mask:0xa bank_mask:0xf", "row_bcast:31 row_mask:0xc bank_mask:0xf"]:
        E("v_add_f32_dpp v24, v24, v24 " + c); E("v_add_f32_dpp v25, v25, v25 " + c); E("s_nop 0")
    E("v_readlane_b32 s8, v24, 63"); E("v_readlane_b32 s9, v25, 63")
    E("s_mul_i32 s10, s7, %d" % PITCH); E("s_add_u32 s10, s10, %d" % act)
    E("v_mov_b32 v26, %s" % f32(1 / 448)); E("v_mul_f32 v24, s8, v26"); E("v_mul_f32 v25, s9, v26")
    E("v_fma_f32 v25, -v24, v24, v25"); E("v_max_f32 v25, 0, v25")
    E("v_cvt_pk_bf16_f32 v26, v24, v25"); E("v_lshlrev_b32 v24, 16, v26"); E("v_and_b32 v25, 0xffff0000, v26")
    E("v_add_f32 v25, %s, v25" % f32(1e-5)); bf16r("v25", "v25")
    E("v_sqrt_f32 v25, v25")
    for q in range(8): E("v_sub_f32 v%d, v%d, v24" % (16 + q, 16 + q))
    bf16r("v25", "v25"); E("v_rcp_f32 v25, v25")
    for q in range(4):
        E("v_cvt_pk_bf16_f32 v26, v%d, v%d" % (16 + 2 * q, 17 + 2 * q)); E("v_lshlrev_b32 v%d, 16, v26" % (16 + 2 * q)); E("v_and_b32 v%d, 0xffff0000, v26" % (17 + 2 * q))
    for q in range(8): E("v_mul_f32 v%d, v%d, v25" % (16 + q, 16 + q))
    for q in range(4): E("v_cvt_pk_bf16_f32 v%d, v%d, v%d" % (24 + q, 16 + 2 * q, 17 + 2 * q))
    E("v_lshrrev_b32 v1, 1, v1"); E("v_add_u32 v1, s10, v1"); E("v_lshrrev_b32 v2, 1, v2"); E("v_add_u32 v2, s10, v2")
    E("ds_write_b64 v1, v[24:25]"); E("ds_write_b64 v2, v[26:27]")
def bar(): E("s_waitcnt lgkmcnt(0)"); E("s_barrier")
def dense(T, act, RW=80):
    E("v_bfe_u32 v1, v0, 2, 2"); E("v_mul_u32_u24 v1, %d, v1" % PITCH); E("v_bfe_u32 v2, v0, 4, 2"); E("v_lshl_add_u32 v1, v2, 4, v1")
    for t in range(min(8, T)): E("ds_read_b128 %s, v1 offset:%d" % (vr(32 + 4 * t), act + 64 * t))
    issued = min(8, T)
    for t in range(T):
        E("s_waitcnt lgkmcnt(%d)" % (issued - 1 - t))
        acc = vr(24 + 4 * (t & 1))
        E("v_mfma_f32_16x16x32_bf16 %s, %s, %s, %s" % (acc, vr(32 + 4 * (t % 8)), vr(RW + 4 * t), "0" if t < 2 else acc))
        if issued < T: E("ds_read_b128 %s, v1 offset:%d" % (vr(32 + 4 * (issued % 8)), act + 64 * issued)); issued += 1
    E("v_bfe_u32 v1, v0, 4, 2"); E("v_and_b32 v2, 15, v0"); E("s_nop 6"); E("v_add_f32 v24, v24, v28")
def worker(wave, limit, body):
    l = lab("wk")
    E("s_cmp_lg_u32 s7, %d" % wave); E("s_cbranch_scc1 " + l)
    if limit: E("s_cmp_ge_u32 s13, %d" % limit); E("s_cbranch_scc1 " + l)
    body(); Lb(l)

hdr = open("cdna_kernels/%s.s.ref" % NAME).read().split("\n")
for l in hdr:
    if l.startswith("; @launch"): out.append("; @launch grid=(256,1,1) block=(256,1,1) lds=%d" % LDS_TOTAL)
    elif l.startswith(";"): out.append(l)
    else: break
out += ['.amdgcn_target "amdgcn-amd-amdhsa--gfx950"', ".text", ".globl %s_kernel" % NAME, ".p2align 8",
        ".type %s_kernel,@function" % NAME, "%s_kernel:" % NAME]
E("s_cmp_ge_u32 s2, 256"); E("s_cbranch_scc1 Lend")
if OPT['dbg']: E("s_memrealtime s[100:101]")
def dbgt(n):
    if not OPT['dbg']: return
    l = lab("dbg")
    E("s_cmp_lg_u32 s7, 0"); E("s_cbranch_scc1 " + l)
    E("s_memrealtime s[8:9]"); E("s_waitcnt lgkmcnt(0)"); E("s_sub_u32 s8, s8, s100"); E("v_mov_b32 v6, s8"); E("v_mov_b32 v7, 0")
    E("s_mov_b64 exec, 1"); E("buffer_atomic_umax v6, v7, s[76:79], 0 offen offset:%d sc1" % (4 * n)); E("s_mov_b64 exec, -1")
    Lb(l)
E("s_load_dwordx16 s[16:31], s[0:1], 0"); E("s_load_dwordx8 s[32:39], s[0:1], 64")
E("v_lshrrev_b32 v1, 6, v0"); E("s_and_b32 s4, s2, 7"); E("v_readfirstlane_b32 s7, v1")
E("s_lshr_b32 s13, s2, 3"); E("s_and_b32 s5, s13, 3"); E("s_lshr_b32 s6, s2, 5"); E("s_mov_b32 s3, 0")
E("v_and_b32 v1, 15, v0"); E("v_bfe_u32 v2, v0, 4, 2")
E("v_lshlrev_b32 v4, 9, v1"); E("v_lshl_add_u32 v4, v2, 4, v4")
E("v_lshlrev_b32 v5, 11, v2"); E("v_lshl_add_u32 v5, v1, 4, v5")
E("s_lshl_b32 s8, s5, 3"); E("s_add_u32 s8, s8, s4"); E("s_lshl_b32 s9, s8, 21"); E("s_lshl_b32 s10, s6, 18"); E("s_add_u32 s9, s9, s10")
E("s_lshl_b32 s80, s7, 16"); E("s_mul_i32 s81, s7, %d" % (NLDSV * 1024)); E("s_add_u32 s81, s81, %d" % (VBASE - 4096))

E("s_lshl_b32 s84, s8, 13"); E("s_lshl_b32 s10, s6, 10"); E("s_add_u32 s84, s84, s10")
E("s_lshl_b32 s85, s8, 7"); E("s_lshl_b32 s10, s6, 3"); E("s_add_u32 s85, s85, s10"); E("s_add_u32 s85, s85, 0x%x" % MLB)
E("s_mov_b32 s86, 0")
E("s_mov_b32 s82, 0x%x" % QB0)
E("s_lshl_b32 s11, s7, 4")
E("s_lshl_b32 s83, s2, 7"); E("s_lshl_b32 s10, s7, 5"); E("s_add_u32 s83, s83, s10")
E("s_sub_u32 s87, s2, 64"); E("s_lshl_b32 s87, s87, 6"); E("s_add_u32 s87, s87, s11")
E("s_max_u32 s14, s13, 15"); E("s_sub_u32 s14, s14, 15"); E("s_min_u32 s14, s14, 13")
E("s_cmp_ge_u32 s14, 7"); E("s_cselect_b32 s88, 1, 0"); E("s_mul_i32 s10, s88, 7"); E("s_sub_u32 s14, s14, s10")
E("s_lshl_b32 s89, s14, 6"); E("s_add_u32 s89, s89, s11")
E("s_mov_b32 s12, 0"); E("s_cmp_ge_u32 s13, 8"); E("s_cselect_b32 s12, 1, s12"); E("s_cmp_ge_u32 s13, 15"); E("s_cselect_b32 s12, 2, s12")
E("s_cmp_ge_u32 s13, 29"); E("s_cselect_b32 s12, 3, s12")
E("s_mov_b32 s99, %s" % f32(0.0625 * 1.4426950408889634))
E("s_mov_b32 s97, %s" % f32(2.0 ** -32)); E("s_mov_b32 s96, %s" % f32(2.0 ** 32)); E("s_movk_i32 s95, 0xffe0")
E("s_waitcnt lgkmcnt(0)")
def srd(d, lo, hi, n, add=None):
    if add: E("s_add_u32 s%d, s%d, %s" % (d, lo, add)); E("s_addc_u32 s%d, s%d, 0" % (d + 1, hi))
    else: E("s_mov_b32 s%d, s%d" % (d, lo)); E("s_mov_b32 s%d, s%d" % (d + 1, hi))
    E("s_mov_b32 s%d, 0x%x" % (d + 2, n)); E("s_mov_b32 s%d, 0x00020000" % (d + 3))
srd(40, 18, 19, 262144, "s9"); srd(44, 20, 21, 262144, "s9")
srd(64, 38, 39, 0x400000); srd(68, 16, 17, 3584); srd(72, 34, 35, 3584); srd(76, 36, 37, 256)
stamp()
kgroup(OPT['k0'], False)
xaddr()
E("v_lshrrev_b32 v6, 1, v1"); E("v_lshrrev_b32 v7, 1, v2"); E("s_mul_i32 s8, s7, 896")
VM('x', "buffer_load_dwordx2 v[8:9], v6, s[68:71], s8 offen"); VM('x', "buffer_load_dwordx2 v[10:11], v7, s[68:71], s8 offen")
lane("v15"); E("v_lshrrev_b32 v12, 3, v15"); E("v_and_b32 v13, 7, v15")
for m in range(4): E("v_xor_b32 v%d, %d, v13" % (16 + m, 2 * m))
srd(48, 22, 23, 448 * 4096 * 2); E("s_lshl_b32 s92, s2, 7"); E("s_movk_i32 s93, 8192"); E("s_lshl_b32 s10, s7, 7")
E("s_cmp_eq_u32 s12, 0"); E("s_cbranch_scc1 Lwsel")
E("s_cmp_eq_u32 s12, 1"); E("s_cbranch_scc1 Lwg")
E("s_movk_i32 s93, 896"); E("s_and_b32 s10, s7, 1"); E("s_lshl_b32 s10, s10, 7")
E("s_mov_b32 s48, s24"); E("s_mov_b32 s49, s25"); E("s_mov_b32 s50, 0x%x" % (4096 * 448 * 2))
E("s_lshl_b32 s8, s4, 1"); E("s_add_u32 s8, s8, s88"); E("s_mul_i32 s92, s8, %d" % (256 * 896)); E("s_lshl_b32 s8, s14, 7"); E("s_add_u32 s92, s92, s8")
E("s_cmp_eq_u32 s12, 3"); E("s_cselect_b32 s50, 0, s50")
E("s_cmp_lt_u32 s7, 2"); E("s_cbranch_scc1 Lwsel")
E("s_mov_b32 s48, s32"); E("s_mov_b32 s49, s33"); E("s_mov_b32 s50, 0x%x" % (1792 * 448 * 2))
E("s_cmp_lg_u32 s88, 0"); E("s_cselect_b32 s50, 0, s50")
E("s_mul_i32 s92, s4, %d" % (224 * 896)); E("s_add_u32 s92, s92, s8")
Lb("Lwsel")
E("s_mov_b32 s52, s48"); E("s_mov_b32 s53, s49"); E("s_lshl_b32 s94, s93, 3")
E("s_branch Lwsel2")
Lb("Lwg")
E("s_mov_b32 s48, s28"); E("s_mov_b32 s49, s29"); E("s_mov_b32 s52, s30"); E("s_mov_b32 s53, s31"); E("s_mov_b32 s50, 0x%x" % (448 * 1792 * 2))
E("s_sub_u32 s92, s2, 64"); E("s_lshl_b32 s92, s92, 6"); E("s_movk_i32 s93, 3584"); E("s_mov_b32 s94, 0")
E("v_lshrrev_b32 v12, 2, v15"); E("v_and_b32 v13, 3, v15"); E("v_lshrrev_b32 v6, 5, v15"); E("v_xor_b32 v13, v6, v13")
for m in range(4): E("v_xor_b32 v%d, %d, v13" % (16 + m, 2 * (m >> 1)))
Lb("Lwsel2")
E("s_mov_b32 s54, s50"); E("s_mov_b32 s55, 0x00020000")
E("s_mul_i32 s10, s10, s93"); E("s_add_u32 s92, s92, s10"); E("s_add_u32 s94, s94, s92")
E("v_mul_lo_u32 v12, v12, s93"); E("s_lshl_b32 s93, s93, 4")
for m in range(4): E("v_lshl_add_u32 v%d, v%d, 4, v12" % (16 + m, 16 + m))
E("s_lshl_b32 s11, s7, 14"); E("s_add_u32 s11, s11, %d" % VBASE)
for f in range(8):
    E("s_add_u32 m0, s11, %d" % (2048 * f)); E("s_nop 0")
    VM('w', "buffer_load_dwordx4 v%d, s[48:51], s92 offen%s lds" % (16 + (2 * f) % 4, WNT))
    E("s_add_u32 m0, s11, %d" % (2048 * f + 1024)); E("s_nop 0")
    VM('w', "buffer_load_dwordx4 v%d, s[52:55], s94 offen%s lds" % (16 + (2 * f + 1) % 4, WNT))
    if f < 7: E("s_add_u32 s92, s92, s93"); E("s_add_u32 s94, s94, s93")
    if f == 3:
        E("s_and_b32 s8, s2, 0x78"); E("s_cmp_eq_u32 s8, 0x40"); E("s_cselect_b32 s8, 0, -1")
        for r in range(4): E("v_mov_b32 v%d, s8" % (24 + r))
        E("v_lshlrev_b32 v7, 4, v0"); E("s_lshl_b32 s8, s2, 12")
        VM('clr', "buffer_store_dwordx4 v[24:27], v7, s[64:67], s8 offen sc1")
        E("s_cmp_lg_u32 s12, 0"); E("s_cbranch_scc1 Lnoclrq")
        E("v_bfe_u32 v12, v0, 4, 2"); E("v_and_b32 v13, 15, v0"); E("v_lshlrev_b32 v12, 13, v12"); E("v_lshl_add_u32 v12, v13, 1, v12"); E("s_add_u32 s8, s82, s83")
        E("s_mov_b32 exec_lo, 0x55555555"); E("s_mov_b32 exec_hi, 0x55555555")
        E("buffer_store_dword v24, v12, s[64:67], s8 offen sc1"); E("s_mov_b64 exec, -1")
        Lb("Lnoclrq")
def qaddr(): E("v_lshlrev_b32 v1, 13, v1"); E("v_lshl_add_u32 v1, v2, 1, v1"); E("s_add_u32 s8, s82, s83"); E("s_mov_b32 exec_lo, 0x55555555"); E("s_mov_b32 exec_hi, 0x55555555")
kgroup(OPT['k1'], False)
stamp()
wait_tag('x')
xunpack()
E("s_cmp_lg_u32 s12, 0"); E("s_cbranch_scc1 Lnoln0")
layernorm(ACT0)
Lb("Lnoln0")
kgroup(OPT['k2'], False)
E("v_bfe_u32 v12, v0, 4, 2"); E("v_bfe_u32 v13, v0, 2, 2"); E("v_xor_b32 v7, s7, v12"); E("v_and_b32 v15, 3, v0")
E("v_lshl_add_u32 v6, v12, 3, v13"); E("v_lshlrev_b32 v6, 7, v6"); E("v_lshl_add_u32 v6, v7, 5, v6"); E("v_lshl_add_u32 v6, v15, 3, v6"); E("v_add_u32 v16, 512, v6")
E("s_cmp_lg_u32 s12, 1"); E("s_cbranch_scc1 Ltra")
E("v_and_b32 v6, 1, v12"); E("v_lshl_add_u32 v6, v6, 3, v13"); E("v_lshlrev_b32 v6, 6, v6"); E("v_lshrrev_b32 v12, 1, v12"); E("v_lshl_add_u32 v6, v12, 11, v6")
E("v_lshl_add_u32 v6, v7, 4, v6"); E("v_lshrrev_b32 v12, 1, v15"); E("v_lshl_add_u32 v6, v12, 10, v6"); E("v_and_b32 v12, 1, v15"); E("v_lshl_add_u32 v6, v12, 3, v6"); E("v_add_u32 v16, 256, v6")
Lb("Ltra")
E("v_add_u32 v6, %d, v6" % VBASE); E("v_add_u32 v16, %d, v16" % VBASE)
wait_tag('w')
E("s_barrier")
for f in range(16):
    E("ds_read_b64_tr_b16 %s, v6 offset:%d" % (vr(RW + 4 * f, 2), f * 4096)); E("ds_read_b64_tr_b16 %s, v16 offset:%d" % (vr(RW + 4 * f + 2, 2), f * 4096))
    if f % 4 == 3 and f < 15: E("s_waitcnt lgkmcnt(4)")
kgroup(OPT['k3'], False)
bar()
def sig():
    E("s_mov_b64 exec, 1"); E("s_and_b32 s9, s2, 15"); E("s_lshl_b32 s9, s9, 4"); E("v_mov_b32 v25, 1"); E("v_mov_b32 v26, 0")
    E("buffer_atomic_add v25, v26, s[76:79], s9 offen sc1"); E("s_mov_b64 exec, -1")
worker(0, 0, sig)
def qbody():
    dense(14, ACT0)
    E("s_nop 1"); E("v_mov_b32_dpp v25, v24 quad_perm:[1,0,3,2] row_mask:0xf bank_mask:0xf")
    E("v_cvt_pk_bf16_f32 v24, v24, v25"); E("v_min_u32 v24, -2, v24"); qaddr()
    E("buffer_store_dword v24, v1, s[64:67], s8 offen sc1"); E("s_mov_b64 exec, -1")
E("s_cmp_lg_u32 s12, 0"); E("s_cbranch_scc1 Lnoq0")
qbody()
Lb("Lnoq0")
dbgt(3)
stamp()
Lb("Lloop")

lane("v15"); E("v_lshlrev_b32 v1, 4, v15"); E("v_add_u32 v3, s81, v1")
E("v_bfe_u32 v2, v0, 3, 1"); E("v_lshlrev_b32 v2, 9, v2"); E("v_bfe_u32 v6, v0, 4, 2"); E("v_lshl_add_u32 v2, v6, 4, v2")
E("v_and_b32 v6, 1, v0"); E("v_cmp_eq_u32 vcc, 0, v6"); E("v_mov_b32 v7, 0x01000c0c"); E("v_mov_b32 v12, 0x0c0c0100"); E("v_cndmask_b32 v7, v7, v12, vcc")
E("v_bfe_u32 v6, v0, 1, 2"); E("v_mov_b32 v12, 0x0c0c0c0c"); E("s_mov_b32 s91, 0x02020202")
for r in range(4): E("v_cmp_eq_u32 vcc, %d, v6" % r); E("s_nop 1"); E("v_cndmask_b32 v%d, v12, v7, vcc" % (8 + r))
E("s_lshl_b32 s8, s5, 13"); E("s_lshl_b32 s9, s4, 10"); E("s_add_u32 s90, s8, s9"); E("s_add_u32 s90, s90, s82")
qload = "buffer_load_dwordx4 v[16:19], v1, s[64:67], s90 offen sc1"
E("s_cmp_lg_u32 s3, 0"); E("s_cbranch_scc1 Lqpoll1")
E("v_and_b32 v6, 15, v0"); E("v_lshlrev_b32 v6, 4, v6")
pos = kpos[0]
while pos < 64 + OPT['vpre']:
    if pos < 64: kload(pos); kpos[0] += 1
    else: vload(pos - 64); vpos[0] += 1
    pos += 1
    if pos == OPT['p1']: VM('cnt', "buffer_load_dword v7, v6, s[76:79], 0 offen sc1")
    if pos == OPT['pq']:
        wait_tag('cnt')
        E("s_mov_b32 s98, 0"); Lb("Lcnt")
        E("v_cmp_gt_u32 vcc, 16, v7"); E("s_cbranch_vccz Lcntd")
        E("buffer_load_dword v7, v6, s[76:79], 0 offen sc1"); E("s_waitcnt vmcnt(0)")
        E("s_add_u32 s98, s98, 1"); E("s_cmp_lt_u32 s98, 0x8000"); E("s_cbranch_scc1 Lcnt")
        Lb("Lcntd")
        VM('q', qload)
wait_tag('q')
check(range(16, 20))
E("s_cbranch_vccz Lattn")
Lb("Lqpoll")
poll([qload], lambda: check(range(16, 20)))
Lb("Lattn")
E("ds_write_b128 v1, v[16:19] offset:%d" % QL)
E("s_waitcnt lgkmcnt(0)")
def round_tile(T, first):
    s = 32 + 4 * T
    return ["v_cvt_pk_bf16_f32 v6, v%d, v%d" % (s, s + 1), "v_cvt_pk_bf16_f32 v7, v%d, v%d" % (s + 2, s + 3),
            "v_lshlrev_b32 v%d, 16, v6" % s, "v_and_b32 v%d, 0xffff0000, v6" % (s + 1),
            "v_lshlrev_b32 v%d, 16, v7" % (s + 2), "v_and_b32 v%d, 0xffff0000, v7" % (s + 3),
            ("v_max_f32 v12, v%d, v%d" % (s, s + 1)) if first else ("v_max3_f32 v12, v12, v%d, v%d" % (s, s + 1)),
            "v_max3_f32 v12, v12, v%d, v%d" % (s + 2, s + 3)]
def FR(t): return vr(16 + 4 * t) if t < 4 else vr(64 + 4 * (t - 4))
HS = [1, 2, 13, 15]
def core(L0):
    for t in range(8): E("ds_read_b128 %s, v2 offset:%d" % (FR(t), QL + 64 * t))
    for G in range(4):
        if L0:
            vgroup(4)
            E("s_waitcnt vmcnt(%d)" % min(63, len(vm) - 1 - [j for j, x in enumerate(vm) if x == 'K'][16 * G + 15]))
        if G: extra = [None] * 3 + round_tile(2 * G - 2, G == 1) + round_tile(2 * G - 1, False)
        else:
            extra = []
            for c in range(4): extra += ["v_lshrrev_b32 v6, 2, v%d" % (8 + c), "v_bfi_b32 v6, v6, 0, s91", "v_or_b32 v%d, v6, v%d" % (HS[c], 8 + c)]
        for t in range(8):
            if G == 0: E("s_waitcnt lgkmcnt(%d)" % (7 - t))
            for d in range(2):
                T = 2 * G + d
                E("v_mfma_f32_16x16x32_bf16 %s, %s, %s, %s" % (vr(32 + 4 * T), ar(32 * T + 4 * t), FR(t), "0" if t == 0 else vr(32 + 4 * T)))
                for _ in range(2 if t >= 5 else 1):
                    if extra:
                        x = extra.pop(0)
                        if x: E(x)
        assert not extra
    lu = [u for u in range(64) if inlds(u)]
    nis = [0]
    def ldsread():
        if nis[0] >= len(lu): return
        u = lu[nis[0]]
        if L0: wait_tag('V%d' % u)
        E("ds_read_b128 %s, v3 offset:%d" % (vr(64 + 4 * (nis[0] % 4)), 4096 + lslot(u) * 1024)); nis[0] += 1
    for _ in range(4): ldsread()
    E("s_nop 3")
    for x in round_tile(6, False): E(x)
    for x in round_tile(7, False): E(x)
    E("v_mov_b32 v6, v12"); E("s_nop 1"); E("v_permlane16_swap_b32 v12, v6"); E("s_nop 1"); E("v_max_f32 v12, v12, v6")
    E("v_mov_b32 v6, v12"); E("s_nop 1"); E("v_permlane32_swap_b32 v12, v6"); E("v_mov_b32 v7, 0"); E("s_nop 0"); E("v_max_f32 v12, v12, v6")
    E("v_mul_f32 v14, s99, v12"); E("v_mov_b32 v6, 0")
    def soft(T):
        s = 32 + 4 * T
        fm = lambda a: "v_pk_fma_f32 %s, %s, s[98:99], v[14:15] op_sel:[0,1,0] op_sel_hi:[1,1,0] neg_lo:[0,0,1] neg_hi:[0,0,1]" % (vr(a, 2), vr(a, 2))
        ex = lambda a: "v_exp_f32 v%d, v%d" % (a, a)
        ad = lambda a: "v_pk_add_f32 v[6:7], v[6:7], %s" % vr(a, 2)
        return [[fm(s), fm(s + 2), ex(s), ex(s + 1)], [ex(s + 2), ex(s + 3), ad(s), "v_cvt_pk_bf16_f32 v%d, v%d, v%d" % (s, s, s + 1)],
                ["v_cvt_pk_bf16_f32 v%d, v%d, v%d" % (s + 1, s + 2, s + 3)], [ad(s + 2)]]
    def bmk(k):
        src = 32 + 4 * (k // 4) + ((k % 4) >> 1)
        return ["v_perm_b32 v%d, v%d, v%d, v%d" % (16 + 4 * (k & 1) + c, src, src, HS[c] if k & 1 else 8 + c) for c in range(4)]
    for g in soft(0):
        for x in g: E(x)
    for x in bmk(0): E(x)
    E("s_nop 0")
    for k in range(32):
        b = 16 + 4 * (k & 1)
        if L0: vgroup(2)
        for hf in range(2):
            u = 2 * k + hf
            if inlds(u):
                n = lu.index(u)
                E("s_waitcnt lgkmcnt(%d)" % (nis[0] - 1 - n)); A = vr(64 + 4 * (n % 4))
            else:
                if L0: wait_tag('V%d' % u)
                A = vr(144 + 4 * (k - 4))
            acc = vr(24 + 4 * hf)
            E("v_mfma_f32_16x16x32_bf16 %s, %s, %s, %s" % (acc, A, vr(b), "0" if k == 0 else acc))
            if inlds(u): ldsread()
            if hf == 0:
                if k < 31:
                    for x in bmk(k + 1): E(x)
            elif k < 28:
                for x in soft(k // 4 + 1)[k % 4]: E(x)
    E("v_add_f32 v13, v6, v7")
stamp(); stamp_n[0] -= OPT['stamps']
core(True)
E("s_branch Lepi")
Lb("Lqpoll1")
worker(0, 0, lambda: (poll([qload], lambda: check(range(16, 20))), E("ds_write_b128 v1, v[16:19] offset:%d" % QL)))
bar()
stamp()
core(False)
Lb("Lepi")
E("v_mov_b32 v6, v13"); E("s_nop 1"); E("v_permlane16_swap_b32 v13, v6"); E("s_nop 1"); E("v_add_f32 v13, v13, v6")
E("v_mov_b32 v6, v13"); E("s_nop 1"); E("v_permlane32_swap_b32 v13, v6"); E("s_nop 1"); E("v_add_f32 v13, v13, v6")
E("v_bfe_u32 v6, v0, 3, 1"); E("v_lshlrev_b32 v7, 10, v6"); E("v_bfe_u32 v1, v0, 4, 2"); E("v_lshl_add_u32 v7, v1, 5, v7")
E("v_and_b32 v1, 7, v0"); E("v_lshl_add_u32 v7, v1, 2, v7"); E("s_lshl_b32 s8, s7, 11"); E("v_add_u32 v7, s8, v7")
E("s_lshl_b32 s8, s7, 4"); E("v_lshl_add_u32 v6, v6, 3, s8")
E("s_barrier")
for hf in range(2):
    for r in range(4): E("ds_write_b32 v7, v%d offset:%d" % (24 + 4 * hf + r, OM + (r * 2 + hf) * 128))
E("s_mov_b64 exec, 0x101"); E("ds_write_b64 v6, v[12:13] offset:%d" % ML); E("s_mov_b64 exec, -1")
E("v_lshlrev_b32 v1, 3, v0"); E("v_lshrrev_b32 v2, 7, v0"); E("v_lshlrev_b32 v3, 3, v2")
E("v_lshlrev_b32 v6, 9, v2"); E("v_bfe_u32 v7, v0, 4, 1"); E("v_lshl_add_u32 v6, v7, 8, v6"); E("v_bfe_u32 v7, v0, 2, 2"); E("v_lshl_add_u32 v6, v7, 6, v6")
E("v_bfe_u32 v7, v0, 5, 2"); E("v_lshl_add_u32 v6, v7, 4, v6"); E("v_and_b32 v7, 3, v0"); E("v_lshl_add_u32 v6, v7, 2, v6")
E("v_lshlrev_b32 v7, 6, v2"); E("s_add_u32 s8, s84, s86"); E("s_add_u32 s9, s85, s86")
bar()
for w in range(4): E("ds_read_b64 %s, v3 offset:%d" % (vr(40 + 2 * w, 2), ML + 16 * w))
for w in range(4): E("ds_read_b64 %s, v1 offset:%d" % (vr(32 + 2 * w, 2), OM + 2048 * w))
E("s_waitcnt lgkmcnt(4)")
E("v_max_f32 v26, v40, v42"); E("v_max3_f32 v26, v26, v44, v46")
for w in range(4): E("v_sub_f32 v%d, v%d, v26" % (40 + 2 * w, 40 + 2 * w)); E("v_mul_f32 v%d, s99, v%d" % (40 + 2 * w, 40 + 2 * w))
for w in range(4): E("v_exp_f32 v%d, v%d" % (40 + 2 * w, 40 + 2 * w))
E("s_waitcnt lgkmcnt(0)")
E("v_mul_f32 v24, v40, v32"); E("v_mul_f32 v25, v40, v33"); E("v_mul_f32 v27, v40, v41")
for w in range(1, 4):
    E("v_fmac_f32 v24, v%d, v%d" % (40 + 2 * w, 32 + 2 * w)); E("v_fmac_f32 v25, v%d, v%d" % (40 + 2 * w, 33 + 2 * w)); E("v_fmac_f32 v27, v%d, v%d" % (40 + 2 * w, 41 + 2 * w))
E("v_cvt_pk_bf16_f32 v24, v24, v25"); E("v_min_u32 v24, -2, v24"); E("v_min_u32 v26, -2, v26"); E("v_min_u32 v27, -2, v27")
E("buffer_store_dword v24, v6, s[64:67], s8 offen sc1")
E("s_and_b32 s10, s7, 1"); E("s_cmp_lg_u32 s10, 0"); E("s_cbranch_scc1 Lnoml")
E("s_mov_b64 exec, 1"); E("buffer_store_dwordx2 v[26:27], v7, s[64:67], s9 offen sc1"); E("s_mov_b64 exec, -1")
Lb("Lnoml")
stamp()

if OPT['dbg']:
    E("s_cmp_lg_u32 s3, 0"); E("s_cbranch_scc1 Ldbg1"); dbgt(1); Lb("Ldbg1")
E("s_cmp_eq_u32 s12, 1"); E("s_cbranch_scc1 Lg")
E("s_cmp_eq_u32 s12, 0"); E("s_cbranch_scc1 Lq")
E("s_cmp_eq_u32 s12, 3"); E("s_cbranch_scc1 Lf")
lane("v15"); E("v_lshlrev_b32 v1, 3, v15"); E("v_and_b32 v2, 56, v1")
E("s_lshl_b32 s8, s7, 3"); E("s_add_u32 s8, s8, s4"); E("s_lshl_b32 s9, s8, 13"); E("s_add_u32 s9, s9, s86"); E("s_lshl_b32 s10, s88, 9"); E("s_add_u32 s9, s9, s10"); E("s_add_u32 s10, s9, 4096")
E("s_lshl_b32 s11, s8, 7"); E("s_add_u32 s11, s11, s86"); E("s_add_u32 s11, s11, 0x%x" % MLB); E("s_lshl_b32 s8, s88, 6"); E("s_add_u32 s11, s11, s8")
loads = ["buffer_load_dwordx2 v[32:33], v2, s[64:67], s11 offen sc1"]
loads += ["buffer_load_dwordx2 %s, v1, s[64:67], %s offen offset:%d sc1" % (vr(16 + 2 * s, 2), "s9" if s < 4 else "s10", (s % 4) * 1024) for s in range(8)]
poll(loads, lambda: check(range(16, 34)))
stamp()
D3 = ["quad_perm:[1,0,3,2] row_mask:0xf bank_mask:0xf", "quad_perm:[2,3,0,1] row_mask:0xf bank_mask:0xf", "row_half_mirror row_mask:0xf bank_mask:0xf"]
def unp(s):
    for q in range(2): E("v_lshlrev_b32 v%d, 16, v%d" % (40 + 4 * s + 2 * q, 16 + 2 * s + q)); E("v_and_b32 v%d, 0xffff0000, v%d" % (41 + 4 * s + 2 * q, 16 + 2 * s + q))
E("v_max_f32_dpp v6, v32, v32 " + D3[0]); unp(0)
E("v_max_f32_dpp v6, v6, v6 " + D3[1]); unp(1)
E("v_max_f32_dpp v6, v6, v6 " + D3[2]); unp(2)
E("v_sub_f32 v6, v32, v6"); E("v_mul_f32 v6, s99, v6"); E("v_exp_f32 v6, v6"); unp(3)
E("v_mul_f32 v7, v6, v33"); unp(4)
E("v_add_f32_dpp v7, v7, v7 " + D3[0]); unp(5)
E("v_add_f32_dpp v7, v7, v7 " + D3[1]); unp(6)
E("v_add_f32_dpp v7, v7, v7 " + D3[2]); unp(7)
for s in range(8): E("v_readlane_b32 s%d, v6, %d" % (16 + s, s))
E("v_rcp_f32 v7, v7")
for s in range(8):
    for q in range(4):
        if s == 0: E("v_mul_f32 v%d, s16, v%d" % (72 + q, 40 + q))
        else: E("v_fmac_f32 v%d, s%d, v%d" % (72 + q, 16 + s, 40 + 4 * s + q))
for q in range(4): E("v_mul_f32 v%d, v%d, v7" % (72 + q, 72 + q))
for q in range(2): E("v_cvt_pk_bf16_f32 v%d, v%d, v%d" % (16 + q, 72 + 2 * q, 73 + 2 * q))
E("s_mul_i32 s8, s7, %d" % PITCH); E("v_add_u32 v1, s8, v1")
E("ds_write_b64 v1, v[16:17] offset:%d" % ACT1)
bar()
def xatomic(base):
    E("v_rndne_f32 v25, v24"); E("v_sub_f32 v26, v24, v25"); E("v_cvt_i32_f32 v25, v25"); E("v_mul_f32 v26, s96, v26"); E("v_cvt_i32_f32 v24, v26")
    E("v_lshlrev_b32 v1, 12, v1"); E("v_lshl_add_u32 v1, v2, 3, v1")
    E("v_ashrrev_i32 v26, 31, v24"); E("v_add_u32 v25, v25, v26"); E("v_and_or_b32 v24, v24, s95, 1")
    E("s_lshl_b32 s8, s89, 3"); E("s_add_u32 s8, s8, s86"); E("s_add_u32 s8, s8, 0x%x" % base)
    E("buffer_atomic_add_x2 v[24:25], v1, s[64:67], s8 offen sc1")
dense(8, ACT1); xatomic(XS1)
stamp()
E("s_cmp_lg_u32 s88, 0"); E("s_cbranch_scc1 Lnext")
lane("v15"); E("v_min_u32 v1, 27, v15"); E("v_lshlrev_b32 v1, 4, v1")
E("s_lshl_b32 s8, s7, 12"); E("s_mul_i32 s9, s4, 448"); E("s_add_u32 s9, s9, s8"); E("s_add_u32 s9, s9, s86"); E("s_add_u32 s9, s9, 0x%x" % AB)
poll(["buffer_load_dwordx4 v[16:19], v1, s[64:67], s9 offen sc1"], lambda: check(range(16, 20)))
stamp()
E("s_mul_i32 s8, s7, %d" % PITCH); E("v_add_u32 v1, s8, v1")
E("ds_write_b128 v1, v[16:19] offset:%d" % ACT0)
bar()
dense(7, ACT0, RW + 32); xatomic(XS2)
stamp()
E("s_branch Lnext")
Lb("Lg")
xinit()
E("s_cmp_eq_u32 s3, 0"); E("s_cbranch_scc1 Lg1")
xfront([("0x%x" % XS2, 8)])
Lb("Lg1")
E("s_add_u32 s91, s86, 0x%x" % XS1)
xtrig("s91", 16)
xfront([("s91", 16)])
stamp()
xunpack(); layernorm(ACT0); bar()
dense(14, ACT0)
bf16r("v24", "v24"); E("s_nop 1"); E("v_mov_b32_dpp v28, v24 row_ror:8 row_mask:0xf bank_mask:0xf")
k2 = -2 * 0.7978845608028654 * 1.4426950408889634
E("v_mul_f32 v26, v24, v24"); E("v_mov_b32 v25, %s" % f32(k2)); E("v_fmac_f32 v25, %s, v26" % f32(k2 * 0.044715))
E("v_mul_f32 v25, v25, v24"); E("v_exp_f32 v25, v25"); E("s_nop 0"); E("v_add_f32 v25, 1.0, v25"); E("v_rcp_f32 v25, v25"); E("s_nop 0")
E("v_mul_f32 v25, v25, v24"); bf16r("v25", "v25"); E("v_mul_f32 v25, v25, v28")
E("v_lshlrev_b32 v1, 12, v1"); E("v_lshl_add_u32 v1, v2, 1, v1")
E("v_mov_b32_dpp v26, v25 quad_perm:[1,0,3,2] row_mask:0xf bank_mask:0xf")
E("v_cvt_pk_bf16_f32 v24, v25, v26"); E("v_min_u32 v24, -2, v24")
E("s_add_u32 s8, s86, s87"); E("s_add_u32 s8, s8, 0x%x" % AB)
E("s_mov_b32 exec_lo, 0x00550055"); E("s_mov_b32 exec_hi, 0x00550055")
E("buffer_store_dword v24, v1, s[64:67], s8 offen sc1"); E("s_mov_b64 exec, -1")
stamp()
E("s_branch Lnext")
Lb("Lq")
E("s_cmp_lg_u32 s3, 0"); E("s_cbranch_scc1 Lend")
xinit()
xtrig("0x%x" % XS2, 8)
xfront([("0x%x" % XS1, 16), ("0x%x" % XS2, 8)])
stamp()
xunpack(); layernorm(ACT0); bar()
E("s_mov_b32 s82, 0x%x" % QB1)
qbody()
stamp()
E("s_branch Lnext")
Lb("Lf")
E("s_cmp_eq_u32 s3, 0"); E("s_cbranch_scc1 Lnext")
E("s_cmp_lg_u32 s2, 255"); E("s_cbranch_scc1 Lend")
xinit()
xfront([("0x%x" % XS1, 16), ("0x%x" % XS2, 8)])
xfront([("0x%x" % (XS1 + LSTEP), 16)], OPT['lazy'])
xfront([("0x%x" % (XS2 + LSTEP), 8)])
E("v_lshrrev_b32 v1, 1, v1"); E("v_lshrrev_b32 v2, 1, v2"); E("s_mul_i32 s8, s7, 896")
E("buffer_store_dwordx2 v[8:9], v1, s[72:75], s8 offen")
E("s_mov_b32 exec_hi, 0xffff")
E("buffer_store_dwordx2 v[10:11], v2, s[72:75], s8 offen")
stamp()
dbgt(2)
E("s_branch Lend")
Lb("Lnext")
E("s_cmp_lg_u32 s3, 0"); E("s_cbranch_scc1 Lend")
E("s_mov_b32 s3, 1"); E("s_mov_b32 s86, 0x%x" % LSTEP); E("s_mov_b32 s82, 0x%x" % QB1)
E("s_branch Lloop")

Lb("Lend")
E("s_endpgm")
out += ['.section .rodata,"a"', ".p2align 6", ".amdhsa_kernel %s_kernel" % NAME,
        "  .amdhsa_next_free_vgpr 512", "  .amdhsa_next_free_sgpr 102", "  .amdhsa_accum_offset 256",
        "  .amdhsa_group_segment_fixed_size 0", "  .amdhsa_kernarg_size 96", "  .amdhsa_user_sgpr_count 2",
        "  .amdhsa_user_sgpr_kernarg_segment_ptr 1", "  .amdhsa_system_sgpr_workgroup_id_x 1", ".end_amdhsa_kernel"]
open(sys.argv[1], "w").write("\n".join(out) + "\n")
```

```python
import sys, struct
NAME = "interleave_layers__gqa_block_cached__geglu_ffn__decode"
OPT = dict(nt=1, stamps=0, p1=40, pq=60, vpre=16, lazy=8, k0=0, k1=6, k2=6, k3=4, trig=1, wnt=0, dbg=0, fine=0, late=8, R=1, np=3, nq=2, no=2, nx=2, rtt=21)
for a in sys.argv[2:]:
    k, v = a.split('='); OPT[k] = int(v)
out = []
def E(s): out.append("    " + s)
def Lb(s): out.append(s + ":")
def f32(x): return "0x%08x" % struct.unpack('<I', struct.pack('<f', x))[0]
NT = ["", " nt", " sc1 nt", " sc0 sc1 nt", " sc0 nt", " sc1"][OPT['nt']]; WNT = ["", " nt"][OPT['wnt']]
NLDSV = 36; VBASE = 16384; LDS_TOTAL = 163840
ACT0 = 0; OM = 0; ACT1 = 8192; QL = 8192; XRES = 12544; ML = 16128; PITCH = 1088
OB = 0; XS1 = 0x60000; XS2 = 0x70000; AB = 0x58000; MLB = 0x5C000; QB1 = 0x48000; QB0 = 0x100000; LSTEP = 0x80000; STP = 0x300000
RW = 80
vm = []
def VM(tag, s): vm.append(tag); E(s)
def wait_tag(tag):
    idx = max(i for i, t in enumerate(vm) if t == tag)
    E("s_waitcnt vmcnt(%d)" % min(len(vm) - 1 - idx, 63))
uid = [0]
def lab(p): uid[0] += 1; return "L%s%d" % (p, uid[0])
stamp_n = [0]
def stamp(wave=0):
    if not OPT['stamps']: return
    n = stamp_n[0]; stamp_n[0] += 1; l = lab("st")
    E("s_cmp_lg_u32 s7, %d" % wave); E("s_cbranch_scc1 " + l)
    E("s_memrealtime s[8:9]"); E("s_waitcnt lgkmcnt(0)")
    E("v_mov_b32 v6, s8"); E("s_lshl_b32 s9, s2, 8"); E("s_lshl_b32 s8, s3, 7"); E("s_add_u32 s9, s9, s8")
    E("s_add_u32 s9, s9, 0x%x" % (STP + n * 4)); E("v_mov_b32 v7, 0")
    E("s_mov_b64 exec, 1"); E("buffer_store_dword v6, v7, s[64:67], s9 offen"); E("s_mov_b64 exec, -1")
    Lb(l)
def bf16r(dst, src): E("v_cvt_pk_bf16_f32 %s, %s, %s" % (dst, src, src)); E("v_lshlrev_b32 %s, 16, %s" % (dst, dst))
def vr(a, n=4): return "v[%d:%d]" % (a, a + n - 1)
def ar(a, n=4): return "a[%d:%d]" % (a, a + n - 1)
def poll(loads, chk, sleep=0):
    l = lab("poll")
    E("s_mov_b32 s98, 0"); Lb(l)
    for s in loads: E(s)
    E("s_waitcnt vmcnt(0)"); chk()
    E("s_cbranch_vccz %sd" % l)
    if sleep: E("s_sleep %d" % sleep)
    E("s_add_u32 s98, s98, 1"); E("s_cmp_lt_u32 s98, 0x8000"); E("s_cbranch_scc1 " + l)
    Lb(l + "d")
def ppoll(n, loads, chk, succ):
    l = lab("pp"); m = len(loads(0))
    E("s_mov_b32 s98, 0")
    for i in range(n):
        if i: E("s_sleep %d" % (OPT['rtt'] // n))
        for x in loads(i): E(x)
    Lb(l)
    for i in range(n):
        E("s_waitcnt vmcnt(%d)" % ((n - 1) * m)); chk(i)
        E("s_cbranch_vccz %s_%d" % (l, i))
        for x in loads(i): E(x)
    E("s_add_u32 s98, s98, 1"); E("s_cmp_lt_u32 s98, 0x4000"); E("s_cbranch_scc1 " + l)
    for i in range(n - 1, -1, -1):
        Lb("%s_%d" % (l, i)); succ(i)
        if i: E("s_branch %sd" % l)
    Lb(l + "d")
def check(regs, t="v15"):
    r = list(regs)
    E("v_max3_u32 %s, v%d, v%d, v%d" % (t, r[0], r[1], r[2])); r = r[3:]
    while len(r) >= 2: E("v_max3_u32 %s, %s, v%d, v%d" % (t, t, r[0], r[1])); r = r[2:]
    if r: E("v_max_u32 %s, %s, v%d" % (t, t, r[0]))
    E("v_cmp_eq_u32 vcc, -1, %s" % t)
kpos = [0]
def kload(n):
    T, t = n // 8, n % 8
    E("s_add_u32 s10, s80, %d" % (T * 8192))
    VM('K', "buffer_load_dwordx4 %s, v4, s[40:43], s10 offen offset:%d%s" % (ar(4 * n), 64 * t, NT))
def kgroup(cnt, cond=True):
    l = lab("kg")
    if cond: E("s_cmp_lg_u32 s3, 0"); E("s_cbranch_scc1 " + l)
    for _ in range(cnt): kload(kpos[0]); kpos[0] += 1
    if cond: Lb(l)
def inlds(u): return u % 2 == 0 or u < 8
def lslot(u): return u if u < 8 else 8 + (u // 2 - 4)
def vload(u):
    T, r, hf = u // 8, (u // 2) % 4, u % 2
    E("s_add_u32 s10, s80, %d" % (T * 8192))
    io = r * 512 + hf * 256
    if inlds(u):
        E("s_add_u32 m0, s81, %d" % (lslot(u) * 1024 + 4096 - io)); E("s_nop 0")
        VM('V%d' % u, "buffer_load_dwordx4 v5, s[44:47], s10 offen offset:%d%s lds" % (io, NT))
    else:
        VM('V%d' % u, "buffer_load_dwordx4 %s, v5, s[44:47], s10 offen offset:%d%s" % (vr(144 + 4 * (u // 2 - 4)), io, NT))
vpos = [0]
def vgroup(cnt):
    cnt = min(cnt, 64 - vpos[0])
    for _ in range(cnt): vload(vpos[0]); vpos[0] += 1
def lane(dst): E("v_and_b32 %s, 63, v0" % dst)
def xaddr():
    lane("v15"); E("v_lshlrev_b32 v1, 4, v15"); E("v_min_u32 v2, 47, v15"); E("v_lshlrev_b32 v2, 4, v2"); E("v_add_u32 v2, 1024, v2")
    E("s_mul_i32 s8, s7, 896"); E("s_add_u32 s8, s8, %d" % XRES)
    E("v_lshrrev_b32 v3, 1, v1"); E("v_add_u32 v3, s8, v3"); E("v_lshrrev_b32 v14, 1, v2"); E("v_add_u32 v14, s8, v14")
def xinit():
    xaddr()
    E("ds_read_b64 v[8:9], v3"); E("ds_read_b64 v[10:11], v14")
    E("v_lshlrev_b32 v6, 1, v1"); E("v_lshlrev_b32 v7, 1, v2")
def xtrig(off, P):
    if not OPT['trig']: return
    E("s_add_u32 s9, s15, %s" % off); E("s_and_b32 s8, s2, 7"); E("s_mul_i32 s8, s8, 3"); E("s_bfe_u32 s10, s2, 0x20003"); E("s_add_u32 s8, s8, s10")
    E("s_lshl_b32 s8, s8, 7"); E("s_add_u32 s9, s9, s8"); E("v_mov_b32 v25, 0")
    ppoll(OPT['np'], lambda i: ["buffer_load_dword v%d, v25, s[64:67], s9 offen sc1" % (72 + i)],
          lambda i: (E("v_and_b32 v24, %d, v%d" % (P, 72 + i)), E("v_cmp_eq_u32 vcc, 0, v24")), lambda i: None)
def xfront(lst, sleep=0, pipe=1):
    loads = []
    for n, (off, P) in enumerate(lst):
        E("s_add_u32 s%d, s15, %s" % (9 + n, off))
        loads += ["buffer_load_dwordx4 %s, v%d, s[64:67], s%d offen offset:%d sc1" % (vr(32 + 16 * n + 4 * i), 6 + i // 2, 9 + n, 16 * (i & 1)) for i in range(4)]
    def chk():
        for n, (off, P) in enumerate(lst):
            o = 32 + 16 * n
            E("v_and_b32 v24, v%d, v%d" % (o, o + 2)); E("v_and_b32 v25, v%d, v%d" % (o + 4, o + 6)); E("v_and_b32 v26, v%d, v%d" % (o + 8, o + 10)); E("v_and_b32 v27, v%d, v%d" % (o + 12, o + 14))
            E("v_and_b32 v24, v24, v25"); E("v_and_b32 v26, v26, v27"); E("v_and_b32 v24, v24, v26"); E("v_and_b32 v%d, %d, v24" % (28 + n, P))
        if len(lst) == 2: E("v_min_u32 v28, v28, v29")
        E("v_cmp_eq_u32 vcc, 0, v28")
    if pipe > 1:
        P = lst[0][1]
        def chk2(i):
            o = 32 + 16 * i
            E("v_and_b32 v24, v%d, v%d" % (o, o + 2)); E("v_and_b32 v25, v%d, v%d" % (o + 4, o + 6)); E("v_and_b32 v26, v%d, v%d" % (o + 8, o + 10)); E("v_and_b32 v27, v%d, v%d" % (o + 12, o + 14))
            E("v_and_b32 v24, v24, v25"); E("v_and_b32 v26, v26, v27"); E("v_and_b32 v24, v24, v26"); E("v_and_b32 v28, %d, v24" % P); E("v_cmp_eq_u32 vcc, 0, v28")
        def dec(i):
            o = 32 + 16 * i
            for q in range(8): E("v_lshrrev_b32 v%d, 31, v%d" % (16 + q, o + 2 * q)); E("v_cvt_f32_i32 v%d, v%d" % (o + 2 * q, o + 2 * q))
            for q in range(8): E("v_add_u32 v%d, v%d, v%d" % (16 + q, 16 + q, o + 1 + 2 * q))
            for q in range(8): E("v_cvt_f32_i32 v%d, v%d" % (16 + q, 16 + q))
            for q in range(8): E("v_fmac_f32 v%d, s97, v%d" % (16 + q, o + 2 * q))
        ppoll(pipe, lambda i: ["buffer_load_dwordx4 %s, v%d, s[64:67], s9 offen offset:%d sc1" % (vr(32 + 16 * i + 4 * j), 6 + j // 2, 16 * (j & 1)) for j in range(4)], chk2, dec)
    else: poll(loads, chk, sleep)
    E("s_waitcnt lgkmcnt(0)")
    for n in range(len(lst)):
        o = 32 + 16 * n
        if pipe == 1:
            for q in range(8): E("v_lshrrev_b32 v%d, 31, v%d" % (16 + q, o + 2 * q)); E("v_cvt_f32_i32 v%d, v%d" % (o + 2 * q, o + 2 * q))
            for q in range(8): E("v_add_u32 v%d, v%d, v%d" % (16 + q, 16 + q, o + 1 + 2 * q))
            for q in range(8): E("v_cvt_f32_i32 v%d, v%d" % (16 + q, 16 + q))
            for q in range(8): E("v_fmac_f32 v%d, s97, v%d" % (16 + q, o + 2 * q))
        for q in range(4):
            E("v_cvt_pk_bf16_f32 v24, v%d, v%d" % (16 + 2 * q, 17 + 2 * q))
            E("v_lshlrev_b32 v25, 16, v24"); E("v_and_b32 v26, 0xffff0000, v24")
            E("v_lshlrev_b32 v27, 16, v%d" % (8 + q)); E("v_and_b32 v28, 0xffff0000, v%d" % (8 + q))
            E("v_add_f32 v25, v25, v27"); E("v_add_f32 v26, v26, v28")
            E("v_cvt_pk_bf16_f32 v%d, v25, v26" % (8 + q))
def xunpack():
    for q in range(4): E("v_lshlrev_b32 v%d, 16, v%d" % (16 + 2 * q, 8 + q)); E("v_and_b32 v%d, 0xffff0000, v%d" % (17 + 2 * q, 8 + q))
    E("ds_write_b64 v3, v[8:9]"); E("ds_write_b64 v14, v[10:11]")
def layernorm(act):
    E("v_add_f32 v24, v16, v17"); E("v_add_f32 v26, v18, v19"); E("v_mul_f32 v25, v16, v16"); E("v_add_f32 v24, v24, v26")
    for q in (17, 18, 19): E("v_fmac_f32 v25, v%d, v%d" % (q, q))
    E("s_mov_b32 exec_hi, 0xffff")
    for q in (20, 21, 22, 23): E("v_add_f32 v24, v24, v%d" % q); E("v_fmac_f32 v25, v%d, v%d" % (q, q))
    E("s_mov_b32 exec_hi, -1"); E("s_nop 1")
    for c in ["row_shr:1 row_mask:0xf bank_mask:0xf bound_ctrl:0", "row_shr:2 row_mask:0xf bank_mask:0xf bound_ctrl:0", "row_shr:4 row_mask:0xf bank_mask:0xf bound_ctrl:0",
              "row_shr:8 row_mask:0xf bank_mask:0xf bound_ctrl:0", "row_bcast:15 row_mask:0xa bank_mask:0xf", "row_bcast:31 row_mask:0xc bank_mask:0xf"]:
        E("v_add_f32_dpp v24, v24, v24 " + c); E("v_add_f32_dpp v25, v25, v25 " + c); E("s_nop 0")
    E("v_readlane_b32 s8, v24, 63"); E("v_readlane_b32 s9, v25, 63")
    E("s_mul_i32 s10, s7, %d" % PITCH); E("s_add_u32 s10, s10, %d" % act)
    E("v_mov_b32 v26, %s" % f32(1 / 448)); E("v_mul_f32 v24, s8, v26"); E("v_mul_f32 v25, s9, v26")
    E("v_fma_f32 v25, -v24, v24, v25"); E("v_max_f32 v25, 0, v25")
    E("v_cvt_pk_bf16_f32 v26, v24, v25"); E("v_lshlrev_b32 v24, 16, v26"); E("v_and_b32 v25, 0xffff0000, v26")
    E("v_add_f32 v25, %s, v25" % f32(1e-5)); bf16r("v25", "v25")
    E("v_sqrt_f32 v25, v25")
    for q in range(8): E("v_sub_f32 v%d, v%d, v24" % (16 + q, 16 + q))
    bf16r("v25", "v25"); E("v_rcp_f32 v25, v25")
    for q in range(4):
        E("v_cvt_pk_bf16_f32 v26, v%d, v%d" % (16 + 2 * q, 17 + 2 * q)); E("v_lshlrev_b32 v%d, 16, v26" % (16 + 2 * q)); E("v_and_b32 v%d, 0xffff0000, v26" % (17 + 2 * q))
    for q in range(8): E("v_mul_f32 v%d, v%d, v25" % (16 + q, 16 + q))
    for q in range(4): E("v_cvt_pk_bf16_f32 v%d, v%d, v%d" % (24 + q, 16 + 2 * q, 17 + 2 * q))
    E("v_lshrrev_b32 v1, 1, v1"); E("v_add_u32 v1, s10, v1"); E("v_lshrrev_b32 v2, 1, v2"); E("v_add_u32 v2, s10, v2")
    E("ds_write_b64 v1, v[24:25]"); E("ds_write_b64 v2, v[26:27]")
def bar(): E("s_waitcnt lgkmcnt(0)"); E("s_barrier")
def dense(T, act, RW=80, sl=(32, 36, 40, 44, 48, 52, 56, 60)):
    n = len(sl)
    E("v_bfe_u32 v1, v0, 2, 2"); E("v_mul_u32_u24 v1, %d, v1" % PITCH); E("v_bfe_u32 v2, v0, 4, 2"); E("v_lshl_add_u32 v1, v2, 4, v1")
    bar()
    for t in range(min(n, T)): E("ds_read_b128 %s, v1 offset:%d" % (vr(sl[t]), act + 64 * t))
    issued = min(n, T)
    for t in range(T):
        E("s_waitcnt lgkmcnt(%d)" % (issued - 1 - t))
        acc = vr(24 + 4 * (t & 1))
        E("v_mfma_f32_16x16x32_bf16 %s, %s, %s, %s" % (acc, vr(sl[t % n]), vr(RW + 4 * t), "0" if t < 2 else acc))
        if issued < T: E("ds_read_b128 %s, v1 offset:%d" % (vr(sl[issued % n]), act + 64 * issued)); issued += 1
    E("v_bfe_u32 v1, v0, 4, 2"); E("v_and_b32 v2, 15, v0"); E("s_nop 6"); E("v_add_f32 v24, v24, v28")
def worker(wave, limit, body):
    l = lab("wk")
    E("s_cmp_lg_u32 s7, %d" % wave); E("s_cbranch_scc1 " + l)
    if limit: E("s_cmp_ge_u32 s13, %d" % limit); E("s_cbranch_scc1 " + l)
    body(); Lb(l)

hdr = open("cdna_kernels/%s.s.ref" % NAME).read().split("\n")
for l in hdr:
    if l.startswith("; @launch"): out.append("; @launch grid=(256,1,1) block=(256,1,1) lds=%d" % LDS_TOTAL)
    elif l.startswith(";"): out.append(l)
    else: break
out += ['.amdgcn_target "amdgcn-amd-amdhsa--gfx950"', ".text", ".globl %s_kernel" % NAME, ".p2align 8",
        ".type %s_kernel,@function" % NAME, "%s_kernel:" % NAME]
E("s_cmp_ge_u32 s2, 256"); E("s_cbranch_scc1 Lend")
if OPT['dbg']: E("s_memrealtime s[100:101]")
def dbgt(n):
    if not OPT['dbg']: return
    l = lab("dbg")
    E("s_cmp_lg_u32 s7, 0"); E("s_cbranch_scc1 " + l)
    E("s_memrealtime s[8:9]"); E("s_waitcnt lgkmcnt(0)"); E("s_sub_u32 s8, s8, s100"); E("v_mov_b32 v6, s8"); E("v_mov_b32 v7, 0")
    E("s_mov_b64 exec, 1"); E("buffer_atomic_umax v6, v7, s[76:79], 0 offen offset:%d sc1" % (4 * n)); E("s_mov_b64 exec, -1")
    Lb(l)
E("s_load_dwordx16 s[16:31], s[0:1], 0"); E("s_load_dwordx8 s[32:39], s[0:1], 64")
E("v_lshrrev_b32 v1, 6, v0"); E("s_and_b32 s4, s2, 7"); E("v_readfirstlane_b32 s7, v1")
E("s_lshr_b32 s13, s2, 3"); E("s_and_b32 s5, s13, 3"); E("s_lshr_b32 s6, s2, 5"); E("s_mov_b32 s3, 0")
E("v_and_b32 v1, 15, v0"); E("v_bfe_u32 v2, v0, 4, 2")
E("v_lshlrev_b32 v4, 9, v1"); E("v_lshl_add_u32 v4, v2, 4, v4")
E("v_lshlrev_b32 v5, 11, v2"); E("v_lshl_add_u32 v5, v1, 4, v5")
E("s_lshl_b32 s8, s5, 3"); E("s_add_u32 s8, s8, s4"); E("s_lshl_b32 s9, s8, 21"); E("s_lshl_b32 s10, s6, 18"); E("s_add_u32 s9, s9, s10")
E("s_lshl_b32 s80, s7, 16"); E("s_mul_i32 s81, s7, %d" % (NLDSV * 1024)); E("s_add_u32 s81, s81, %d" % (VBASE - 4096))

E("s_lshl_b32 s84, s8, 13"); E("s_lshl_b32 s10, s6, 10"); E("s_add_u32 s84, s84, s10")
E("s_lshl_b32 s85, s8, 7"); E("s_lshl_b32 s10, s6, 3"); E("s_add_u32 s85, s85, s10"); E("s_add_u32 s85, s85, 0x%x" % MLB)
E("s_mov_b32 s86, 0")
E("s_mov_b32 s82, 0x%x" % QB0)
E("s_lshl_b32 s11, s7, 4")
E("s_lshl_b32 s83, s2, 7"); E("s_lshl_b32 s10, s7, 5"); E("s_add_u32 s83, s83, s10")
E("s_sub_u32 s87, s2, 64"); E("s_lshl_b32 s87, s87, 6"); E("s_add_u32 s87, s87, s11")
E("s_max_u32 s14, s13, 15"); E("s_sub_u32 s14, s14, 15"); E("s_min_u32 s14, s14, 13")
E("s_cmp_ge_u32 s14, 7"); E("s_cselect_b32 s88, 1, 0"); E("s_mul_i32 s10, s88, 7"); E("s_sub_u32 s14, s14, s10")
E("s_lshl_b32 s89, s14, 6"); E("s_add_u32 s89, s89, s11")
E("s_mov_b32 s12, 0"); E("s_cmp_ge_u32 s13, 8"); E("s_cselect_b32 s12, 1, s12"); E("s_cmp_ge_u32 s13, 15"); E("s_cselect_b32 s12, 2, s12")
E("s_cmp_ge_u32 s13, 29"); E("s_cselect_b32 s12, 3, s12")
E("s_mov_b32 s99, %s" % f32(0.0625 * 1.4426950408889634))
E("s_and_b32 s15, s13, %d" % (OPT['R'] - 1)); E("s_lshl_b32 s15, s15, 14"); E("s_lshl_b32 s10, s7, 12"); E("s_add_u32 s15, s15, s10")
E("s_mov_b32 s97, %s" % f32(2.0 ** -32)); E("s_mov_b32 s96, %s" % f32(2.0 ** 32)); E("s_movk_i32 s95, 0xffe0")
E("s_waitcnt lgkmcnt(0)")
def srd(d, lo, hi, n, add=None):
    if add: E("s_add_u32 s%d, s%d, %s" % (d, lo, add)); E("s_addc_u32 s%d, s%d, 0" % (d + 1, hi))
    else: E("s_mov_b32 s%d, s%d" % (d, lo)); E("s_mov_b32 s%d, s%d" % (d + 1, hi))
    E("s_mov_b32 s%d, 0x%x" % (d + 2, n)); E("s_mov_b32 s%d, 0x00020000" % (d + 3))
srd(40, 18, 19, 262144, "s9"); srd(44, 20, 21, 262144, "s9")
srd(64, 38, 39, 0x400000); srd(68, 16, 17, 3584); srd(72, 34, 35, 3584); srd(76, 36, 37, 256)
stamp()
kgroup(OPT['k0'], False)
xaddr()
E("v_lshrrev_b32 v6, 1, v1"); E("v_lshrrev_b32 v7, 1, v2"); E("s_mul_i32 s8, s7, 896")
VM('x', "buffer_load_dwordx2 v[8:9], v6, s[68:71], s8 offen"); VM('x', "buffer_load_dwordx2 v[10:11], v7, s[68:71], s8 offen")
lane("v15"); E("v_lshrrev_b32 v12, 3, v15"); E("v_and_b32 v13, 7, v15")
for m in range(4): E("v_xor_b32 v%d, %d, v13" % (16 + m, 2 * m))
srd(48, 22, 23, 448 * 4096 * 2); E("s_lshl_b32 s92, s2, 7"); E("s_movk_i32 s93, 8192"); E("s_lshl_b32 s10, s7, 7")
E("s_cmp_eq_u32 s12, 0"); E("s_cbranch_scc1 Lwsel")
E("s_cmp_eq_u32 s12, 1"); E("s_cbranch_scc1 Lwg")
E("s_movk_i32 s93, 896"); E("s_and_b32 s10, s7, 1"); E("s_lshl_b32 s10, s10, 7")
E("s_mov_b32 s48, s24"); E("s_mov_b32 s49, s25"); E("s_mov_b32 s50, 0x%x" % (4096 * 448 * 2))
E("s_lshl_b32 s8, s4, 1"); E("s_add_u32 s8, s8, s88"); E("s_mul_i32 s92, s8, %d" % (256 * 896)); E("s_lshl_b32 s8, s14, 7"); E("s_add_u32 s92, s92, s8")
E("s_cmp_eq_u32 s12, 3"); E("s_cselect_b32 s50, 0, s50")
E("s_cmp_lt_u32 s7, 2"); E("s_cbranch_scc1 Lwsel")
E("s_mov_b32 s48, s32"); E("s_mov_b32 s49, s33"); E("s_mov_b32 s50, 0x%x" % (1792 * 448 * 2))
E("s_cmp_lg_u32 s88, 0"); E("s_cselect_b32 s50, 0, s50")
E("s_mul_i32 s92, s4, %d" % (224 * 896)); E("s_add_u32 s92, s92, s8")
Lb("Lwsel")
E("s_mov_b32 s52, s48"); E("s_mov_b32 s53, s49"); E("s_lshl_b32 s94, s93, 3")
E("s_branch Lwsel2")
Lb("Lwg")
E("s_mov_b32 s48, s28"); E("s_mov_b32 s49, s29"); E("s_mov_b32 s52, s30"); E("s_mov_b32 s53, s31"); E("s_mov_b32 s50, 0x%x" % (448 * 1792 * 2))
E("s_sub_u32 s92, s2, 64"); E("s_lshl_b32 s92, s92, 6"); E("s_movk_i32 s93, 3584"); E("s_mov_b32 s94, 0")
E("v_lshrrev_b32 v12, 2, v15"); E("v_and_b32 v13, 3, v15"); E("v_lshrrev_b32 v6, 5, v15"); E("v_xor_b32 v13, v6, v13")
for m in range(4): E("v_xor_b32 v%d, %d, v13" % (16 + m, 2 * (m >> 1)))
Lb("Lwsel2")
E("s_mov_b32 s54, s50"); E("s_mov_b32 s55, 0x00020000")
E("s_mul_i32 s10, s10, s93"); E("s_add_u32 s92, s92, s10"); E("s_add_u32 s94, s94, s92")
E("v_mul_lo_u32 v12, v12, s93"); E("s_lshl_b32 s93, s93, 4")
for m in range(4): E("v_lshl_add_u32 v%d, v%d, 4, v12" % (16 + m, 16 + m))
E("s_lshl_b32 s11, s7, 14"); E("s_add_u32 s11, s11, %d" % VBASE)
for f in range(8):
    E("s_add_u32 m0, s11, %d" % (2048 * f)); E("s_nop 0")
    VM('w', "buffer_load_dwordx4 v%d, s[48:51], s92 offen%s lds" % (16 + (2 * f) % 4, WNT))
    E("s_add_u32 m0, s11, %d" % (2048 * f + 1024)); E("s_nop 0")
    VM('w', "buffer_load_dwordx4 v%d, s[52:55], s94 offen%s lds" % (16 + (2 * f + 1) % 4, WNT))
    if f < 7: E("s_add_u32 s92, s92, s93"); E("s_add_u32 s94, s94, s93")
    if f == 3:
        E("s_and_b32 s8, s2, 0x60"); E("s_cmp_eq_u32 s8, 0x60"); E("s_cselect_b32 s8, 0, -1")
        for r in range(4): E("v_mov_b32 v%d, s8" % (24 + r))
        E("v_lshlrev_b32 v7, 4, v0"); E("s_lshl_b32 s8, s2, 12")
        VM('clr', "buffer_store_dwordx4 v[24:27], v7, s[64:67], s8 offen sc1")
        E("s_cmp_lg_u32 s12, 0"); E("s_cbranch_scc1 Lnoclrq")
        E("v_bfe_u32 v12, v0, 4, 2"); E("v_and_b32 v13, 15, v0"); E("v_lshlrev_b32 v12, 13, v12"); E("v_lshl_add_u32 v12, v13, 1, v12"); E("s_add_u32 s8, s82, s83")
        E("s_mov_b32 exec_lo, 0x55555555"); E("s_mov_b32 exec_hi, 0x55555555")
        E("buffer_store_dword v24, v12, s[64:67], s8 offen sc1"); E("s_mov_b64 exec, -1")
        Lb("Lnoclrq")
def qaddr(): E("v_lshlrev_b32 v1, 13, v1"); E("v_lshl_add_u32 v1, v2, 1, v1"); E("s_add_u32 s8, s82, s83"); E("s_mov_b32 exec_lo, 0x55555555"); E("s_mov_b32 exec_hi, 0x55555555")
kgroup(OPT['k1'], False)
stamp()
wait_tag('x')
xunpack()
E("s_cmp_lg_u32 s12, 0"); E("s_cbranch_scc1 Lnoln0")
layernorm(ACT0)
Lb("Lnoln0")
kgroup(OPT['k2'], False)
E("v_bfe_u32 v12, v0, 4, 2"); E("v_bfe_u32 v13, v0, 2, 2"); E("v_xor_b32 v7, s7, v12"); E("v_and_b32 v15, 3, v0")
E("v_lshl_add_u32 v6, v12, 3, v13"); E("v_lshlrev_b32 v6, 7, v6"); E("v_lshl_add_u32 v6, v7, 5, v6"); E("v_lshl_add_u32 v6, v15, 3, v6"); E("v_add_u32 v16, 512, v6")
E("s_cmp_lg_u32 s12, 1"); E("s_cbranch_scc1 Ltra")
E("v_and_b32 v6, 1, v12"); E("v_lshl_add_u32 v6, v6, 3, v13"); E("v_lshlrev_b32 v6, 6, v6"); E("v_lshrrev_b32 v12, 1, v12"); E("v_lshl_add_u32 v6, v12, 11, v6")
E("v_lshl_add_u32 v6, v7, 4, v6"); E("v_lshrrev_b32 v12, 1, v15"); E("v_lshl_add_u32 v6, v12, 10, v6"); E("v_and_b32 v12, 1, v15"); E("v_lshl_add_u32 v6, v12, 3, v6"); E("v_add_u32 v16, 256, v6")
Lb("Ltra")
E("v_add_u32 v6, %d, v6" % VBASE); E("v_add_u32 v16, %d, v16" % VBASE)
wait_tag('w')
E("s_barrier")
for f in range(16):
    E("ds_read_b64_tr_b16 %s, v6 offset:%d" % (vr(RW + 4 * f, 2), f * 4096)); E("ds_read_b64_tr_b16 %s, v16 offset:%d" % (vr(RW + 4 * f + 2, 2), f * 4096))
    if f % 4 == 3 and f < 15: E("s_waitcnt lgkmcnt(4)")
kgroup(OPT['k3'], False)
bar()
def sig():
    E("s_mov_b64 exec, 1"); E("s_add_u32 s9, s4, 8"); E("s_cmp_eq_u32 s12, 0"); E("s_cselect_b32 s9, s13, s9"); E("s_lshl_b32 s9, s9, 4"); E("v_mov_b32 v25, 1"); E("v_mov_b32 v26, 0")
    E("buffer_atomic_add v25, v26, s[76:79], s9 offen sc1"); E("s_mov_b64 exec, -1")
worker(0, 0, sig)
def qbody():
    dense(14, ACT0)
    E("s_nop 1"); E("v_mov_b32_dpp v25, v24 quad_perm:[1,0,3,2] row_mask:0xf bank_mask:0xf")
    E("v_cvt_pk_bf16_f32 v24, v24, v25"); E("v_min_u32 v24, -2, v24"); qaddr()
    E("buffer_store_dword v24, v1, s[64:67], s8 offen sc1"); E("s_mov_b64 exec, -1")
E("s_cmp_lg_u32 s12, 0"); E("s_cbranch_scc1 Lnoq0")
qbody()
Lb("Lnoq0")
dbgt(3)
stamp()
Lb("Lloop")

lane("v15"); E("v_lshlrev_b32 v1, 4, v15"); E("v_add_u32 v3, s81, v1")
E("v_bfe_u32 v2, v0, 3, 1"); E("v_lshlrev_b32 v2, 9, v2"); E("v_bfe_u32 v6, v0, 4, 2"); E("v_lshl_add_u32 v2, v6, 4, v2")
E("v_and_b32 v6, 1, v0"); E("v_cmp_eq_u32 vcc, 0, v6"); E("v_mov_b32 v7, 0x01000c0c"); E("v_mov_b32 v12, 0x0c0c0100"); E("v_cndmask_b32 v7, v7, v12, vcc")
E("v_bfe_u32 v6, v0, 1, 2"); E("v_mov_b32 v12, 0x0c0c0c0c"); E("s_mov_b32 s91, 0x02020202")
for r in range(4): E("v_cmp_eq_u32 vcc, %d, v6" % r); E("s_nop 1"); E("v_cndmask_b32 v%d, v12, v7, vcc" % (8 + r))
E("s_lshl_b32 s8, s5, 13"); E("s_lshl_b32 s9, s4, 10"); E("s_add_u32 s90, s8, s9"); E("s_add_u32 s90, s90, s82")
qload = "buffer_load_dwordx4 v[16:19], v1, s[64:67], s90 offen sc1"
E("s_cmp_lg_u32 s3, 0"); E("s_cbranch_scc1 Lqpoll1")
E("v_mov_b32 v6, s4"); E("v_lshlrev_b32 v6, 4, v6")
pos = kpos[0]
while pos < 64 + OPT['vpre']:
    if pos < 64: kload(pos); kpos[0] += 1
    else: vload(pos - 64); vpos[0] += 1
    pos += 1
    if pos == OPT['p1']: VM('cnt', "buffer_load_dword v7, v6, s[76:79], 0 offen sc1")
    if pos == OPT['pq']:
        wait_tag('cnt')
        E("s_mov_b32 s98, 0"); Lb("Lcnt")
        E("v_cmp_gt_u32 vcc, 8, v7"); E("s_cbranch_vccz Lcntd")
        E("buffer_load_dword v7, v6, s[76:79], 0 offen sc1"); E("s_waitcnt vmcnt(0)")
        E("s_add_u32 s98, s98, 1"); E("s_cmp_lt_u32 s98, 0x8000"); E("s_cbranch_scc1 Lcnt")
        Lb("Lcntd")
        VM('q', qload)
wait_tag('q')
check(range(16, 20))
E("s_cbranch_vccz Lattn")
Lb("Lqpoll")
poll([qload], lambda: check(range(16, 20)))
Lb("Lattn")
E("ds_write_b128 v1, v[16:19] offset:%d" % QL)
E("s_waitcnt lgkmcnt(0)")
def round_tile(T, first):
    s = 32 + 4 * T
    return ["v_cvt_pk_bf16_f32 v6, v%d, v%d" % (s, s + 1), "v_cvt_pk_bf16_f32 v7, v%d, v%d" % (s + 2, s + 3),
            "v_lshlrev_b32 v%d, 16, v6" % s, "v_and_b32 v%d, 0xffff0000, v6" % (s + 1),
            "v_lshlrev_b32 v%d, 16, v7" % (s + 2), "v_and_b32 v%d, 0xffff0000, v7" % (s + 3),
            ("v_max_f32 v12, v%d, v%d" % (s, s + 1)) if first else ("v_max3_f32 v12, v12, v%d, v%d" % (s, s + 1)),
            "v_max3_f32 v12, v12, v%d, v%d" % (s + 2, s + 3)]
def FR(t): return vr(16 + 4 * t) if t < 4 else vr(64 + 4 * (t - 4))
HS = [1, 2, 13, 15]
def core(L0):
    for t in range(8): E("ds_read_b128 %s, v2 offset:%d" % (FR(t), QL + 64 * t))
    for G in range(4):
        if L0:
            vgroup(4)
            E("s_waitcnt vmcnt(%d)" % min(63, len(vm) - 1 - [j for j, x in enumerate(vm) if x == 'K'][16 * G + 15]))
        if not L0 and G == 4 - (OPT['nq'] + 1) // 2: E("s_waitcnt vmcnt(0)")
        if G: extra = [None] * 3 + round_tile(2 * G - 2, G == 1) + round_tile(2 * G - 1, False)
        else:
            extra = []
            for c in range(4): extra += ["v_lshrrev_b32 v6, 2, v%d" % (8 + c), "v_bfi_b32 v6, v6, 0, s91", "v_or_b32 v%d, v6, v%d" % (HS[c], 8 + c)]
        for t in range(8):
            if G == 0: E("s_waitcnt lgkmcnt(%d)" % (7 - t))
            for d in range(2):
                T = 2 * G + d
                E("v_mfma_f32_16x16x32_bf16 %s, %s, %s, %s" % (vr(32 + 4 * T), ar(32 * T + 4 * t), FR(t), "0" if t == 0 else vr(32 + 4 * T)))
                for _ in range(2 if t >= 5 else 1):
                    if extra:
                        x = extra.pop(0)
                        if x: E(x)
        assert not extra
    if OPT['fine'] and not L0: E("s_memrealtime s[56:57]")
    lu = [u for u in range(64) if inlds(u)]
    nis = [0]
    def ldsread():
        if nis[0] >= len(lu): return
        u = lu[nis[0]]
        if L0: wait_tag('V%d' % u)
        E("ds_read_b128 %s, v3 offset:%d" % (vr(64 + 4 * (nis[0] % 4)), 4096 + lslot(u) * 1024)); nis[0] += 1
    for _ in range(4): ldsread()
    E("s_nop 3")
    for x in round_tile(6, False): E(x)
    for x in round_tile(7, False): E(x)
    E("v_mov_b32 v6, v12"); E("s_nop 1"); E("v_permlane16_swap_b32 v12, v6"); E("s_nop 1"); E("v_max_f32 v12, v12, v6")
    E("v_mov_b32 v6, v12"); E("s_nop 1"); E("v_permlane32_swap_b32 v12, v6"); E("v_mov_b32 v7, 0"); E("s_nop 0"); E("v_max_f32 v12, v12, v6")
    E("v_mul_f32 v14, s99, v12"); E("v_mov_b32 v6, 0")
    def soft(T):
        s = 32 + 4 * T
        fm = lambda a: "v_pk_fma_f32 %s, %s, s[98:99], v[14:15] op_sel:[0,1,0] op_sel_hi:[1,1,0] neg_lo:[0,0,1] neg_hi:[0,0,1]" % (vr(a, 2), vr(a, 2))
        ex = lambda a: "v_exp_f32 v%d, v%d" % (a, a)
        ad = lambda a: "v_pk_add_f32 v[6:7], v[6:7], %s" % vr(a, 2)
        return [[fm(s), fm(s + 2), ex(s), ex(s + 1)], [ex(s + 2), ex(s + 3), ad(s), "v_cvt_pk_bf16_f32 v%d, v%d, v%d" % (s, s, s + 1)],
                ["v_cvt_pk_bf16_f32 v%d, v%d, v%d" % (s + 1, s + 2, s + 3)], [ad(s + 2)]]
    def bmk(k):
        src = 32 + 4 * (k // 4) + ((k % 4) >> 1)
        return ["v_perm_b32 v%d, v%d, v%d, v%d" % (16 + 4 * (k & 1) + c, src, src, HS[c] if k & 1 else 8 + c) for c in range(4)]
    for g in soft(0):
        for x in g: E(x)
    for x in bmk(0): E(x)
    E("s_nop 0")
    if OPT['fine'] and not L0: E("s_memrealtime s[58:59]")
    for k in range(32):
        b = 16 + 4 * (k & 1)
        if L0: vgroup(2)
        if L0 and k == OPT['late']:
            E("v_and_b32 v4, 15, v0"); E("v_lshlrev_b32 v4, 4, v4")
            VM('cnt2', "buffer_load_dword v4, v4, s[76:79], 0 offen sc1")
        for hf in range(2):
            u = 2 * k + hf
            if inlds(u):
                n = lu.index(u)
                E("s_waitcnt lgkmcnt(%d)" % (nis[0] - 1 - n)); A = vr(64 + 4 * (n % 4))
            else:
                if L0: wait_tag('V%d' % u)
                A = vr(144 + 4 * (k - 4))
            acc = vr(24 + 4 * hf)
            E("v_mfma_f32_16x16x32_bf16 %s, %s, %s, %s" % (acc, A, vr(b), "0" if k == 0 else acc))
            if inlds(u): ldsread()
            if hf == 0:
                if k < 31:
                    for x in bmk(k + 1): E(x)
            elif k < 28:
                for x in soft(k // 4 + 1)[k % 4]: E(x)
    E("v_add_f32 v13, v6, v7")
    if OPT['fine'] and not L0: E("s_memrealtime s[60:61]")
    if L0:
        wait_tag('cnt2')
        E("v_and_b32 v6, 15, v0"); E("v_cmp_gt_u32 vcc, 8, v6"); E("v_mov_b32 v7, 24"); E("v_lshlrev_b32 v6, 4, v6"); E("v_cndmask_b32 v7, v7, 8, vcc")
        E("s_mov_b32 s98, 0"); Lb("Lcnt2")
        E("v_cmp_gt_u32 vcc, v7, v4"); E("s_cbranch_vccz Lcnt2d")
        E("buffer_load_dword v4, v6, s[76:79], 0 offen sc1"); E("s_waitcnt vmcnt(0)")
        E("s_add_u32 s98, s98, 1"); E("s_cmp_lt_u32 s98, 0x8000"); E("s_cbranch_scc1 Lcnt2")
        Lb("Lcnt2d")
stamp(); stamp_n[0] -= OPT['stamps']
core(True)
E("s_barrier")
E("s_branch Lepi")
Lb("Lqpoll1")
worker(0, 0, lambda: ppoll(OPT['nq'], lambda i: ["buffer_load_dwordx4 %s, v1, s[64:67], s90 offen sc1" % vr(60 - 4 * i)],
                           lambda i: check(range(60 - 4 * i, 64 - 4 * i)), lambda i: E("ds_write_b128 v1, %s offset:%d" % (vr(60 - 4 * i), QL))))
bar()
stamp()
core(False)
Lb("Lepi")
E("v_mov_b32 v6, v13"); E("s_nop 1"); E("v_permlane16_swap_b32 v13, v6"); E("s_nop 1"); E("v_add_f32 v13, v13, v6")
E("v_mov_b32 v6, v13"); E("s_nop 1"); E("v_permlane32_swap_b32 v13, v6"); E("s_nop 1"); E("v_add_f32 v13, v13, v6")
E("v_bfe_u32 v6, v0, 3, 1"); E("v_lshlrev_b32 v7, 10, v6"); E("v_bfe_u32 v1, v0, 4, 2"); E("v_lshl_add_u32 v7, v1, 5, v7")
E("v_and_b32 v1, 7, v0"); E("v_lshl_add_u32 v7, v1, 2, v7"); E("s_lshl_b32 s8, s7, 11"); E("v_add_u32 v7, s8, v7")
E("s_lshl_b32 s8, s7, 4"); E("v_lshl_add_u32 v6, v6, 3, s8")
for hf in range(2):
    for r in range(4): E("ds_write_b32 v7, v%d offset:%d" % (24 + 4 * hf + r, OM + (r * 2 + hf) * 128))
E("s_mov_b64 exec, 0x101"); E("ds_write_b64 v6, v[12:13] offset:%d" % ML); E("s_mov_b64 exec, -1")
E("v_lshlrev_b32 v1, 3, v0"); E("v_lshrrev_b32 v2, 7, v0"); E("v_lshlrev_b32 v3, 3, v2")
E("v_lshlrev_b32 v6, 9, v2"); E("v_bfe_u32 v7, v0, 4, 1"); E("v_lshl_add_u32 v6, v7, 8, v6"); E("v_bfe_u32 v7, v0, 2, 2"); E("v_lshl_add_u32 v6, v7, 6, v6")
E("v_bfe_u32 v7, v0, 5, 2"); E("v_lshl_add_u32 v6, v7, 4, v6"); E("v_and_b32 v7, 3, v0"); E("v_lshl_add_u32 v6, v7, 2, v6")
E("v_lshlrev_b32 v7, 6, v2"); E("s_add_u32 s8, s84, s86"); E("s_add_u32 s9, s85, s86")
bar()
for w in range(4): E("ds_read_b64 %s, v3 offset:%d" % (vr(40 + 2 * w, 2), ML + 16 * w))
for w in range(4): E("ds_read_b64 %s, v1 offset:%d" % (vr(32 + 2 * w, 2), OM + 2048 * w))
E("s_waitcnt lgkmcnt(4)")
E("v_max_f32 v26, v40, v42"); E("v_max3_f32 v26, v26, v44, v46")
for w in range(4): E("v_sub_f32 v%d, v%d, v26" % (40 + 2 * w, 40 + 2 * w)); E("v_mul_f32 v%d, s99, v%d" % (40 + 2 * w, 40 + 2 * w))
for w in range(4): E("v_exp_f32 v%d, v%d" % (40 + 2 * w, 40 + 2 * w))
E("s_waitcnt lgkmcnt(0)")
E("v_mul_f32 v24, v40, v32"); E("v_mul_f32 v25, v40, v33"); E("v_mul_f32 v27, v40, v41")
for w in range(1, 4):
    E("v_fmac_f32 v24, v%d, v%d" % (40 + 2 * w, 32 + 2 * w)); E("v_fmac_f32 v25, v%d, v%d" % (40 + 2 * w, 33 + 2 * w)); E("v_fmac_f32 v27, v%d, v%d" % (40 + 2 * w, 41 + 2 * w))
E("v_cvt_pk_bf16_f32 v24, v24, v25"); E("v_min_u32 v24, -2, v24"); E("v_min_u32 v26, -2, v26"); E("v_min_u32 v27, -2, v27")
E("buffer_store_dword v24, v6, s[64:67], s8 offen sc1")
E("s_and_b32 s10, s7, 1"); E("s_cmp_lg_u32 s10, 0"); E("s_cbranch_scc1 Lnoml")
E("s_mov_b64 exec, 1"); E("buffer_store_dwordx2 v[26:27], v7, s[64:67], s9 offen sc1"); E("s_mov_b64 exec, -1")
Lb("Lnoml")
stamp()
if OPT['fine']:
    for i in range(3):
        l = lab("fs"); E("s_cmp_lg_u32 s7, 0"); E("s_cbranch_scc1 " + l); E("s_cmp_lg_u32 s3, 1"); E("s_cbranch_scc1 " + l)
        E("v_mov_b32 v6, s%d" % (56 + 2 * i)); E("s_lshl_b32 s9, s2, 8"); E("s_add_u32 s9, s9, 0x%x" % (STP + 128 + (20 + i) * 4)); E("v_mov_b32 v7, 0")
        E("s_mov_b64 exec, 1"); E("buffer_store_dword v6, v7, s[64:67], s9 offen"); E("s_mov_b64 exec, -1"); Lb(l)

if OPT['dbg']:
    E("s_cmp_lg_u32 s3, 0"); E("s_cbranch_scc1 Ldbg1"); dbgt(1); Lb("Ldbg1")
E("s_cmp_eq_u32 s12, 1"); E("s_cbranch_scc1 Lg")
E("s_cmp_eq_u32 s12, 0"); E("s_cbranch_scc1 Lq")
E("s_cmp_eq_u32 s12, 3"); E("s_cbranch_scc1 Lf")
lane("v15"); E("v_lshlrev_b32 v1, 3, v15"); E("v_and_b32 v2, 56, v1"); E("s_mul_i32 s8, s7, %d" % PITCH); E("v_add_u32 v3, s8, v1")
E("s_lshl_b32 s8, s7, 3"); E("s_add_u32 s8, s8, s4"); E("s_lshl_b32 s9, s8, 13"); E("s_add_u32 s9, s9, s86"); E("s_lshl_b32 s10, s88, 9"); E("s_add_u32 s9, s9, s10"); E("s_add_u32 s10, s9, 4096")
E("s_lshl_b32 s11, s8, 7"); E("s_add_u32 s11, s11, s86"); E("s_add_u32 s11, s11, 0x%x" % MLB); E("s_lshl_b32 s8, s88, 6"); E("s_add_u32 s11, s11, s8")
OBB = [44, 62]
def obl(i): return ["buffer_load_dwordx2 %s, v2, s[64:67], s11 offen sc1" % vr(OBB[i] + 16, 2)] + \
    ["buffer_load_dwordx2 %s, v1, s[64:67], %s offen offset:%d sc1" % (vr(OBB[i] + 2 * s, 2), "s9" if s < 4 else "s10", (s % 4) * 1024) for s in range(8)]
D3 = ["quad_perm:[1,0,3,2] row_mask:0xf bank_mask:0xf", "quad_perm:[2,3,0,1] row_mask:0xf bank_mask:0xf", "row_half_mirror row_mask:0xf bank_mask:0xf"]
def obs(i):
    o = OBB[i]
    def unp(s):
        for q in range(2): E("v_lshlrev_b32 v%d, 16, v%d" % (16 + 2 * s + q, o + 2 * s + q)); E("v_and_b32 v%d, 0xffff0000, v%d" % (o + 2 * s + q, o + 2 * s + q))
    E("v_max_f32_dpp v6, v%d, v%d " % (o + 16, o + 16) + D3[0]); unp(0)
    E("v_max_f32_dpp v6, v6, v6 " + D3[1]); unp(1)
    E("v_max_f32_dpp v6, v6, v6 " + D3[2]); unp(2)
    E("v_sub_f32 v6, v%d, v6" % (o + 16)); E("v_mul_f32 v6, s99, v6"); E("v_exp_f32 v6, v6"); unp(3)
    E("v_mul_f32 v7, v6, v%d" % (o + 17)); unp(4)
    E("v_add_f32_dpp v7, v7, v7 " + D3[0]); unp(5)
    E("v_add_f32_dpp v7, v7, v7 " + D3[1]); unp(6)
    E("v_add_f32_dpp v7, v7, v7 " + D3[2]); unp(7)
    for s in range(8): E("v_readlane_b32 s%d, v6, %d" % (16 + s, s))
    E("v_rcp_f32 v7, v7")
    for s in range(8):
        for q in range(4):
            src = (16 if q % 2 == 0 else o) + 2 * s + q // 2
            if s == 0: E("v_mul_f32 v%d, s16, v%d" % (32 + q, src))
            else: E("v_fmac_f32 v%d, s%d, v%d" % (32 + q, 16 + s, src))
ppoll(OPT['no'], obl, lambda i: check(range(OBB[i], OBB[i] + 18)), obs)
for q in range(4): E("v_mul_f32 v%d, v%d, v7" % (32 + q, 32 + q))
for q in range(2): E("v_cvt_pk_bf16_f32 v%d, v%d, v%d" % (36 + q, 32 + 2 * q, 33 + 2 * q))
E("ds_write_b64 v3, v[36:37] offset:%d" % ACT1)
stamp()
def xatomic(base):
    E("v_rndne_f32 v25, v24"); E("v_sub_f32 v26, v24, v25"); E("v_cvt_i32_f32 v25, v25"); E("v_mul_f32 v26, s96, v26"); E("v_cvt_i32_f32 v24, v26")
    E("v_lshlrev_b32 v1, 12, v1"); E("v_lshl_add_u32 v1, v2, 3, v1")
    E("v_ashrrev_i32 v26, 31, v24"); E("v_add_u32 v25, v25, v26"); E("v_and_or_b32 v24, v24, s95, 1")
    E("s_lshl_b32 s8, s89, 3"); E("s_add_u32 s8, s8, s86"); E("s_add_u32 s8, s8, 0x%x" % base)
    for r in range(OPT['R']):
        if r: E("s_add_u32 s8, s8, 0x4000")
        E("buffer_atomic_add_x2 v[24:25], v1, s[64:67], s8 offen sc1")
dense(8, ACT1, RW, (8, 12, 16, 20, 32, 36, 40)); xatomic(XS1)
stamp()
E("s_cmp_lg_u32 s88, 0"); E("s_cbranch_scc1 Lnext")
lane("v15"); E("v_min_u32 v1, 27, v15"); E("v_lshlrev_b32 v1, 4, v1")
E("s_lshl_b32 s8, s7, 12"); E("s_mul_i32 s9, s4, 448"); E("s_add_u32 s9, s9, s8"); E("s_add_u32 s9, s9, s86"); E("s_add_u32 s9, s9, 0x%x" % AB)
E("s_mul_i32 s8, s7, %d" % PITCH); E("v_add_u32 v2, s8, v1")
ppoll(OPT['np'], lambda i: ["buffer_load_dwordx4 %s, v1, s[64:67], s9 offen sc1" % vr(64 + 4 * i)], lambda i: check(range(64 + 4 * i, 68 + 4 * i)),
      lambda i: E("ds_write_b128 v2, %s offset:%d" % (vr(64 + 4 * i), ACT0)))
stamp()
dense(7, ACT0, RW + 32); xatomic(XS2)
stamp()
E("s_branch Lnext")
Lb("Lg")
xinit()
E("s_cmp_eq_u32 s3, 0"); E("s_cbranch_scc1 Lg1")
xfront([("0x%x" % XS2, 8)])
Lb("Lg1")
E("s_add_u32 s91, s86, 0x%x" % XS1)
xtrig("s91", 16)
xfront([("s91", 16)])
stamp()
xunpack(); layernorm(ACT0)
dense(14, ACT0)
bf16r("v24", "v24"); E("s_nop 1"); E("v_mov_b32_dpp v28, v24 row_ror:8 row_mask:0xf bank_mask:0xf")
k2 = -2 * 0.7978845608028654 * 1.4426950408889634
E("v_mul_f32 v26, v24, v24"); E("v_mov_b32 v25, %s" % f32(k2)); E("v_fmac_f32 v25, %s, v26" % f32(k2 * 0.044715))
E("v_mul_f32 v25, v25, v24"); E("v_exp_f32 v25, v25"); E("s_nop 0"); E("v_add_f32 v25, 1.0, v25"); E("v_rcp_f32 v25, v25"); E("s_nop 0")
E("v_mul_f32 v25, v25, v24"); bf16r("v25", "v25"); E("v_mul_f32 v25, v25, v28")
E("v_lshlrev_b32 v1, 12, v1"); E("v_lshl_add_u32 v1, v2, 1, v1")
E("v_mov_b32_dpp v26, v25 quad_perm:[1,0,3,2] row_mask:0xf bank_mask:0xf")
E("v_cvt_pk_bf16_f32 v24, v25, v26"); E("v_min_u32 v24, -2, v24")
E("s_add_u32 s8, s86, s87"); E("s_add_u32 s8, s8, 0x%x" % AB)
E("s_mov_b32 exec_lo, 0x00550055"); E("s_mov_b32 exec_hi, 0x00550055")
E("buffer_store_dword v24, v1, s[64:67], s8 offen sc1"); E("s_mov_b64 exec, -1")
stamp()
E("s_branch Lnext")
Lb("Lq")
E("s_cmp_lg_u32 s3, 0"); E("s_cbranch_scc1 Lend")
xinit()
xtrig("0x%x" % XS2, 8)
xfront([("0x%x" % XS1, 16), ("0x%x" % XS2, 8)])
stamp()
xunpack(); layernorm(ACT0)
E("s_mov_b32 s82, 0x%x" % QB1)
qbody()
stamp()
E("s_branch Lnext")
Lb("Lf")
E("s_cmp_eq_u32 s3, 0"); E("s_cbranch_scc1 Lnext")
E("s_cmp_lg_u32 s2, 255"); E("s_cbranch_scc1 Lend")
xinit()
xfront([("0x%x" % XS1, 16), ("0x%x" % XS2, 8)])
xfront([("0x%x" % (XS1 + LSTEP), 16)], OPT['lazy'])
xfront([("0x%x" % (XS2 + LSTEP), 8)], 0, OPT['nx'])
E("v_lshrrev_b32 v1, 1, v1"); E("v_lshrrev_b32 v2, 1, v2"); E("s_mul_i32 s8, s7, 896")
E("buffer_store_dwordx2 v[8:9], v1, s[72:75], s8 offen")
E("s_mov_b32 exec_hi, 0xffff")
E("buffer_store_dwordx2 v[10:11], v2, s[72:75], s8 offen")
stamp()
dbgt(2)
E("s_branch Lend")
Lb("Lnext")
E("s_cmp_lg_u32 s3, 0"); E("s_cbranch_scc1 Lend")
E("s_waitcnt vmcnt(0)")
E("s_mov_b32 s3, 1"); E("s_mov_b32 s86, 0x%x" % LSTEP); E("s_mov_b32 s82, 0x%x" % QB1)
E("s_branch Lloop")

Lb("Lend")
E("s_endpgm")
out += ['.section .rodata,"a"', ".p2align 6", ".amdhsa_kernel %s_kernel" % NAME,
        "  .amdhsa_next_free_vgpr 512", "  .amdhsa_next_free_sgpr 102", "  .amdhsa_accum_offset 256",
        "  .amdhsa_group_segment_fixed_size 0", "  .amdhsa_kernarg_size 96", "  .amdhsa_user_sgpr_count 2",
        "  .amdhsa_user_sgpr_kernarg_segment_ptr 1", "  .amdhsa_system_sgpr_workgroup_id_x 1", ".end_amdhsa_kernel"]
open(sys.argv[1], "w").write("\n".join(out) + "\n")
```

```python
import sys, struct
NAME = "interleave_layers__gqa_block_cached__geglu_ffn__decode"
OPT = dict(nt=1, stamps=0, p1=40, pq=60, vpre=16, lazy=8, k0=0, k1=6, k2=6, k3=4, trig=1, wnt=0, dbg=0, fine=0, late=8, R=1, np=1, nq=1, no=1, nx=1, rtt=21, iq=0, zq=0, io=0, zo=0, ig=0, it=0, zt=0, ia=0, za=0, ef=1, kf=24, dw=0, dw0=0, ec=0, l2=0, l2o=0, cnt=0, map=1, lay=3)
for a in sys.argv[2:]:
    k, v = a.split('='); OPT[k] = int(v)
out = []
SS, SW, ST = [(18, 16, 13), (13, 16, 18), (13, 19, 16), (15, 13, 18), (16, 19, 13), (18, 13, 15)][OPT['lay']]
def E(s): out.append("    " + s)
def Lb(s): out.append(s + ":")
def f32(x): return "0x%08x" % struct.unpack('<I', struct.pack('<f', x))[0]
NT = ["", " nt", " sc1 nt", " sc0 sc1 nt", " sc0 nt", " sc1"][OPT['nt']]; WNT = ["", " nt"][OPT['wnt']]
NLDSV = 36; VBASE = 16384; LDS_TOTAL = 163840
ACT0 = 0; OM = 0; ACT1 = 8192; QL = 8192; XRES = 12544; ML = 16128; PITCH = 1088
OB = 0; XS1 = 0x60000; XS2 = 0x70000; AB = 0x58000; MLB = 0x5C000; QB1 = 0x48000; FLG = 0x5D000; QB0 = 0x100000; LSTEP = 0x80000; STP = 0x300000
RW = 80
vm = []
def VM(tag, s): vm.append(tag); E(s)
def wait_tag(tag):
    idx = max(i for i, t in enumerate(vm) if t == tag)
    E("s_waitcnt vmcnt(%d)" % min(len(vm) - 1 - idx, 63))
uid = [0]
def lab(p): uid[0] += 1; return "L%s%d" % (p, uid[0])
stamp_n = [0]
def stamp(wave=0):
    if not OPT['stamps']: return
    n = stamp_n[0]; stamp_n[0] += 1; l = lab("st")
    E("s_cmp_lg_u32 s7, %d" % wave); E("s_cbranch_scc1 " + l)
    E("s_memrealtime s[8:9]"); E("s_waitcnt lgkmcnt(0)")
    E("v_mov_b32 v6, s8"); E("s_lshl_b32 s9, s2, 8"); E("s_lshl_b32 s8, s3, 7"); E("s_add_u32 s9, s9, s8")
    E("s_add_u32 s9, s9, 0x%x" % (STP + n * 4)); E("v_mov_b32 v7, 0")
    E("s_mov_b64 exec, 1"); E("buffer_store_dword v6, v7, s[64:67], s9 offen"); E("s_mov_b64 exec, -1")
    Lb(l)
def bf16r(dst, src): E("v_cvt_pk_bf16_f32 %s, %s, %s" % (dst, src, src)); E("v_lshlrev_b32 %s, 16, %s" % (dst, dst))
def vr(a, n=4): return "v[%d:%d]" % (a, a + n - 1)
def ar(a, n=4): return "a[%d:%d]" % (a, a + n - 1)
def poll(loads, chk, sleep=0, l2=0):
    l = lab("poll")
    if l2:
        for s in loads: E(s.replace(" sc1", ""))
        E("s_waitcnt vmcnt(0)"); chk()
        E("s_cbranch_vccz %sd" % l)
    E("s_mov_b32 s98, 0"); Lb(l)
    for s in loads: E(s)
    E("s_waitcnt vmcnt(0)"); chk()
    E("s_cbranch_vccz %sd" % l)
    if sleep: E("s_sleep %d" % sleep)
    E("s_add_u32 s98, s98, 1"); E("s_cmp_lt_u32 s98, 0x8000"); E("s_cbranch_scc1 " + l)
    Lb(l + "d")
def ppoll(n, loads, chk, succ, ini=0, slp=0):
    l = lab("pp"); m = len(loads(0))
    E("s_mov_b32 s98, 0")
    if ini: E("s_sleep %d" % ini)
    for i in range(n):
        if i: E("s_sleep %d" % (OPT['rtt'] // n))
        for x in loads(i): E(x)
    Lb(l)
    for i in range(n):
        E("s_waitcnt vmcnt(%d)" % ((n - 1) * m)); chk(i)
        E("s_cbranch_vccz %s_%d" % (l, i))
        if slp: E("s_sleep %d" % slp)
        for x in loads(i): E(x)
    E("s_add_u32 s98, s98, 1"); E("s_cmp_lt_u32 s98, 0x4000"); E("s_cbranch_scc1 " + l)
    for i in range(n - 1, -1, -1):
        Lb("%s_%d" % (l, i)); succ(i)
        if i: E("s_branch %sd" % l)
    Lb(l + "d")
def check(regs, t="v15"):
    r = list(regs)
    E("v_max3_u32 %s, v%d, v%d, v%d" % (t, r[0], r[1], r[2])); r = r[3:]
    while len(r) >= 2: E("v_max3_u32 %s, %s, v%d, v%d" % (t, t, r[0], r[1])); r = r[2:]
    if r: E("v_max_u32 %s, %s, v%d" % (t, t, r[0]))
    E("v_cmp_eq_u32 vcc, -1, %s" % t)
kpos = [0]
def kload(n):
    T, t = n // 8, n % 8
    E("s_add_u32 s10, s80, %d" % (T << ST))
    VM('K', "buffer_load_dwordx4 %s, v4, s[40:43], s10 offen offset:%d%s" % (ar(4 * n), 64 * t, NT))
def kgroup(cnt, cond=True):
    l = lab("kg")
    if cond: E("s_cmp_lg_u32 s3, 0"); E("s_cbranch_scc1 " + l)
    for _ in range(cnt): kload(kpos[0]); kpos[0] += 1
    if cond: Lb(l)
def inlds(u): return u % 2 == 0 or u < 8
def lslot(u): return u if u < 8 else 8 + (u // 2 - 4)
def vload(u):
    T, r, hf = u // 8, (u // 2) % 4, u % 2
    E("s_add_u32 s10, s80, %d" % (T << ST))
    io = r * 512 + hf * 256
    if inlds(u):
        E("s_add_u32 m0, s81, %d" % (lslot(u) * 1024 + 4096 - io)); E("s_nop 0")
        VM('V%d' % u, "buffer_load_dwordx4 v5, s[44:47], s10 offen offset:%d%s lds" % (io, NT))
    else:
        VM('V%d' % u, "buffer_load_dwordx4 %s, v5, s[44:47], s10 offen offset:%d%s" % (vr(144 + 4 * (u // 2 - 4)), io, NT))
vpos = [0]
def vgroup(cnt):
    cnt = min(cnt, 64 - vpos[0])
    for _ in range(cnt): vload(vpos[0]); vpos[0] += 1
def lane(dst): E("v_and_b32 %s, 63, v0" % dst)
def xaddr():
    lane("v15"); E("v_lshlrev_b32 v1, 4, v15"); E("v_min_u32 v2, 47, v15"); E("v_lshlrev_b32 v2, 4, v2"); E("v_add_u32 v2, 1024, v2")
    E("s_mul_i32 s8, s7, 896"); E("s_add_u32 s8, s8, %d" % XRES)
    E("v_lshrrev_b32 v3, 1, v1"); E("v_add_u32 v3, s8, v3"); E("v_lshrrev_b32 v14, 1, v2"); E("v_add_u32 v14, s8, v14")
def xinit():
    xaddr()
    E("ds_read_b64 v[8:9], v3"); E("ds_read_b64 v[10:11], v14")
    E("v_lshlrev_b32 v6, 1, v1"); E("v_lshlrev_b32 v7, 1, v2")
def xtrig(off, P, ini):
    if not OPT['trig']: return
    E("s_add_u32 s9, s15, %s" % off); E("s_and_b32 s8, s2, 7"); E("s_mul_i32 s8, s8, 3"); E("s_bfe_u32 s10, s2, 0x20003"); E("s_add_u32 s8, s8, s10")
    if OPT['ec']:
        E("s_add_u32 s8, s4, s13"); E("s_and_b32 s8, s8, 7"); E("s_cmp_eq_u32 s8, 7"); E("s_cselect_b32 s8, s10, s8"); E("s_add_u32 s9, s9, 0x4000")
    E("s_lshl_b32 s8, s8, 7"); E("s_add_u32 s9, s9, s8"); E("v_mov_b32 v25, 0")
    ppoll(OPT['np'], lambda i: ["buffer_load_dword v%d, v25, s[64:67], s9 offen sc1" % (72 + i)],
          lambda i: (E("v_and_b32 v24, %d, v%d" % (P, 72 + i)), E("v_cmp_eq_u32 vcc, 0, v24")), lambda i: None, ini, OPT['zt'])
def xfront(lst, sleep=0, pipe=1, l2=0):
    loads = []
    for n, (off, P) in enumerate(lst):
        E("s_add_u32 s%d, s15, %s" % (9 + n, off))
        loads += ["buffer_load_dwordx4 %s, v%d, s[64:67], s%d offen offset:%d sc1" % (vr(32 + 16 * n + 4 * i), 6 + i // 2, 9 + n, 16 * (i & 1)) for i in range(4)]
    def chk():
        for n, (off, P) in enumerate(lst):
            o = 32 + 16 * n
            E("v_and_b32 v24, v%d, v%d" % (o, o + 2)); E("v_and_b32 v25, v%d, v%d" % (o + 4, o + 6)); E("v_and_b32 v26, v%d, v%d" % (o + 8, o + 10)); E("v_and_b32 v27, v%d, v%d" % (o + 12, o + 14))
            E("v_and_b32 v24, v24, v25"); E("v_and_b32 v26, v26, v27"); E("v_and_b32 v24, v24, v26"); E("v_and_b32 v%d, %d, v24" % (28 + n, P))
        if len(lst) == 2: E("v_min_u32 v28, v28, v29")
        E("v_cmp_eq_u32 vcc, 0, v28")
    if pipe > 1:
        P = lst[0][1]
        def chk2(i):
            o = 32 + 16 * i
            E("v_and_b32 v24, v%d, v%d" % (o, o + 2)); E("v_and_b32 v25, v%d, v%d" % (o + 4, o + 6)); E("v_and_b32 v26, v%d, v%d" % (o + 8, o + 10)); E("v_and_b32 v27, v%d, v%d" % (o + 12, o + 14))
            E("v_and_b32 v24, v24, v25"); E("v_and_b32 v26, v26, v27"); E("v_and_b32 v24, v24, v26"); E("v_and_b32 v28, %d, v24" % P); E("v_cmp_eq_u32 vcc, 0, v28")
        def dec(i):
            o = 32 + 16 * i
            for q in range(8): E("v_lshrrev_b32 v%d, 31, v%d" % (16 + q, o + 2 * q)); E("v_cvt_f32_i32 v%d, v%d" % (o + 2 * q, o + 2 * q))
            for q in range(8): E("v_add_u32 v%d, v%d, v%d" % (16 + q, 16 + q, o + 1 + 2 * q))
            for q in range(8): E("v_cvt_f32_i32 v%d, v%d" % (16 + q, 16 + q))
            for q in range(8): E("v_fmac_f32 v%d, s97, v%d" % (16 + q, o + 2 * q))
        ppoll(pipe, lambda i: ["buffer_load_dwordx4 %s, v%d, s[64:67], s9 offen offset:%d sc1" % (vr(32 + 16 * i + 4 * j), 6 + j // 2, 16 * (j & 1)) for j in range(4)], chk2, dec)
    else: poll(loads, chk, sleep, l2)
    E("s_waitcnt lgkmcnt(0)")
    for n in range(len(lst)):
        o = 32 + 16 * n
        if pipe == 1:
            for q in range(8): E("v_lshrrev_b32 v%d, 31, v%d" % (16 + q, o + 2 * q)); E("v_cvt_f32_i32 v%d, v%d" % (o + 2 * q, o + 2 * q))
            for q in range(8): E("v_add_u32 v%d, v%d, v%d" % (16 + q, 16 + q, o + 1 + 2 * q))
            for q in range(8): E("v_cvt_f32_i32 v%d, v%d" % (16 + q, 16 + q))
            for q in range(8): E("v_fmac_f32 v%d, s97, v%d" % (16 + q, o + 2 * q))
        for q in range(4):
            E("v_cvt_pk_bf16_f32 v24, v%d, v%d" % (16 + 2 * q, 17 + 2 * q))
            E("v_lshlrev_b32 v25, 16, v24"); E("v_and_b32 v26, 0xffff0000, v24")
            E("v_lshlrev_b32 v27, 16, v%d" % (8 + q)); E("v_and_b32 v28, 0xffff0000, v%d" % (8 + q))
            E("v_add_f32 v25, v25, v27"); E("v_add_f32 v26, v26, v28")
            E("v_cvt_pk_bf16_f32 v%d, v25, v26" % (8 + q))
def xunpack():
    for q in range(4): E("v_lshlrev_b32 v%d, 16, v%d" % (16 + 2 * q, 8 + q)); E("v_and_b32 v%d, 0xffff0000, v%d" % (17 + 2 * q, 8 + q))
    E("ds_write_b64 v3, v[8:9]"); E("ds_write_b64 v14, v[10:11]")
def layernorm(act):
    E("v_add_f32 v24, v16, v17"); E("v_add_f32 v26, v18, v19"); E("v_mul_f32 v25, v16, v16"); E("v_add_f32 v24, v24, v26")
    for q in (17, 18, 19): E("v_fmac_f32 v25, v%d, v%d" % (q, q))
    E("s_mov_b32 exec_hi, 0xffff")
    for q in (20, 21, 22, 23): E("v_add_f32 v24, v24, v%d" % q); E("v_fmac_f32 v25, v%d, v%d" % (q, q))
    E("s_mov_b32 exec_hi, -1"); E("s_nop 1")
    for c in ["row_shr:1 row_mask:0xf bank_mask:0xf bound_ctrl:0", "row_shr:2 row_mask:0xf bank_mask:0xf bound_ctrl:0", "row_shr:4 row_mask:0xf bank_mask:0xf bound_ctrl:0",
              "row_shr:8 row_mask:0xf bank_mask:0xf bound_ctrl:0", "row_bcast:15 row_mask:0xa bank_mask:0xf", "row_bcast:31 row_mask:0xc bank_mask:0xf"]:
        E("v_add_f32_dpp v24, v24, v24 " + c); E("v_add_f32_dpp v25, v25, v25 " + c); E("s_nop 0")
    E("v_readlane_b32 s8, v24, 63"); E("v_readlane_b32 s9, v25, 63")
    E("s_mul_i32 s10, s7, %d" % PITCH); E("s_add_u32 s10, s10, %d" % act)
    E("v_mov_b32 v26, %s" % f32(1 / 448)); E("v_mul_f32 v24, s8, v26"); E("v_mul_f32 v25, s9, v26")
    E("v_fma_f32 v25, -v24, v24, v25"); E("v_max_f32 v25, 0, v25")
    E("v_cvt_pk_bf16_f32 v26, v24, v25"); E("v_lshlrev_b32 v24, 16, v26"); E("v_and_b32 v25, 0xffff0000, v26")
    E("v_add_f32 v25, %s, v25" % f32(1e-5)); bf16r("v25", "v25")
    E("v_sqrt_f32 v25, v25")
    for q in range(8): E("v_sub_f32 v%d, v%d, v24" % (16 + q, 16 + q))
    bf16r("v25", "v25"); E("v_rcp_f32 v25, v25")
    for q in range(4):
        E("v_cvt_pk_bf16_f32 v26, v%d, v%d" % (16 + 2 * q, 17 + 2 * q)); E("v_lshlrev_b32 v%d, 16, v26" % (16 + 2 * q)); E("v_and_b32 v%d, 0xffff0000, v26" % (17 + 2 * q))
    for q in range(8): E("v_mul_f32 v%d, v%d, v25" % (16 + q, 16 + q))
    for q in range(4): E("v_cvt_pk_bf16_f32 v%d, v%d, v%d" % (24 + q, 16 + 2 * q, 17 + 2 * q))
    E("v_lshrrev_b32 v1, 1, v1"); E("v_add_u32 v1, s10, v1"); E("v_lshrrev_b32 v2, 1, v2"); E("v_add_u32 v2, s10, v2")
    E("ds_write_b64 v1, v[24:25]"); E("ds_write_b64 v2, v[26:27]")
def bar(): E("s_waitcnt lgkmcnt(0)"); E("s_barrier")
def dense(T, act, RW=80, sl=(32, 36, 40, 44, 48, 52, 56, 60)):
    n = len(sl)
    E("v_bfe_u32 v1, v0, 2, 2"); E("v_mul_u32_u24 v1, %d, v1" % PITCH); E("v_bfe_u32 v2, v0, 4, 2"); E("v_lshl_add_u32 v1, v2, 4, v1")
    bar()
    for t in range(min(n, T)): E("ds_read_b128 %s, v1 offset:%d" % (vr(sl[t]), act + 64 * t))
    issued = min(n, T)
    for t in range(T):
        E("s_waitcnt lgkmcnt(%d)" % (issued - 1 - t))
        acc = vr(24 + 4 * (t & 1))
        E("v_mfma_f32_16x16x32_bf16 %s, %s, %s, %s" % (acc, vr(sl[t % n]), vr(RW + 4 * t), "0" if t < 2 else acc))
        if issued < T: E("ds_read_b128 %s, v1 offset:%d" % (vr(sl[issued % n]), act + 64 * issued)); issued += 1
    E("v_bfe_u32 v1, v0, 4, 2"); E("v_and_b32 v2, 15, v0"); E("s_nop 6"); E("v_add_f32 v24, v24, v28")
def worker(wave, limit, body):
    l = lab("wk")
    E("s_cmp_lg_u32 s7, %d" % wave); E("s_cbranch_scc1 " + l)
    if limit: E("s_cmp_ge_u32 s13, %d" % limit); E("s_cbranch_scc1 " + l)
    body(); Lb(l)

hdr = open("cdna_kernels/%s.s.ref" % NAME).read().split("\n")
for l in hdr:
    if l.startswith("; @launch"): out.append("; @launch grid=(256,1,1) block=(256,1,1) lds=%d" % LDS_TOTAL)
    elif l.startswith(";"): out.append(l)
    else: break
out += ['.amdgcn_target "amdgcn-amd-amdhsa--gfx950"', ".text", ".globl %s_kernel" % NAME, ".p2align 8",
        ".type %s_kernel,@function" % NAME, "%s_kernel:" % NAME]
E("s_cmp_ge_u32 s2, 256"); E("s_cbranch_scc1 Lend")
if OPT['dbg']: E("s_memrealtime s[100:101]")
def dbgt(n):
    if not OPT['dbg']: return
    l = lab("dbg")
    E("s_cmp_lg_u32 s7, 0"); E("s_cbranch_scc1 " + l)
    E("s_memrealtime s[8:9]"); E("s_waitcnt lgkmcnt(0)"); E("s_sub_u32 s8, s8, s100"); E("v_mov_b32 v6, s8"); E("v_mov_b32 v7, 0")
    E("s_mov_b64 exec, 1"); E("buffer_atomic_umax v6, v7, s[76:79], 0 offen offset:%d sc1" % (4 * n)); E("s_mov_b64 exec, -1")
    Lb(l)
E("s_load_dwordx16 s[16:31], s[0:1], 0"); E("s_load_dwordx8 s[32:39], s[0:1], 64")
E("v_lshrrev_b32 v1, 6, v0"); E("s_and_b32 s4, s2, 7"); E("v_readfirstlane_b32 s7, v1")
E("s_lshr_b32 s13, s2, 3"); E("s_and_b32 s5, s13, 3"); E("s_lshr_b32 s6, s2, 5"); E("s_mov_b32 s3, 0")
E("v_and_b32 v1, 15, v0"); E("v_bfe_u32 v2, v0, 4, 2")
E("v_lshlrev_b32 v4, 9, v1"); E("v_lshl_add_u32 v4, v2, 4, v4")
E("v_lshlrev_b32 v5, 11, v2"); E("v_lshl_add_u32 v5, v1, 4, v5")
E("s_mov_b32 s62, s4")
if OPT['map'] == 1: E("s_and_b32 s62, s13, 7"); E("s_lshr_b32 s5, s2, 6"); E("s_mov_b32 s6, s4")
if OPT['map'] == 2: E("s_add_u32 s62, s4, s6"); E("s_and_b32 s62, s62, 7")
E("s_lshl_b32 s8, s5, 3"); E("s_add_u32 s8, s8, s62"); E("s_lshl_b32 s9, s8, 21")
E("s_lshl_b32 s80, s7, %d" % SW); E("s_lshl_b32 s10, s6, %d" % SS); E("s_add_u32 s80, s80, s10"); E("s_mul_i32 s81, s7, %d" % (NLDSV * 1024)); E("s_add_u32 s81, s81, %d" % (VBASE - 4096))

E("s_lshl_b32 s84, s8, 13"); E("s_lshl_b32 s10, s6, 10"); E("s_add_u32 s84, s84, s10")
E("s_lshl_b32 s85, s8, 7"); E("s_lshl_b32 s10, s6, 3"); E("s_add_u32 s85, s85, s10"); E("s_add_u32 s85, s85, 0x%x" % MLB)
E("s_mov_b32 s86, 0")
E("s_mov_b32 s82, 0x%x" % QB0)
E("s_lshl_b32 s11, s7, 4")
E("s_lshl_b32 s83, s2, 7"); E("s_lshl_b32 s10, s7, 5"); E("s_add_u32 s83, s83, s10")
E("s_sub_u32 s87, s2, 64"); E("s_lshl_b32 s87, s87, 6"); E("s_add_u32 s87, s87, s11")
E("s_max_u32 s14, s13, 15"); E("s_sub_u32 s14, s14, 15"); E("s_min_u32 s14, s14, 13")
E("s_cmp_ge_u32 s14, 7"); E("s_cselect_b32 s88, 1, 0"); E("s_mul_i32 s10, s88, 7"); E("s_sub_u32 s14, s14, s10")
E("s_lshl_b32 s89, s14, 6"); E("s_add_u32 s89, s89, s11")
E("s_mov_b32 s12, 0"); E("s_cmp_ge_u32 s13, 8"); E("s_cselect_b32 s12, 1, s12"); E("s_cmp_ge_u32 s13, 15"); E("s_cselect_b32 s12, 2, s12")
E("s_cmp_ge_u32 s13, 29"); E("s_cselect_b32 s12, 3, s12")
E("s_mov_b32 s99, %s" % f32(0.0625 * 1.4426950408889634))
E("s_and_b32 s15, s13, %d" % (OPT['R'] - 1)); E("s_lshl_b32 s15, s15, 14"); E("s_lshl_b32 s10, s7, 12"); E("s_add_u32 s15, s15, s10")
E("s_mov_b32 s97, %s" % f32(2.0 ** -32)); E("s_mov_b32 s96, %s" % f32(2.0 ** 32)); E("s_movk_i32 s95, 0xffe0")
E("s_waitcnt lgkmcnt(0)")
def srd(d, lo, hi, n, add=None):
    if add: E("s_add_u32 s%d, s%d, %s" % (d, lo, add)); E("s_addc_u32 s%d, s%d, 0" % (d + 1, hi))
    else: E("s_mov_b32 s%d, s%d" % (d, lo)); E("s_mov_b32 s%d, s%d" % (d + 1, hi))
    E("s_mov_b32 s%d, 0x%x" % (d + 2, n)); E("s_mov_b32 s%d, 0x00020000" % (d + 3))
srd(40, 18, 19, 1 << 21, "s9"); srd(44, 20, 21, 1 << 21, "s9")
srd(64, 38, 39, 0x400000); srd(68, 16, 17, 3584); srd(72, 34, 35, 3584); srd(76, 36, 37, 256)
stamp()
kgroup(OPT['k0'], False)
xaddr()
E("v_lshrrev_b32 v6, 1, v1"); E("v_lshrrev_b32 v7, 1, v2"); E("s_mul_i32 s8, s7, 896")
VM('x', "buffer_load_dwordx2 v[8:9], v6, s[68:71], s8 offen"); VM('x', "buffer_load_dwordx2 v[10:11], v7, s[68:71], s8 offen")
lane("v15"); E("v_lshrrev_b32 v12, 3, v15"); E("v_and_b32 v13, 7, v15")
for m in range(4): E("v_xor_b32 v%d, %d, v13" % (16 + m, 2 * m))
srd(48, 22, 23, 448 * 4096 * 2); E("s_lshl_b32 s92, s2, 7"); E("s_movk_i32 s93, 8192"); E("s_lshl_b32 s10, s7, 7")
E("s_cmp_eq_u32 s12, 0"); E("s_cbranch_scc1 Lwsel")
E("s_cmp_eq_u32 s12, 1"); E("s_cbranch_scc1 Lwg")
E("s_movk_i32 s93, 896"); E("s_and_b32 s10, s7, 1"); E("s_lshl_b32 s10, s10, 7")
E("s_mov_b32 s48, s24"); E("s_mov_b32 s49, s25"); E("s_mov_b32 s50, 0x%x" % (4096 * 448 * 2))
E("s_lshl_b32 s8, s4, 1"); E("s_add_u32 s8, s8, s88"); E("s_mul_i32 s92, s8, %d" % (256 * 896)); E("s_lshl_b32 s8, s14, 7"); E("s_add_u32 s92, s92, s8")
E("s_cmp_eq_u32 s12, 3"); E("s_cselect_b32 s50, 0, s50")
E("s_cmp_lt_u32 s7, 2"); E("s_cbranch_scc1 Lwsel")
E("s_mov_b32 s48, s32"); E("s_mov_b32 s49, s33"); E("s_mov_b32 s50, 0x%x" % (1792 * 448 * 2))
E("s_cmp_lg_u32 s88, 0"); E("s_cselect_b32 s50, 0, s50")
E("s_mul_i32 s92, s4, %d" % (224 * 896)); E("s_add_u32 s92, s92, s8")
Lb("Lwsel")
E("s_mov_b32 s52, s48"); E("s_mov_b32 s53, s49"); E("s_lshl_b32 s94, s93, 3")
E("s_branch Lwsel2")
Lb("Lwg")
E("s_mov_b32 s48, s28"); E("s_mov_b32 s49, s29"); E("s_mov_b32 s52, s30"); E("s_mov_b32 s53, s31"); E("s_mov_b32 s50, 0x%x" % (448 * 1792 * 2))
E("s_sub_u32 s92, s2, 64"); E("s_lshl_b32 s92, s92, 6"); E("s_movk_i32 s93, 3584"); E("s_mov_b32 s94, 0")
E("v_lshrrev_b32 v12, 2, v15"); E("v_and_b32 v13, 3, v15"); E("v_lshrrev_b32 v6, 5, v15"); E("v_xor_b32 v13, v6, v13")
for m in range(4): E("v_xor_b32 v%d, %d, v13" % (16 + m, 2 * (m >> 1)))
Lb("Lwsel2")
E("s_mov_b32 s54, s50"); E("s_mov_b32 s55, 0x00020000")
E("s_mul_i32 s10, s10, s93"); E("s_add_u32 s92, s92, s10"); E("s_add_u32 s94, s94, s92")
E("v_mul_lo_u32 v12, v12, s93"); E("s_lshl_b32 s93, s93, 4")
for m in range(4): E("v_lshl_add_u32 v%d, v%d, 4, v12" % (16 + m, 16 + m))
E("s_lshl_b32 s11, s7, 14"); E("s_add_u32 s11, s11, %d" % VBASE)
for f in range(8):
    E("s_add_u32 m0, s11, %d" % (2048 * f)); E("s_nop 0")
    VM('w', "buffer_load_dwordx4 v%d, s[48:51], s92 offen%s lds" % (16 + (2 * f) % 4, WNT))
    E("s_add_u32 m0, s11, %d" % (2048 * f + 1024)); E("s_nop 0")
    VM('w', "buffer_load_dwordx4 v%d, s[52:55], s94 offen%s lds" % (16 + (2 * f + 1) % 4, WNT))
    if f < 7: E("s_add_u32 s92, s92, s93"); E("s_add_u32 s94, s94, s93")
    if f == 3:
        E("s_and_b32 s8, s2, 0x60"); E("s_cmp_eq_u32 s8, 0x60"); E("s_cselect_b32 s8, 0, -1")
        for r in range(4): E("v_mov_b32 v%d, s8" % (24 + r))
        E("v_lshlrev_b32 v7, 4, v0"); E("s_lshl_b32 s8, s2, 12")
        VM('clr', "buffer_store_dwordx4 v[24:27], v7, s[64:67], s8 offen %s" % ["sc1", "sc1 nt", "sc0 sc1", "sc0 sc1 nt"][OPT['cnt']])
        E("s_cmp_lg_u32 s12, 0"); E("s_cbranch_scc1 Lnoclrq")
        E("v_bfe_u32 v12, v0, 4, 2"); E("v_and_b32 v13, 15, v0"); E("v_lshlrev_b32 v12, 13, v12"); E("v_lshl_add_u32 v12, v13, 1, v12"); E("s_add_u32 s8, s82, s83")
        E("s_mov_b32 exec_lo, 0x55555555"); E("s_mov_b32 exec_hi, 0x55555555")
        E("buffer_store_dword v24, v12, s[64:67], s8 offen sc1"); E("s_mov_b64 exec, -1")
        Lb("Lnoclrq")
def qaddr(): E("v_lshlrev_b32 v1, 13, v1"); E("v_lshl_add_u32 v1, v2, 1, v1"); E("s_add_u32 s8, s82, s83"); E("s_mov_b32 exec_lo, 0x55555555"); E("s_mov_b32 exec_hi, 0x55555555")
kgroup(OPT['k1'], False)
stamp()
wait_tag('x')
xunpack()
E("s_cmp_lg_u32 s12, 0"); E("s_cbranch_scc1 Lnoln0")
layernorm(ACT0)
Lb("Lnoln0")
kgroup(OPT['k2'], False)
E("v_bfe_u32 v12, v0, 4, 2"); E("v_bfe_u32 v13, v0, 2, 2"); E("v_xor_b32 v7, s7, v12"); E("v_and_b32 v15, 3, v0")
E("v_lshl_add_u32 v6, v12, 3, v13"); E("v_lshlrev_b32 v6, 7, v6"); E("v_lshl_add_u32 v6, v7, 5, v6"); E("v_lshl_add_u32 v6, v15, 3, v6"); E("v_add_u32 v16, 512, v6")
E("s_cmp_lg_u32 s12, 1"); E("s_cbranch_scc1 Ltra")
E("v_and_b32 v6, 1, v12"); E("v_lshl_add_u32 v6, v6, 3, v13"); E("v_lshlrev_b32 v6, 6, v6"); E("v_lshrrev_b32 v12, 1, v12"); E("v_lshl_add_u32 v6, v12, 11, v6")
E("v_lshl_add_u32 v6, v7, 4, v6"); E("v_lshrrev_b32 v12, 1, v15"); E("v_lshl_add_u32 v6, v12, 10, v6"); E("v_and_b32 v12, 1, v15"); E("v_lshl_add_u32 v6, v12, 3, v6"); E("v_add_u32 v16, 256, v6")
Lb("Ltra")
E("v_add_u32 v6, %d, v6" % VBASE); E("v_add_u32 v16, %d, v16" % VBASE)
wait_tag('w')
E("s_barrier")
for f in range(16):
    E("ds_read_b64_tr_b16 %s, v6 offset:%d" % (vr(RW + 4 * f, 2), f * 4096)); E("ds_read_b64_tr_b16 %s, v16 offset:%d" % (vr(RW + 4 * f + 2, 2), f * 4096))
    if f % 4 == 3 and f < 15: E("s_waitcnt lgkmcnt(4)")
kgroup(OPT['k3'], False)
bar()
def sig():
    E("s_mov_b64 exec, 1"); E("s_add_u32 s9, s4, 8"); E("s_cmp_eq_u32 s12, 0"); E("s_cselect_b32 s9, s13, s9"); E("s_lshl_b32 s9, s9, 4"); E("v_mov_b32 v25, 1"); E("v_mov_b32 v26, 0")
    E("buffer_atomic_add v25, v26, s[76:79], s9 offen sc1"); E("s_mov_b64 exec, -1")
worker(0, 0, sig)
def qbody():
    dense(14, ACT0)
    E("s_nop 1"); E("v_mov_b32_dpp v25, v24 quad_perm:[1,0,3,2] row_mask:0xf bank_mask:0xf")
    E("v_cvt_pk_bf16_f32 v24, v24, v25"); E("v_min_u32 v24, -2, v24"); qaddr()
    E("buffer_store_dword v24, v1, s[64:67], s8 offen sc1"); E("s_mov_b64 exec, -1")
E("s_cmp_lg_u32 s12, 0"); E("s_cbranch_scc1 Lnoq0")
qbody()
Lb("Lnoq0")
dbgt(3)
stamp()
Lb("Lloop")

lane("v15"); E("v_lshlrev_b32 v1, 4, v15"); E("v_add_u32 v3, s81, v1")
E("v_bfe_u32 v2, v0, 3, 1"); E("v_lshlrev_b32 v2, 9, v2"); E("v_bfe_u32 v6, v0, 4, 2"); E("v_lshl_add_u32 v2, v6, 4, v2")
E("v_and_b32 v6, 1, v0"); E("v_cmp_eq_u32 vcc, 0, v6"); E("v_mov_b32 v7, 0x01000c0c"); E("v_mov_b32 v12, 0x0c0c0100"); E("v_cndmask_b32 v7, v7, v12, vcc")
E("v_bfe_u32 v6, v0, 1, 2"); E("v_mov_b32 v12, 0x0c0c0c0c"); E("s_mov_b32 s91, 0x02020202")
for r in range(4): E("v_cmp_eq_u32 vcc, %d, v6" % r); E("s_nop 1"); E("v_cndmask_b32 v%d, v12, v7, vcc" % (8 + r))
E("s_lshl_b32 s8, s5, 13"); E("s_lshl_b32 s9, s62, 10"); E("s_add_u32 s90, s8, s9"); E("s_add_u32 s90, s90, s82")
qload = "buffer_load_dwordx4 v[16:19], v1, s[64:67], s90 offen sc1"
E("s_cmp_lg_u32 s3, 0"); E("s_cbranch_scc1 Lqpoll1")
E("v_mov_b32 v6, s62"); E("v_lshlrev_b32 v6, 4, v6")
pos = kpos[0]
while pos < 64 + OPT['vpre']:
    if pos < 64: kload(pos); kpos[0] += 1
    else: vload(pos - 64); vpos[0] += 1
    pos += 1
    if pos == OPT['p1']: VM('cnt', "buffer_load_dword v7, v6, s[76:79], 0 offen sc1")
    if pos == OPT['pq']:
        wait_tag('cnt')
        E("s_mov_b32 s98, 0"); Lb("Lcnt")
        E("v_cmp_gt_u32 vcc, 8, v7"); E("s_cbranch_vccz Lcntd")
        E("buffer_load_dword v7, v6, s[76:79], 0 offen sc1"); E("s_waitcnt vmcnt(0)")
        E("s_add_u32 s98, s98, 1"); E("s_cmp_lt_u32 s98, 0x8000"); E("s_cbranch_scc1 Lcnt")
        Lb("Lcntd")
        VM('q', qload)
wait_tag('q')
check(range(16, 20))
E("s_cbranch_vccz Lattn")
Lb("Lqpoll")
poll([qload], lambda: check(range(16, 20)))
Lb("Lattn")
E("ds_write_b128 v1, v[16:19] offset:%d" % QL)
E("s_waitcnt lgkmcnt(0)")
def round_tile(T, first):
    s = 32 + 4 * T
    return ["v_cvt_pk_bf16_f32 v6, v%d, v%d" % (s, s + 1), "v_cvt_pk_bf16_f32 v7, v%d, v%d" % (s + 2, s + 3),
            "v_lshlrev_b32 v%d, 16, v6" % s, "v_and_b32 v%d, 0xffff0000, v6" % (s + 1),
            "v_lshlrev_b32 v%d, 16, v7" % (s + 2), "v_and_b32 v%d, 0xffff0000, v7" % (s + 3),
            ("v_max_f32 v12, v%d, v%d" % (s, s + 1)) if first else ("v_max3_f32 v12, v12, v%d, v%d" % (s, s + 1)),
            "v_max3_f32 v12, v12, v%d, v%d" % (s + 2, s + 3)]
def FR(t): return vr(16 + 4 * t) if t < 4 else vr(64 + 4 * (t - 4))
HS = [1, 2, 13, 15]
def eflag():
    if not OPT['ef']: return
    l = lab("ef"); E("s_cmp_lg_u32 s7, 0"); E("s_cbranch_scc1 " + l)
    E("s_sub_u32 s8, s85, 0x%x" % MLB); E("s_lshr_b32 s9, s8, 7"); E("s_lshl_b32 s9, s9, 5"); E("s_lshl_b32 s8, s6, 2"); E("s_add_u32 s8, s8, s9"); E("s_add_u32 s8, s8, s86"); E("s_add_u32 s8, s8, 0x%x" % FLG)
    E("v_mov_b32 v4, 0"); E("s_mov_b64 exec, 1"); E("buffer_store_dword v4, v4, s[64:67], s8 offen sc1"); E("s_mov_b64 exec, -1")
    Lb(l)
def core(L0):
    for t in range(8): E("ds_read_b128 %s, v2 offset:%d" % (FR(t), QL + 64 * t))
    for G in range(4):
        if L0:
            vgroup(4)
            E("s_waitcnt vmcnt(%d)" % min(63, len(vm) - 1 - [j for j, x in enumerate(vm) if x == 'K'][16 * G + 15]))
        if not L0 and G == 4 - (OPT['nq'] + 1) // 2: E("s_waitcnt vmcnt(0)")
        if G: extra = [None] * 3 + round_tile(2 * G - 2, G == 1) + round_tile(2 * G - 1, False)
        else:
            extra = []
            for c in range(4): extra += ["v_lshrrev_b32 v6, 2, v%d" % (8 + c), "v_bfi_b32 v6, v6, 0, s91", "v_or_b32 v%d, v6, v%d" % (HS[c], 8 + c)]
        for t in range(8):
            if G == 0: E("s_waitcnt lgkmcnt(%d)" % (7 - t))
            for d in range(2):
                T = 2 * G + d
                E("v_mfma_f32_16x16x32_bf16 %s, %s, %s, %s" % (vr(32 + 4 * T), ar(32 * T + 4 * t), FR(t), "0" if t == 0 else vr(32 + 4 * T)))
                for _ in range(2 if t >= 5 else 1):
                    if extra:
                        x = extra.pop(0)
                        if x: E(x)
        assert not extra
    if OPT['fine'] and not L0: E("s_memrealtime s[56:57]")
    lu = [u for u in range(64) if inlds(u)]
    nis = [0]
    def ldsread():
        if nis[0] >= len(lu): return
        u = lu[nis[0]]
        if L0: wait_tag('V%d' % u)
        E("ds_read_b128 %s, v3 offset:%d" % (vr(64 + 4 * (nis[0] % 4)), 4096 + lslot(u) * 1024)); nis[0] += 1
    for _ in range(4): ldsread()
    E("s_nop 3")
    for x in round_tile(6, False): E(x)
    for x in round_tile(7, False): E(x)
    E("v_mov_b32 v6, v12"); E("s_nop 1"); E("v_permlane16_swap_b32 v12, v6"); E("s_nop 1"); E("v_max_f32 v12, v12, v6")
    E("v_mov_b32 v6, v12"); E("s_nop 1"); E("v_permlane32_swap_b32 v12, v6"); E("v_mov_b32 v7, 0"); E("s_nop 0"); E("v_max_f32 v12, v12, v6")
    E("v_mul_f32 v14, s99, v12"); E("v_mov_b32 v6, 0")
    def soft(T):
        s = 32 + 4 * T
        fm = lambda a: "v_pk_fma_f32 %s, %s, s[98:99], v[14:15] op_sel:[0,1,0] op_sel_hi:[1,1,0] neg_lo:[0,0,1] neg_hi:[0,0,1]" % (vr(a, 2), vr(a, 2))
        ex = lambda a: "v_exp_f32 v%d, v%d" % (a, a)
        ad = lambda a: "v_pk_add_f32 v[6:7], v[6:7], %s" % vr(a, 2)
        return [[fm(s), fm(s + 2), ex(s), ex(s + 1)], [ex(s + 2), ex(s + 3), ad(s), "v_cvt_pk_bf16_f32 v%d, v%d, v%d" % (s, s, s + 1)],
                ["v_cvt_pk_bf16_f32 v%d, v%d, v%d" % (s + 1, s + 2, s + 3)], [ad(s + 2)]]
    def bmk(k):
        src = 32 + 4 * (k // 4) + ((k % 4) >> 1)
        return ["v_perm_b32 v%d, v%d, v%d, v%d" % (16 + 4 * (k & 1) + c, src, src, HS[c] if k & 1 else 8 + c) for c in range(4)]
    for g in soft(0):
        for x in g: E(x)
    for x in bmk(0): E(x)
    E("s_nop 0")
    if OPT['fine'] and not L0: E("s_memrealtime s[58:59]")
    for k in range(32):
        b = 16 + 4 * (k & 1)
        if L0: vgroup(2)
        if not L0 and k == OPT['kf']: eflag()
        if L0 and k == OPT['late']:
            E("v_and_b32 v4, 15, v0"); E("v_lshlrev_b32 v4, 4, v4")
            VM('cnt2', "buffer_load_dword v4, v4, s[76:79], 0 offen sc1")
        for hf in range(2):
            u = 2 * k + hf
            if inlds(u):
                n = lu.index(u)
                E("s_waitcnt lgkmcnt(%d)" % (nis[0] - 1 - n)); A = vr(64 + 4 * (n % 4))
            else:
                if L0: wait_tag('V%d' % u)
                A = vr(144 + 4 * (k - 4))
            acc = vr(24 + 4 * hf)
            E("v_mfma_f32_16x16x32_bf16 %s, %s, %s, %s" % (acc, A, vr(b), "0" if k == 0 else acc))
            if inlds(u): ldsread()
            if hf == 0:
                if k < 31:
                    for x in bmk(k + 1): E(x)
            elif k < 28:
                for x in soft(k // 4 + 1)[k % 4]: E(x)
    E("v_add_f32 v13, v6, v7")
    if OPT['fine'] and not L0: E("s_memrealtime s[60:61]")
    if L0:
        wait_tag('cnt2')
        E("v_and_b32 v6, 15, v0"); E("v_cmp_gt_u32 vcc, 8, v6"); E("v_mov_b32 v7, 24"); E("v_lshlrev_b32 v6, 4, v6"); E("v_cndmask_b32 v7, v7, 8, vcc")
        E("s_mov_b32 s98, 0"); Lb("Lcnt2")
        E("v_cmp_gt_u32 vcc, v7, v4"); E("s_cbranch_vccz Lcnt2d")
        E("buffer_load_dword v4, v6, s[76:79], 0 offen sc1"); E("s_waitcnt vmcnt(0)")
        E("s_add_u32 s98, s98, 1"); E("s_cmp_lt_u32 s98, 0x8000"); E("s_cbranch_scc1 Lcnt2")
        Lb("Lcnt2d")
stamp(); stamp_n[0] -= OPT['stamps']
core(True)
E("s_barrier")
eflag()
E("s_branch Lepi")
Lb("Lqpoll1")
worker(0, 0, lambda: ppoll(OPT['nq'], lambda i: ["buffer_load_dwordx4 %s, v1, s[64:67], s90 offen sc1" % vr(60 - 4 * i)],
                           lambda i: check(range(60 - 4 * i, 64 - 4 * i)), lambda i: E("ds_write_b128 v1, %s offset:%d" % (vr(60 - 4 * i), QL)), 0, OPT['zq']))
bar()
stamp()
core(False)
Lb("Lepi")
E("v_mov_b32 v6, v13"); E("s_nop 1"); E("v_permlane16_swap_b32 v13, v6"); E("s_nop 1"); E("v_add_f32 v13, v13, v6")
E("v_mov_b32 v6, v13"); E("s_nop 1"); E("v_permlane32_swap_b32 v13, v6"); E("s_nop 1"); E("v_add_f32 v13, v13, v6")
E("v_bfe_u32 v6, v0, 3, 1"); E("v_lshlrev_b32 v7, 10, v6"); E("v_bfe_u32 v1, v0, 4, 2"); E("v_lshl_add_u32 v7, v1, 5, v7")
E("v_and_b32 v1, 7, v0"); E("v_lshl_add_u32 v7, v1, 2, v7"); E("s_lshl_b32 s8, s7, 11"); E("v_add_u32 v7, s8, v7")
E("s_lshl_b32 s8, s7, 4"); E("v_lshl_add_u32 v6, v6, 3, s8")
for hf in range(2):
    for r in range(4): E("ds_write_b32 v7, v%d offset:%d" % (24 + 4 * hf + r, OM + (r * 2 + hf) * 128))
E("s_mov_b64 exec, 0x101"); E("ds_write_b64 v6, v[12:13] offset:%d" % ML); E("s_mov_b64 exec, -1")
E("v_lshlrev_b32 v6, 2, v0"); E("v_lshrrev_b32 v2, 7, v0"); E("v_lshlrev_b32 v3, 3, v2")
E("v_lshlrev_b32 v1, 10, v2"); E("v_bfe_u32 v7, v0, 6, 1"); E("v_lshl_add_u32 v1, v7, 7, v1"); E("v_bfe_u32 v7, v0, 2, 2"); E("v_lshl_add_u32 v1, v7, 8, v1")
E("v_bfe_u32 v7, v0, 4, 2"); E("v_lshl_add_u32 v1, v7, 5, v1"); E("v_and_b32 v7, 3, v0"); E("v_lshl_add_u32 v1, v7, 3, v1")
E("v_lshlrev_b32 v7, 6, v2"); E("s_add_u32 s8, s84, s86"); E("s_add_u32 s9, s85, s86")
bar()
for w in range(4): E("ds_read_b64 %s, v3 offset:%d" % (vr(40 + 2 * w, 2), ML + 16 * w))
for w in range(4): E("ds_read_b64 %s, v1 offset:%d" % (vr(32 + 2 * w, 2), OM + 2048 * w))
E("s_waitcnt lgkmcnt(4)")
E("v_max_f32 v26, v40, v42"); E("v_max3_f32 v26, v26, v44, v46")
for w in range(4): E("v_sub_f32 v%d, v%d, v26" % (40 + 2 * w, 40 + 2 * w)); E("v_mul_f32 v%d, s99, v%d" % (40 + 2 * w, 40 + 2 * w))
for w in range(4): E("v_exp_f32 v%d, v%d" % (40 + 2 * w, 40 + 2 * w))
E("s_waitcnt lgkmcnt(0)")
E("v_mul_f32 v24, v40, v32"); E("v_mul_f32 v25, v40, v33"); E("v_mul_f32 v27, v40, v41")
for w in range(1, 4):
    E("v_fmac_f32 v24, v%d, v%d" % (40 + 2 * w, 32 + 2 * w)); E("v_fmac_f32 v25, v%d, v%d" % (40 + 2 * w, 33 + 2 * w)); E("v_fmac_f32 v27, v%d, v%d" % (40 + 2 * w, 41 + 2 * w))
E("v_cvt_pk_bf16_f32 v24, v24, v25"); E("v_min_u32 v24, -2, v24"); E("v_min_u32 v26, -2, v26"); E("v_min_u32 v27, -2, v27")
E("buffer_store_dword v24, v6, s[64:67], s8 offen sc1")
E("s_and_b32 s10, s7, 1"); E("s_cmp_lg_u32 s10, 0"); E("s_cbranch_scc1 Lnoml")
E("s_mov_b64 exec, 1"); E("buffer_store_dwordx2 v[26:27], v7, s[64:67], s9 offen sc1"); E("s_mov_b64 exec, -1")
Lb("Lnoml")
stamp()
if OPT['fine']:
    for i in range(3):
        l = lab("fs"); E("s_cmp_lg_u32 s7, 0"); E("s_cbranch_scc1 " + l); E("s_cmp_lg_u32 s3, 1"); E("s_cbranch_scc1 " + l)
        E("v_mov_b32 v6, s%d" % (56 + 2 * i)); E("s_lshl_b32 s9, s2, 8"); E("s_add_u32 s9, s9, 0x%x" % (STP + 128 + (20 + i) * 4)); E("v_mov_b32 v7, 0")
        E("s_mov_b64 exec, 1"); E("buffer_store_dword v6, v7, s[64:67], s9 offen"); E("s_mov_b64 exec, -1"); Lb(l)

if OPT['dbg']:
    E("s_cmp_lg_u32 s3, 0"); E("s_cbranch_scc1 Ldbg1"); dbgt(1); Lb("Ldbg1")
E("s_cmp_eq_u32 s12, 1"); E("s_cbranch_scc1 Lg")
E("s_cmp_eq_u32 s12, 0"); E("s_cbranch_scc1 Lq")
E("s_cmp_eq_u32 s12, 3"); E("s_cbranch_scc1 Lf")
lane("v15"); E("v_lshlrev_b32 v1, 3, v15"); E("v_and_b32 v2, 56, v1"); E("s_mul_i32 s8, s7, %d" % PITCH); E("v_add_u32 v3, s8, v1")
E("s_lshl_b32 s8, s7, 3"); E("s_add_u32 s8, s8, s4"); E("s_lshl_b32 s9, s8, 13"); E("s_add_u32 s9, s9, s86"); E("s_lshl_b32 s10, s88, 9"); E("s_add_u32 s9, s9, s10"); E("s_add_u32 s10, s9, 4096")
E("s_lshl_b32 s11, s8, 7"); E("s_add_u32 s11, s11, s86"); E("s_add_u32 s11, s11, 0x%x" % MLB); E("s_lshl_b32 s8, s88, 6"); E("s_add_u32 s11, s11, s8")
OBB = [44, 62]
def obl(i): return ["buffer_load_dwordx2 %s, v2, s[64:67], s11 offen sc1" % vr(OBB[i] + 16, 2)] + \
    ["buffer_load_dwordx2 %s, v1, s[64:67], %s offen offset:%d sc1" % (vr(OBB[i] + 2 * s, 2), "s9" if s < 4 else "s10", (s % 4) * 1024) for s in range(8)]
D3 = ["quad_perm:[1,0,3,2] row_mask:0xf bank_mask:0xf", "quad_perm:[2,3,0,1] row_mask:0xf bank_mask:0xf", "row_half_mirror row_mask:0xf bank_mask:0xf"]
def obs(i):
    o = OBB[i]
    ecount(XS1)
    def unp(s):
        for q in range(2): E("v_lshlrev_b32 v%d, 16, v%d" % (16 + 2 * s + q, o + 2 * s + q)); E("v_and_b32 v%d, 0xffff0000, v%d" % (o + 2 * s + q, o + 2 * s + q))
    E("v_max_f32_dpp v6, v%d, v%d " % (o + 16, o + 16) + D3[0]); unp(0)
    E("v_max_f32_dpp v6, v6, v6 " + D3[1]); unp(1)
    E("v_max_f32_dpp v6, v6, v6 " + D3[2]); unp(2)
    E("v_sub_f32 v6, v%d, v6" % (o + 16)); E("v_mul_f32 v6, s99, v6"); E("v_exp_f32 v6, v6"); unp(3)
    E("v_mul_f32 v7, v6, v%d" % (o + 17)); unp(4)
    E("v_add_f32_dpp v7, v7, v7 " + D3[0]); unp(5)
    E("v_add_f32_dpp v7, v7, v7 " + D3[1]); unp(6)
    E("v_add_f32_dpp v7, v7, v7 " + D3[2]); unp(7)
    for s in range(8): E("v_readlane_b32 s%d, v6, %d" % (16 + s, s))
    E("v_rcp_f32 v7, v7")
    for s in range(8):
        for q in range(4):
            src = (16 if q % 2 == 0 else o) + 2 * s + q // 2
            if s == 0: E("v_mul_f32 v%d, s16, v%d" % (32 + q, src))
            else: E("v_fmac_f32 v%d, s%d, v%d" % (32 + q, 16 + s, src))
if OPT['ef']:
    E("s_lshl_b32 s8, s7, 3"); E("s_add_u32 s8, s8, s4"); E("s_lshl_b32 s8, s8, 5"); E("s_add_u32 s8, s8, s86"); E("s_add_u32 s16, s8, 0x%x" % FLG); E("v_lshrrev_b32 v6, 1, v2")
    ppoll(1, lambda i: ["buffer_load_dword v7, v6, s[64:67], s16 offen sc1"], lambda i: E("v_cmp_eq_u32 vcc, -1, v7"), lambda i: None)
    E("s_cmp_eq_u32 s3, 0"); E("s_cbranch_scc1 Lnodw")
    if OPT['dw']: E("s_sleep %d" % OPT['dw'])
    Lb("Lnodw")
    if OPT['dw0']: E("s_sleep %d" % OPT['dw0'])
def ecount(base):
    if not OPT['ec']: return
    E("s_lshl_b32 s8, s14, 7"); E("s_add_u32 s8, s8, s15"); E("s_add_u32 s8, s8, s86"); E("s_add_u32 s8, s8, 0x%x" % (base + 0x4000))
    E("v_mov_b32 v4, 1"); E("v_mov_b32 v5, 0"); E("s_mov_b64 exec, 1"); E("buffer_atomic_add v4, v5, s[64:67], s8 offen sc1"); E("s_mov_b64 exec, -1")
ppoll(OPT['no'], obl, lambda i: check(range(OBB[i], OBB[i] + 18)), obs, OPT['io'], OPT['zo'])
for q in range(4): E("v_mul_f32 v%d, v%d, v7" % (32 + q, 32 + q))
for q in range(2): E("v_cvt_pk_bf16_f32 v%d, v%d, v%d" % (36 + q, 32 + 2 * q, 33 + 2 * q))
E("ds_write_b64 v3, v[36:37] offset:%d" % ACT1)
stamp()
def xatomic(base):
    E("v_rndne_f32 v25, v24"); E("v_sub_f32 v26, v24, v25"); E("v_cvt_i32_f32 v25, v25"); E("v_mul_f32 v26, s96, v26"); E("v_cvt_i32_f32 v24, v26")
    E("v_lshlrev_b32 v1, 12, v1"); E("v_lshl_add_u32 v1, v2, 3, v1")
    E("v_ashrrev_i32 v26, 31, v24"); E("v_add_u32 v25, v25, v26"); E("v_and_or_b32 v24, v24, s95, 1")
    E("s_lshl_b32 s8, s89, 3"); E("s_add_u32 s8, s8, s86"); E("s_add_u32 s8, s8, 0x%x" % base)
    for r in range(OPT['R']):
        if r: E("s_add_u32 s8, s8, 0x4000")
        E("buffer_atomic_add_x2 v[24:25], v1, s[64:67], s8 offen sc1")
dense(8, ACT1, RW, (8, 12, 16, 20, 32, 36, 40)); xatomic(XS1)
stamp()
E("s_cmp_lg_u32 s88, 0"); E("s_cbranch_scc1 Lnexts")
lane("v15"); E("v_min_u32 v1, 27, v15"); E("v_lshlrev_b32 v1, 4, v1")
E("s_lshl_b32 s8, s7, 12"); E("s_mul_i32 s9, s4, 448"); E("s_add_u32 s9, s9, s8"); E("s_add_u32 s9, s9, s86"); E("s_add_u32 s9, s9, 0x%x" % AB)
E("s_mul_i32 s8, s7, %d" % PITCH); E("v_add_u32 v2, s8, v1")
ppoll(OPT['np'], lambda i: ["buffer_load_dwordx4 %s, v1, s[64:67], s9 offen sc1" % vr(64 + 4 * i)], lambda i: check(range(64 + 4 * i, 68 + 4 * i)),
      lambda i: (E("ds_write_b128 v2, %s offset:%d" % (vr(64 + 4 * i), ACT0)), ecount(XS2)), OPT['ia'], OPT['za'])
stamp()
dense(7, ACT0, RW + 32); xatomic(XS2)
stamp()
E("s_branch Lnext")
Lb("Lg")
xinit()
E("s_cmp_eq_u32 s3, 0"); E("s_cbranch_scc1 Lg1")
xfront([("0x%x" % XS2, 8)])
Lb("Lg1")
E("s_add_u32 s91, s86, 0x%x" % XS1)
xtrig("s91", 16, OPT['ig'])
xfront([("s91", 16)], 0, 1, OPT['l2'])
stamp()
xunpack(); layernorm(ACT0)
dense(14, ACT0)
bf16r("v24", "v24"); E("s_nop 1"); E("v_mov_b32_dpp v28, v24 row_ror:8 row_mask:0xf bank_mask:0xf")
k2 = -2 * 0.7978845608028654 * 1.4426950408889634
E("v_mul_f32 v26, v24, v24"); E("v_mov_b32 v25, %s" % f32(k2)); E("v_fmac_f32 v25, %s, v26" % f32(k2 * 0.044715))
E("v_mul_f32 v25, v25, v24"); E("v_exp_f32 v25, v25"); E("s_nop 0"); E("v_add_f32 v25, 1.0, v25"); E("v_rcp_f32 v25, v25"); E("s_nop 0")
E("v_mul_f32 v25, v25, v24"); bf16r("v25", "v25"); E("v_mul_f32 v25, v25, v28")
E("v_lshlrev_b32 v1, 12, v1"); E("v_lshl_add_u32 v1, v2, 1, v1")
E("v_mov_b32_dpp v26, v25 quad_perm:[1,0,3,2] row_mask:0xf bank_mask:0xf")
E("v_cvt_pk_bf16_f32 v24, v25, v26"); E("v_min_u32 v24, -2, v24")
E("s_add_u32 s8, s86, s87"); E("s_add_u32 s8, s8, 0x%x" % AB)
E("s_mov_b32 exec_lo, 0x00550055"); E("s_mov_b32 exec_hi, 0x00550055")
E("buffer_store_dword v24, v1, s[64:67], s8 offen sc1"); E("s_mov_b64 exec, -1")
stamp()
E("s_branch Lnextg")
Lb("Lq")
E("s_cmp_lg_u32 s3, 0"); E("s_cbranch_scc1 Lend")
xinit()
xtrig("0x%x" % XS2, 8, OPT['it'])
xfront([("0x%x" % XS1, 16), ("0x%x" % XS2, 8)], 0, 1, OPT['l2'])
stamp()
xunpack(); layernorm(ACT0)
E("s_mov_b32 s82, 0x%x" % QB1)
qbody()
stamp()
E("s_branch Lnext")
Lb("Lf")
E("s_cmp_eq_u32 s3, 0"); E("s_cbranch_scc1 Lnexts")
E("s_cmp_lg_u32 s2, 255"); E("s_cbranch_scc1 Lend")
xinit()
xfront([("0x%x" % XS1, 16), ("0x%x" % XS2, 8)])
xfront([("0x%x" % (XS1 + LSTEP), 16)], OPT['lazy'])
xfront([("0x%x" % (XS2 + LSTEP), 8)], 0, OPT['nx'])
E("v_lshrrev_b32 v1, 1, v1"); E("v_lshrrev_b32 v2, 1, v2"); E("s_mul_i32 s8, s7, 896")
E("buffer_store_dwordx2 v[8:9], v1, s[72:75], s8 offen")
E("s_mov_b32 exec_hi, 0xffff")
E("buffer_store_dwordx2 v[10:11], v2, s[72:75], s8 offen")
stamp()
dbgt(2)
E("s_branch Lend")
Lb("Lnexts")
if OPT['iq']: E("s_cmp_lg_u32 s3, 0"); E("s_cbranch_scc1 Lend"); E("s_sleep %d" % OPT['iq'])
Lb("Lnextg")
if OPT['iq']: E("s_cmp_lg_u32 s3, 0"); E("s_cbranch_scc1 Lend"); E("s_sleep %d" % OPT['iq'])
Lb("Lnext")
E("s_cmp_lg_u32 s3, 0"); E("s_cbranch_scc1 Lend")
E("s_waitcnt vmcnt(0)")
E("s_mov_b32 s3, 1"); E("s_mov_b32 s86, 0x%x" % LSTEP); E("s_mov_b32 s82, 0x%x" % QB1)
E("s_branch Lloop")

Lb("Lend")
E("s_endpgm")
out += ['.section .rodata,"a"', ".p2align 6", ".amdhsa_kernel %s_kernel" % NAME,
        "  .amdhsa_next_free_vgpr 512", "  .amdhsa_next_free_sgpr 102", "  .amdhsa_accum_offset 256",
        "  .amdhsa_group_segment_fixed_size 0", "  .amdhsa_kernarg_size 96", "  .amdhsa_user_sgpr_count 2",
        "  .amdhsa_user_sgpr_kernarg_segment_ptr 1", "  .amdhsa_system_sgpr_workgroup_id_x 1", ".end_amdhsa_kernel"]
open(sys.argv[1], "w").write("\n".join(out) + "\n")
```

```python
import sys, struct
NAME = "interleave_layers__gqa_block_cached__geglu_ffn__decode"
OPT = dict(nt=1, stamps=0, p1=40, pq=60, vpre=16, lazy=8, k0=0, k1=6, k2=6, k3=4, trig=1, wnt=1, dbg=0, fine=0, late=8, R=1, np=1, nq=1, no=1, nx=1, rtt=21, iq=0, zq=0, io=0, zo=0, ig=0, it=0, zt=0, ia=0, za=0, ef=1, kf=24, dw=0, dw0=0, ec=0, l2=0, l2o=0, cnt=0, map=1, lay=3, th=25, gm=0, X=24)
for a in sys.argv[2:]:
    k, v = a.split('='); OPT[k] = int(v)
out = []
SS, SW, ST = [(18, 16, 13), (13, 16, 18), (13, 19, 16), (15, 13, 18), (16, 19, 13), (18, 13, 15)][OPT['lay']]
def E(s): out.append("    " + s)
def Lb(s): out.append(s + ":")
def f32(x): return "0x%08x" % struct.unpack('<I', struct.pack('<f', x))[0]
NT = ["", " nt", " sc1 nt", " sc0 sc1 nt", " sc0 nt", " sc1"][OPT['nt']]; WNT = ["", " nt"][OPT['wnt']]
NLDSV = 36; VBASE = 16384; LDS_TOTAL = 163840
ACT0 = 0; OM = 0; ACT1 = 8192; QL = 8192; XRES = 12544; ML = 16128; PITCH = 1088
OB = 0; XS1 = 0x60000; XS2 = 0x70000; AB = 0x58000; MLB = 0x5C000; QB1 = 0x48000; FLG = 0x5D000; AU = 0x40000; QB0 = 0x100000; LSTEP = 0x80000; STP = 0x300000
RW = 80
vm = []
def VM(tag, s): vm.append(tag); E(s)
def wait_tag(tag):
    idx = max(i for i, t in enumerate(vm) if t == tag)
    E("s_waitcnt vmcnt(%d)" % min(len(vm) - 1 - idx, 63))
uid = [0]
def lab(p): uid[0] += 1; return "L%s%d" % (p, uid[0])
stamp_n = [0]
def stamp(wave=0):
    if not OPT['stamps']: return
    n = stamp_n[0]; stamp_n[0] += 1; l = lab("st")
    E("s_cmp_lg_u32 s7, %d" % wave); E("s_cbranch_scc1 " + l)
    E("s_memrealtime s[8:9]"); E("s_waitcnt lgkmcnt(0)")
    E("v_mov_b32 v6, s8"); E("s_lshl_b32 s9, s2, 8"); E("s_lshl_b32 s8, s3, 7"); E("s_add_u32 s9, s9, s8")
    E("s_add_u32 s9, s9, 0x%x" % (STP + n * 4)); E("v_mov_b32 v7, 0")
    E("s_mov_b64 exec, 1"); E("buffer_store_dword v6, v7, s[64:67], s9 offen"); E("s_mov_b64 exec, -1")
    Lb(l)
def bf16r(dst, src): E("v_cvt_pk_bf16_f32 %s, %s, %s" % (dst, src, src)); E("v_lshlrev_b32 %s, 16, %s" % (dst, dst))
def vr(a, n=4): return "v[%d:%d]" % (a, a + n - 1)
def ar(a, n=4): return "a[%d:%d]" % (a, a + n - 1)
def poll(loads, chk, sleep=0, l2=0):
    l = lab("poll")
    if l2:
        for s in loads: E(s.replace(" sc1", ""))
        E("s_waitcnt vmcnt(0)"); chk()
        E("s_cbranch_vccz %sd" % l)
    E("s_mov_b32 s98, 0"); Lb(l)
    for s in loads: E(s)
    E("s_waitcnt vmcnt(0)"); chk()
    E("s_cbranch_vccz %sd" % l)
    if sleep: E("s_sleep %d" % sleep)
    E("s_add_u32 s98, s98, 1"); E("s_cmp_lt_u32 s98, 0x8000"); E("s_cbranch_scc1 " + l)
    Lb(l + "d")
def ppoll(n, loads, chk, succ, ini=0, slp=0):
    l = lab("pp"); m = len(loads(0))
    E("s_mov_b32 s98, 0")
    if ini: E("s_sleep %d" % ini)
    for i in range(n):
        if i: E("s_sleep %d" % (OPT['rtt'] // n))
        for x in loads(i): E(x)
    Lb(l)
    for i in range(n):
        E("s_waitcnt vmcnt(%d)" % ((n - 1) * m)); chk(i)
        E("s_cbranch_vccz %s_%d" % (l, i))
        if slp: E("s_sleep %d" % slp)
        for x in loads(i): E(x)
    E("s_add_u32 s98, s98, 1"); E("s_cmp_lt_u32 s98, 0x4000"); E("s_cbranch_scc1 " + l)
    for i in range(n - 1, -1, -1):
        Lb("%s_%d" % (l, i)); succ(i)
        if i: E("s_branch %sd" % l)
    Lb(l + "d")
def check(regs, t="v15"):
    r = list(regs)
    E("v_max3_u32 %s, v%d, v%d, v%d" % (t, r[0], r[1], r[2])); r = r[3:]
    while len(r) >= 2: E("v_max3_u32 %s, %s, v%d, v%d" % (t, t, r[0], r[1])); r = r[2:]
    if r: E("v_max_u32 %s, %s, v%d" % (t, t, r[0]))
    E("v_cmp_eq_u32 vcc, -1, %s" % t)
kpos = [0]
def kload(n):
    T, t = n // 8, n % 8
    E("s_add_u32 s10, s80, %d" % (T << ST))
    VM('K', "buffer_load_dwordx4 %s, v4, s[40:43], s10 offen offset:%d%s" % (ar(4 * n), 64 * t, NT))
def kgroup(cnt, cond=True):
    l = lab("kg")
    if cond: E("s_cmp_lg_u32 s3, 0"); E("s_cbranch_scc1 " + l)
    for _ in range(cnt): kload(kpos[0]); kpos[0] += 1
    if cond: Lb(l)
def inlds(u): return u % 2 == 0 or u < 8
def lslot(u): return u if u < 8 else 8 + (u // 2 - 4)
def vload(u):
    T, r, hf = u // 8, (u // 2) % 4, u % 2
    E("s_add_u32 s10, s80, %d" % (T << ST))
    io = r * 512 + hf * 256
    if inlds(u):
        E("s_add_u32 m0, s81, %d" % (lslot(u) * 1024 + 4096 - io)); E("s_nop 0")
        VM('V%d' % u, "buffer_load_dwordx4 v5, s[44:47], s10 offen offset:%d%s lds" % (io, NT))
    else:
        VM('V%d' % u, "buffer_load_dwordx4 %s, v5, s[44:47], s10 offen offset:%d%s" % (vr(144 + 4 * (u // 2 - 4)), io, NT))
vpos = [0]
def vgroup(cnt):
    cnt = min(cnt, 64 - vpos[0])
    for _ in range(cnt): vload(vpos[0]); vpos[0] += 1
def lane(dst): E("v_and_b32 %s, 63, v0" % dst)
def xaddr():
    lane("v15"); E("v_lshlrev_b32 v1, 4, v15"); E("v_min_u32 v2, 47, v15"); E("v_lshlrev_b32 v2, 4, v2"); E("v_add_u32 v2, 1024, v2")
    E("s_mul_i32 s8, s7, 896"); E("s_add_u32 s8, s8, %d" % XRES)
    E("v_lshrrev_b32 v3, 1, v1"); E("v_add_u32 v3, s8, v3"); E("v_lshrrev_b32 v14, 1, v2"); E("v_add_u32 v14, s8, v14")
def xinit():
    xaddr()
    E("ds_read_b64 v[8:9], v3"); E("ds_read_b64 v[10:11], v14")
    E("v_lshlrev_b32 v6, 1, v1"); E("v_lshlrev_b32 v7, 1, v2")
def xtrig(off, P, ini):
    if not OPT['trig']: return
    E("s_add_u32 s9, s15, %s" % off); E("s_and_b32 s8, s2, 7"); E("s_mul_i32 s8, s8, 3"); E("s_bfe_u32 s10, s2, 0x20003"); E("s_add_u32 s8, s8, s10")
    if OPT['ec']:
        E("s_add_u32 s8, s4, s13"); E("s_and_b32 s8, s8, 7"); E("s_cmp_eq_u32 s8, 7"); E("s_cselect_b32 s8, s10, s8"); E("s_add_u32 s9, s9, 0x4000")
    E("s_lshl_b32 s8, s8, 7"); E("s_add_u32 s9, s9, s8"); E("v_mov_b32 v25, 0")
    ppoll(OPT['np'], lambda i: ["buffer_load_dword v%d, v25, s[64:67], s9 offen sc1" % (72 + i)],
          lambda i: (E("v_and_b32 v24, %d, v%d" % (P, 72 + i)), E("v_cmp_eq_u32 vcc, 0, v24")), lambda i: None, ini, OPT['zt'])
def xfront(lst, sleep=0, pipe=1, l2=0):
    loads = []
    for n, (off, P) in enumerate(lst):
        E("s_add_u32 s%d, s15, %s" % (9 + n, off))
        loads += ["buffer_load_dwordx4 %s, v%d, s[64:67], s%d offen offset:%d sc1" % (vr(32 + 16 * n + 4 * i), 6 + i // 2, 9 + n, 16 * (i & 1)) for i in range(4)]
    def chk():
        for n, (off, P) in enumerate(lst):
            o = 32 + 16 * n
            E("v_and_b32 v24, v%d, v%d" % (o, o + 2)); E("v_and_b32 v25, v%d, v%d" % (o + 4, o + 6)); E("v_and_b32 v26, v%d, v%d" % (o + 8, o + 10)); E("v_and_b32 v27, v%d, v%d" % (o + 12, o + 14))
            E("v_and_b32 v24, v24, v25"); E("v_and_b32 v26, v26, v27"); E("v_and_b32 v24, v24, v26"); E("v_and_b32 v%d, %d, v24" % (28 + n, P))
        if len(lst) == 2: E("v_min_u32 v28, v28, v29")
        E("v_cmp_eq_u32 vcc, 0, v28")
    if pipe > 1:
        P = lst[0][1]
        def chk2(i):
            o = 32 + 16 * i
            E("v_and_b32 v24, v%d, v%d" % (o, o + 2)); E("v_and_b32 v25, v%d, v%d" % (o + 4, o + 6)); E("v_and_b32 v26, v%d, v%d" % (o + 8, o + 10)); E("v_and_b32 v27, v%d, v%d" % (o + 12, o + 14))
            E("v_and_b32 v24, v24, v25"); E("v_and_b32 v26, v26, v27"); E("v_and_b32 v24, v24, v26"); E("v_and_b32 v28, %d, v24" % P); E("v_cmp_eq_u32 vcc, 0, v28")
        def dec(i):
            o = 32 + 16 * i
            for q in range(8): E("v_lshrrev_b32 v%d, 31, v%d" % (16 + q, o + 2 * q)); E("v_cvt_f32_i32 v%d, v%d" % (o + 2 * q, o + 2 * q))
            for q in range(8): E("v_add_u32 v%d, v%d, v%d" % (16 + q, 16 + q, o + 1 + 2 * q))
            for q in range(8): E("v_cvt_f32_i32 v%d, v%d" % (16 + q, 16 + q))
            for q in range(8): E("v_fmac_f32 v%d, s97, v%d" % (16 + q, o + 2 * q))
        ppoll(pipe, lambda i: ["buffer_load_dwordx4 %s, v%d, s[64:67], s9 offen offset:%d sc1" % (vr(32 + 16 * i + 4 * j), 6 + j // 2, 16 * (j & 1)) for j in range(4)], chk2, dec)
    else: poll(loads, chk, sleep, l2)
    E("s_waitcnt lgkmcnt(0)")
    for n in range(len(lst)):
        o = 32 + 16 * n
        if pipe == 1:
            for q in range(8): E("v_lshrrev_b32 v%d, 31, v%d" % (16 + q, o + 2 * q)); E("v_cvt_f32_i32 v%d, v%d" % (o + 2 * q, o + 2 * q))
            for q in range(8): E("v_add_u32 v%d, v%d, v%d" % (16 + q, 16 + q, o + 1 + 2 * q))
            for q in range(8): E("v_cvt_f32_i32 v%d, v%d" % (16 + q, 16 + q))
            for q in range(8): E("v_fmac_f32 v%d, s97, v%d" % (16 + q, o + 2 * q))
        for q in range(4):
            E("v_cvt_pk_bf16_f32 v24, v%d, v%d" % (16 + 2 * q, 17 + 2 * q))
            E("v_lshlrev_b32 v25, 16, v24"); E("v_and_b32 v26, 0xffff0000, v24")
            E("v_lshlrev_b32 v27, 16, v%d" % (8 + q)); E("v_and_b32 v28, 0xffff0000, v%d" % (8 + q))
            E("v_add_f32 v25, v25, v27"); E("v_add_f32 v26, v26, v28")
            E("v_cvt_pk_bf16_f32 v%d, v25, v26" % (8 + q))
def xunpack():
    for q in range(4): E("v_lshlrev_b32 v%d, 16, v%d" % (16 + 2 * q, 8 + q)); E("v_and_b32 v%d, 0xffff0000, v%d" % (17 + 2 * q, 8 + q))
    E("ds_write_b64 v3, v[8:9]"); E("ds_write_b64 v14, v[10:11]")
def layernorm(act):
    E("v_add_f32 v24, v16, v17"); E("v_add_f32 v26, v18, v19"); E("v_mul_f32 v25, v16, v16"); E("v_add_f32 v24, v24, v26")
    for q in (17, 18, 19): E("v_fmac_f32 v25, v%d, v%d" % (q, q))
    E("s_mov_b32 exec_hi, 0xffff")
    for q in (20, 21, 22, 23): E("v_add_f32 v24, v24, v%d" % q); E("v_fmac_f32 v25, v%d, v%d" % (q, q))
    E("s_mov_b32 exec_hi, -1"); E("s_nop 1")
    for c in ["row_shr:1 row_mask:0xf bank_mask:0xf bound_ctrl:0", "row_shr:2 row_mask:0xf bank_mask:0xf bound_ctrl:0", "row_shr:4 row_mask:0xf bank_mask:0xf bound_ctrl:0",
              "row_shr:8 row_mask:0xf bank_mask:0xf bound_ctrl:0", "row_bcast:15 row_mask:0xa bank_mask:0xf", "row_bcast:31 row_mask:0xc bank_mask:0xf"]:
        E("v_add_f32_dpp v24, v24, v24 " + c); E("v_add_f32_dpp v25, v25, v25 " + c); E("s_nop 0")
    E("v_readlane_b32 s8, v24, 63"); E("v_readlane_b32 s9, v25, 63")
    E("s_mul_i32 s10, s7, %d" % PITCH); E("s_add_u32 s10, s10, %d" % act)
    E("v_mov_b32 v26, %s" % f32(1 / 448)); E("v_mul_f32 v24, s8, v26"); E("v_mul_f32 v25, s9, v26")
    E("v_fma_f32 v25, -v24, v24, v25"); E("v_max_f32 v25, 0, v25")
    E("v_cvt_pk_bf16_f32 v26, v24, v25"); E("v_lshlrev_b32 v24, 16, v26"); E("v_and_b32 v25, 0xffff0000, v26")
    E("v_add_f32 v25, %s, v25" % f32(1e-5)); bf16r("v25", "v25")
    E("v_sqrt_f32 v25, v25")
    for q in range(8): E("v_sub_f32 v%d, v%d, v24" % (16 + q, 16 + q))
    bf16r("v25", "v25"); E("v_rcp_f32 v25, v25")
    for q in range(4):
        E("v_cvt_pk_bf16_f32 v26, v%d, v%d" % (16 + 2 * q, 17 + 2 * q)); E("v_lshlrev_b32 v%d, 16, v26" % (16 + 2 * q)); E("v_and_b32 v%d, 0xffff0000, v26" % (17 + 2 * q))
    for q in range(8): E("v_mul_f32 v%d, v%d, v25" % (16 + q, 16 + q))
    for q in range(4): E("v_cvt_pk_bf16_f32 v%d, v%d, v%d" % (24 + q, 16 + 2 * q, 17 + 2 * q))
    E("v_lshrrev_b32 v1, 1, v1"); E("v_add_u32 v1, s10, v1"); E("v_lshrrev_b32 v2, 1, v2"); E("v_add_u32 v2, s10, v2")
    E("ds_write_b64 v1, v[24:25]"); E("ds_write_b64 v2, v[26:27]")
def bar(): E("s_waitcnt lgkmcnt(0)"); E("s_barrier")
def dense(T, act, RW=80, sl=(32, 36, 40, 44, 48, 52, 56, 60)):
    n = len(sl)
    E("v_bfe_u32 v1, v0, 2, 2"); E("v_mul_u32_u24 v1, %d, v1" % PITCH); E("v_bfe_u32 v2, v0, 4, 2"); E("v_lshl_add_u32 v1, v2, 4, v1")
    bar()
    for t in range(min(n, T)): E("ds_read_b128 %s, v1 offset:%d" % (vr(sl[t]), act + 64 * t))
    issued = min(n, T)
    for t in range(T):
        E("s_waitcnt lgkmcnt(%d)" % (issued - 1 - t))
        acc = vr(24 + 4 * (t & 1))
        E("v_mfma_f32_16x16x32_bf16 %s, %s, %s, %s" % (acc, vr(sl[t % n]), vr(RW + 4 * t), "0" if t < 2 else acc))
        if issued < T: E("ds_read_b128 %s, v1 offset:%d" % (vr(sl[issued % n]), act + 64 * issued)); issued += 1
    E("v_bfe_u32 v1, v0, 4, 2"); E("v_and_b32 v2, 15, v0"); E("s_nop 6"); E("v_add_f32 v24, v24, v28")
def worker(wave, limit, body):
    l = lab("wk")
    E("s_cmp_lg_u32 s7, %d" % wave); E("s_cbranch_scc1 " + l)
    if limit: E("s_cmp_ge_u32 s13, %d" % limit); E("s_cbranch_scc1 " + l)
    body(); Lb(l)

hdr = open("cdna_kernels/%s.s.ref" % NAME).read().split("\n")
for l in hdr:
    if l.startswith("; @launch"): out.append("; @launch grid=(256,1,1) block=(256,1,1) lds=%d" % LDS_TOTAL)
    elif l.startswith(";"): out.append(l)
    else: break
out += ['.amdgcn_target "amdgcn-amd-amdhsa--gfx950"', ".text", ".globl %s_kernel" % NAME, ".p2align 8",
        ".type %s_kernel,@function" % NAME, "%s_kernel:" % NAME]
E("s_cmp_ge_u32 s2, 256"); E("s_cbranch_scc1 Lend")
if OPT['dbg']: E("s_memrealtime s[100:101]")
def dbgt(n):
    if not OPT['dbg']: return
    l = lab("dbg")
    E("s_cmp_lg_u32 s7, 0"); E("s_cbranch_scc1 " + l)
    E("s_memrealtime s[8:9]"); E("s_waitcnt lgkmcnt(0)"); E("s_sub_u32 s8, s8, s100"); E("v_mov_b32 v6, s8"); E("v_mov_b32 v7, 0")
    E("s_mov_b64 exec, 1"); E("buffer_atomic_umax v6, v7, s[76:79], 0 offen offset:%d sc1" % (4 * n)); E("s_mov_b64 exec, -1")
    Lb(l)
E("s_load_dwordx16 s[16:31], s[0:1], 0"); E("s_load_dwordx8 s[32:39], s[0:1], 64")
E("v_lshrrev_b32 v1, 6, v0"); E("s_and_b32 s4, s2, 7"); E("v_readfirstlane_b32 s7, v1")
E("s_lshr_b32 s13, s2, 3"); E("s_and_b32 s5, s13, 3"); E("s_lshr_b32 s6, s2, 5"); E("s_mov_b32 s3, 0")
E("v_and_b32 v1, 15, v0"); E("v_bfe_u32 v2, v0, 4, 2")
E("v_lshlrev_b32 v4, 9, v1"); E("v_lshl_add_u32 v4, v2, 4, v4")
E("v_lshlrev_b32 v5, 11, v2"); E("v_lshl_add_u32 v5, v1, 4, v5")
E("s_mov_b32 s62, s4")
if OPT['map'] == 1: E("s_and_b32 s62, s13, 7"); E("s_lshr_b32 s5, s2, 6"); E("s_mov_b32 s6, s4")
if OPT['map'] == 2: E("s_add_u32 s62, s4, s6"); E("s_and_b32 s62, s62, 7")
E("s_lshl_b32 s8, s5, 3"); E("s_add_u32 s8, s8, s62"); E("s_lshl_b32 s9, s8, 21")
E("s_lshl_b32 s80, s7, %d" % SW); E("s_lshl_b32 s10, s6, %d" % SS); E("s_add_u32 s80, s80, s10"); E("s_mul_i32 s81, s7, %d" % (NLDSV * 1024)); E("s_add_u32 s81, s81, %d" % (VBASE - 4096))

E("s_lshl_b32 s84, s8, 13"); E("s_lshl_b32 s10, s6, 10"); E("s_add_u32 s84, s84, s10")
E("s_lshl_b32 s85, s8, 7"); E("s_lshl_b32 s10, s6, 3"); E("s_add_u32 s85, s85, s10"); E("s_add_u32 s85, s85, 0x%x" % MLB)
E("s_mov_b32 s86, 0")
E("s_mov_b32 s82, 0x%x" % QB0)
E("s_lshl_b32 s11, s7, 4")
E("s_lshl_b32 s83, s2, 7"); E("s_lshl_b32 s10, s7, 5"); E("s_add_u32 s83, s83, s10")
E("s_sub_u32 s87, s2, 64"); E("s_lshr_b32 s87, s87, 1"); E("s_lshl_b32 s63, s87, 7"); E("s_add_u32 s87, s63, s10")
E("s_bitcmp1_b32 s2, 0"); E("s_cselect_b32 s10, 0, 0x%x" % (AB - AU)); E("s_add_u32 s87, s87, s10"); E("s_add_u32 s87, s87, 0x%x" % AU)
E("s_max_u32 s14, s13, 15"); E("s_sub_u32 s14, s14, 15"); E("s_min_u32 s14, s14, 13")
E("s_cmp_ge_u32 s14, 7"); E("s_cselect_b32 s88, 1, 0"); E("s_mul_i32 s10, s88, 7"); E("s_sub_u32 s14, s14, s10")
E("s_lshl_b32 s89, s14, 6"); E("s_add_u32 s89, s89, s11")
E("s_mov_b32 s12, 0"); E("s_cmp_ge_u32 s13, 8"); E("s_cselect_b32 s12, 1, s12"); E("s_cmp_ge_u32 s13, 15"); E("s_cselect_b32 s12, 2, s12")
E("s_cmp_ge_u32 s13, 29"); E("s_cselect_b32 s12, 3, s12")
E("s_mov_b32 s99, %s" % f32(0.0625 * 1.4426950408889634))
E("s_and_b32 s15, s13, %d" % (OPT['R'] - 1)); E("s_lshl_b32 s15, s15, 14"); E("s_lshl_b32 s10, s7, 12"); E("s_add_u32 s15, s15, s10")
E("s_mov_b32 s97, %s" % f32(2.0 ** -32)); E("s_mov_b32 s96, %s" % f32(2.0 ** 32)); E("s_movk_i32 s95, 0xffe0")
E("s_waitcnt lgkmcnt(0)")
def srd(d, lo, hi, n, add=None):
    if add: E("s_add_u32 s%d, s%d, %s" % (d, lo, add)); E("s_addc_u32 s%d, s%d, 0" % (d + 1, hi))
    else: E("s_mov_b32 s%d, s%d" % (d, lo)); E("s_mov_b32 s%d, s%d" % (d + 1, hi))
    E("s_mov_b32 s%d, 0x%x" % (d + 2, n)); E("s_mov_b32 s%d, 0x00020000" % (d + 3))
srd(40, 18, 19, 1 << 21, "s9"); srd(44, 20, 21, 1 << 21, "s9")
srd(64, 38, 39, 0x400000); srd(68, 16, 17, 3584); srd(72, 34, 35, 3584); srd(76, 36, 37, 256)
stamp()
if OPT['th']:
    E("s_cmp_lt_u32 s13, 22"); E("s_cbranch_scc1 Lth"); E("s_sleep %d" % OPT['th'])
    E("s_cmp_lt_u32 s13, 29"); E("s_cbranch_scc1 Lth"); E("s_sleep %d" % OPT['th'])
    Lb("Lth")
kgroup(OPT['k0'], False)
xaddr()
E("v_lshrrev_b32 v6, 1, v1"); E("v_lshrrev_b32 v7, 1, v2"); E("s_mul_i32 s8, s7, 896")
VM('x', "buffer_load_dwordx2 v[8:9], v6, s[68:71], s8 offen"); VM('x', "buffer_load_dwordx2 v[10:11], v7, s[68:71], s8 offen")
lane("v15"); E("v_lshrrev_b32 v12, 3, v15"); E("v_and_b32 v13, 7, v15")
for m in range(4): E("v_xor_b32 v%d, %d, v13" % (16 + m, 2 * m))
srd(48, 22, 23, 448 * 4096 * 2); E("s_lshl_b32 s92, s2, 7"); E("s_movk_i32 s93, 8192"); E("s_lshl_b32 s10, s7, 7")
E("s_cmp_eq_u32 s12, 0"); E("s_cbranch_scc1 Lwsel")
E("s_bitcmp1_b32 s2, 0"); E("s_cselect_b32 s48, s30, s28"); E("s_cselect_b32 s49, s31, s29"); E("s_mov_b32 s50, 0x%x" % (448 * 1792 * 2))
E("s_mov_b32 s92, s63"); E("s_movk_i32 s93, 3584")
E("s_cmp_eq_u32 s12, 1"); E("s_cbranch_scc1 Lwsel")
E("s_movk_i32 s93, 896"); E("s_and_b32 s10, s7, 1"); E("s_lshl_b32 s10, s10, 7")
E("s_mov_b32 s48, s24"); E("s_mov_b32 s49, s25"); E("s_mov_b32 s50, 0x%x" % (4096 * 448 * 2))
E("s_lshl_b32 s8, s4, 1"); E("s_add_u32 s8, s8, s88"); E("s_mul_i32 s92, s8, %d" % (256 * 896)); E("s_lshl_b32 s8, s14, 7"); E("s_add_u32 s92, s92, s8")
E("s_cmp_eq_u32 s12, 3"); E("s_cselect_b32 s50, 0, s50")
E("s_cmp_lt_u32 s7, 2"); E("s_cbranch_scc1 Lwsel")
E("s_mov_b32 s48, s32"); E("s_mov_b32 s49, s33"); E("s_add_u32 s50, s4, 1"); E("s_mul_i32 s50, s50, %d" % (224 * 896))
E("s_cmp_lg_u32 s88, 0"); E("s_cselect_b32 s50, 0, s50")
E("s_mul_i32 s92, s4, %d" % (224 * 896)); E("s_add_u32 s92, s92, s8")
Lb("Lwsel")
E("s_mov_b32 s52, s48"); E("s_mov_b32 s53, s49"); E("s_lshl_b32 s94, s93, 3")
Lb("Lwsel2")
E("s_mov_b32 s54, s50"); E("s_mov_b32 s55, 0x00020000")
E("s_mul_i32 s10, s10, s93"); E("s_add_u32 s92, s92, s10"); E("s_add_u32 s94, s94, s92")
E("v_mul_lo_u32 v12, v12, s93"); E("s_lshl_b32 s93, s93, 4")
for m in range(4): E("v_lshl_add_u32 v%d, v%d, 4, v12" % (16 + m, 16 + m))
E("s_lshl_b32 s11, s7, 14"); E("s_add_u32 s11, s11, %d" % VBASE)
for f in range(8):
    E("s_add_u32 m0, s11, %d" % (2048 * f)); E("s_nop 0")
    VM('w', "buffer_load_dwordx4 v%d, s[48:51], s92 offen%s lds" % (16 + (2 * f) % 4, WNT))
    E("s_add_u32 m0, s11, %d" % (2048 * f + 1024)); E("s_nop 0")
    VM('w', "buffer_load_dwordx4 v%d, s[52:55], s94 offen%s lds" % (16 + (2 * f + 1) % 4, WNT))
    if f < 7: E("s_add_u32 s92, s92, s93"); E("s_add_u32 s94, s94, s93")
    if f == 3:
        E("s_and_b32 s8, s2, 0x60"); E("s_cmp_eq_u32 s8, 0x60"); E("s_cselect_b32 s8, 0, -1")
        for r in range(4): E("v_mov_b32 v%d, s8" % (24 + r))
        E("v_lshlrev_b32 v7, 4, v0"); E("s_lshl_b32 s8, s2, 12")
        VM('clr', "buffer_store_dwordx4 v[24:27], v7, s[64:67], s8 offen %s" % ["sc1", "sc1 nt", "sc0 sc1", "sc0 sc1 nt"][OPT['cnt']])
        E("s_cmp_lg_u32 s12, 0"); E("s_cbranch_scc1 Lnoclrq")
        E("v_bfe_u32 v12, v0, 4, 2"); E("v_and_b32 v13, 15, v0"); E("v_lshlrev_b32 v12, 13, v12"); E("v_lshl_add_u32 v12, v13, 1, v12"); E("s_add_u32 s8, s82, s83")
        E("s_mov_b32 exec_lo, 0x55555555"); E("s_mov_b32 exec_hi, 0x55555555")
        E("buffer_store_dword v24, v12, s[64:67], s8 offen sc1"); E("s_mov_b64 exec, -1")
        Lb("Lnoclrq")
def qaddr(): E("v_lshlrev_b32 v1, 13, v1"); E("v_lshl_add_u32 v1, v2, 1, v1"); E("s_add_u32 s8, s82, s83"); E("s_mov_b32 exec_lo, 0x55555555"); E("s_mov_b32 exec_hi, 0x55555555")
kgroup(OPT['k1'], False)
stamp()
wait_tag('x')
xunpack()
def trblock(isq, ka, kb):
    kgroup(ka, False)
    E("v_bfe_u32 v12, v0, 4, 2"); E("v_bfe_u32 v13, v0, 2, 2"); E("v_xor_b32 v7, s7, v12"); E("v_and_b32 v15, 3, v0")
    E("v_lshl_add_u32 v6, v12, 3, v13"); E("v_lshlrev_b32 v6, 7, v6"); E("v_lshl_add_u32 v6, v7, 5, v6"); E("v_lshl_add_u32 v6, v15, 3, v6"); E("v_add_u32 v16, 512, v6")
    E("v_add_u32 v6, %d, v6" % VBASE); E("v_add_u32 v16, %d, v16" % VBASE)
    wait_tag('w')
    E("s_barrier")
    worker(0, 0, sig)
    for f in range(16):
        E("ds_read_b64_tr_b16 %s, v6 offset:%d" % (vr(RW + 4 * f, 2), f * 4096)); E("ds_read_b64_tr_b16 %s, v16 offset:%d" % (vr(RW + 4 * f + 2, 2), f * 4096))
        if f % 4 == 3 and f < 15: E("s_waitcnt lgkmcnt(4)")
    kgroup(kb, False)
    if not isq: bar()
def sig():
    E("s_mov_b64 exec, 1"); E("s_add_u32 s9, s4, 8"); E("s_cmp_eq_u32 s12, 0"); E("s_cselect_b32 s9, s13, s9"); E("s_lshl_b32 s9, s9, 4"); E("v_mov_b32 v25, 1"); E("v_mov_b32 v26, 0")
    E("buffer_atomic_add v25, v26, s[76:79], s9 offen sc1"); E("s_mov_b64 exec, -1")
def qbody():
    dense(14, ACT0)
    E("s_nop 1"); E("v_mov_b32_dpp v25, v24 quad_perm:[1,0,3,2] row_mask:0xf bank_mask:0xf")
    E("v_cvt_pk_bf16_f32 v24, v24, v25"); E("v_min_u32 v24, -2, v24"); qaddr()
    E("buffer_store_dword v24, v1, s[64:67], s8 offen sc1"); E("s_mov_b64 exec, -1")
E("s_cmp_lg_u32 s12, 0"); E("s_cbranch_scc1 Lpro2")
sv = (list(vm), kpos[0])
layernorm(ACT0)
trblock(True, OPT['k2'], OPT['k3'])
qbody()
stamp(); stamp_n[0] -= OPT['stamps']
kgroup(OPT['X'] - kpos[0], False)
E("s_branch Lpro3")
Lb("Lpro2")
vm[:] = sv[0]; kpos[0] = sv[1]
trblock(False, OPT['X'] - 4 - kpos[0], 4)
stamp()
Lb("Lpro3")
dbgt(3)
Lb("Lloop")

lane("v15"); E("v_lshlrev_b32 v1, 4, v15"); E("v_add_u32 v3, s81, v1")
E("v_bfe_u32 v2, v0, 3, 1"); E("v_lshlrev_b32 v2, 9, v2"); E("v_bfe_u32 v6, v0, 4, 2"); E("v_lshl_add_u32 v2, v6, 4, v2")
E("v_and_b32 v6, 1, v0"); E("v_cmp_eq_u32 vcc, 0, v6"); E("v_mov_b32 v7, 0x01000c0c"); E("v_mov_b32 v12, 0x0c0c0100"); E("v_cndmask_b32 v7, v7, v12, vcc")
E("v_bfe_u32 v6, v0, 1, 2"); E("v_mov_b32 v12, 0x0c0c0c0c"); E("s_mov_b32 s91, 0x02020202")
for r in range(4): E("v_cmp_eq_u32 vcc, %d, v6" % r); E("s_nop 1"); E("v_cndmask_b32 v%d, v12, v7, vcc" % (8 + r))
E("s_lshl_b32 s8, s5, 13"); E("s_lshl_b32 s9, s62, 10"); E("s_add_u32 s90, s8, s9"); E("s_add_u32 s90, s90, s82")
qload = "buffer_load_dwordx4 v[16:19], v1, s[64:67], s90 offen sc1"
E("s_cmp_lg_u32 s3, 0"); E("s_cbranch_scc1 Lqpoll1")
E("v_mov_b32 v6, s62"); E("v_lshlrev_b32 v6, 4, v6")
pos = kpos[0]
while pos < 64 + OPT['vpre']:
    if pos < 64: kload(pos); kpos[0] += 1
    else: vload(pos - 64); vpos[0] += 1
    pos += 1
    if pos == OPT['p1']: VM('cnt', "buffer_load_dword v7, v6, s[76:79], 0 offen sc1")
    if pos == OPT['pq']:
        wait_tag('cnt')
        E("s_mov_b32 s98, 0"); Lb("Lcnt")
        E("v_cmp_gt_u32 vcc, 8, v7"); E("s_cbranch_vccz Lcntd")
        E("buffer_load_dword v7, v6, s[76:79], 0 offen sc1"); E("s_waitcnt vmcnt(0)")
        E("s_add_u32 s98, s98, 1"); E("s_cmp_lt_u32 s98, 0x8000"); E("s_cbranch_scc1 Lcnt")
        Lb("Lcntd")
        VM('q', qload)
wait_tag('q')
check(range(16, 20))
E("s_cbranch_vccz Lattn")
Lb("Lqpoll")
poll([qload], lambda: check(range(16, 20)))
Lb("Lattn")
E("ds_write_b128 v1, v[16:19] offset:%d" % QL)
E("s_waitcnt lgkmcnt(0)")
def round_tile(T, first):
    s = 32 + 4 * T
    return ["v_cvt_pk_bf16_f32 v6, v%d, v%d" % (s, s + 1), "v_cvt_pk_bf16_f32 v7, v%d, v%d" % (s + 2, s + 3),
            "v_lshlrev_b32 v%d, 16, v6" % s, "v_and_b32 v%d, 0xffff0000, v6" % (s + 1),
            "v_lshlrev_b32 v%d, 16, v7" % (s + 2), "v_and_b32 v%d, 0xffff0000, v7" % (s + 3),
            ("v_max_f32 v12, v%d, v%d" % (s, s + 1)) if first else ("v_max3_f32 v12, v12, v%d, v%d" % (s, s + 1)),
            "v_max3_f32 v12, v12, v%d, v%d" % (s + 2, s + 3)]
def FR(t): return vr(16 + 4 * t) if t < 4 else vr(64 + 4 * (t - 4))
HS = [1, 2, 13, 15]
def eflag():
    if not OPT['ef']: return
    l = lab("ef"); E("s_cmp_lg_u32 s7, 0"); E("s_cbranch_scc1 " + l)
    E("s_sub_u32 s8, s85, 0x%x" % MLB); E("s_lshr_b32 s9, s8, 7"); E("s_lshl_b32 s9, s9, 5"); E("s_lshl_b32 s8, s6, 2"); E("s_add_u32 s8, s8, s9"); E("s_add_u32 s8, s8, s86"); E("s_add_u32 s8, s8, 0x%x" % FLG)
    E("v_mov_b32 v4, 0"); E("s_mov_b64 exec, 1"); E("buffer_store_dword v4, v4, s[64:67], s8 offen sc1"); E("s_mov_b64 exec, -1")
    Lb(l)
def core(L0):
    for t in range(8): E("ds_read_b128 %s, v2 offset:%d" % (FR(t), QL + 64 * t))
    for G in range(4):
        if L0:
            vgroup(4)
            E("s_waitcnt vmcnt(%d)" % min(63, len(vm) - 1 - [j for j, x in enumerate(vm) if x == 'K'][16 * G + 15]))
        if not L0 and G == 4 - (OPT['nq'] + 1) // 2: E("s_waitcnt vmcnt(0)")
        if G: extra = [None] * 3 + round_tile(2 * G - 2, G == 1) + round_tile(2 * G - 1, False)
        else:
            extra = []
            for c in range(4): extra += ["v_lshrrev_b32 v6, 2, v%d" % (8 + c), "v_bfi_b32 v6, v6, 0, s91", "v_or_b32 v%d, v6, v%d" % (HS[c], 8 + c)]
        for t in range(8):
            if G == 0: E("s_waitcnt lgkmcnt(%d)" % (7 - t))
            for d in range(2):
                T = 2 * G + d
                E("v_mfma_f32_16x16x32_bf16 %s, %s, %s, %s" % (vr(32 + 4 * T), ar(32 * T + 4 * t), FR(t), "0" if t == 0 else vr(32 + 4 * T)))
                for _ in range(2 if t >= 5 else 1):
                    if extra:
                        x = extra.pop(0)
                        if x: E(x)
        assert not extra
    if OPT['fine'] and not L0: E("s_memrealtime s[56:57]")
    lu = [u for u in range(64) if inlds(u)]
    nis = [0]
    def ldsread():
        if nis[0] >= len(lu): return
        u = lu[nis[0]]
        if L0: wait_tag('V%d' % u)
        E("ds_read_b128 %s, v3 offset:%d" % (vr(64 + 4 * (nis[0] % 4)), 4096 + lslot(u) * 1024)); nis[0] += 1
    for _ in range(4): ldsread()
    E("s_nop 3")
    for x in round_tile(6, False): E(x)
    for x in round_tile(7, False): E(x)
    E("v_mov_b32 v6, v12"); E("s_nop 1"); E("v_permlane16_swap_b32 v12, v6"); E("s_nop 1"); E("v_max_f32 v12, v12, v6")
    E("v_mov_b32 v6, v12"); E("s_nop 1"); E("v_permlane32_swap_b32 v12, v6"); E("v_mov_b32 v7, 0"); E("s_nop 0"); E("v_max_f32 v12, v12, v6")
    E("v_mul_f32 v14, s99, v12"); E("v_mov_b32 v6, 0")
    def soft(T):
        s = 32 + 4 * T
        fm = lambda a: "v_pk_fma_f32 %s, %s, s[98:99], v[14:15] op_sel:[0,1,0] op_sel_hi:[1,1,0] neg_lo:[0,0,1] neg_hi:[0,0,1]" % (vr(a, 2), vr(a, 2))
        ex = lambda a: "v_exp_f32 v%d, v%d" % (a, a)
        ad = lambda a: "v_pk_add_f32 v[6:7], v[6:7], %s" % vr(a, 2)
        return [[fm(s), fm(s + 2), ex(s), ex(s + 1)], [ex(s + 2), ex(s + 3), ad(s), "v_cvt_pk_bf16_f32 v%d, v%d, v%d" % (s, s, s + 1)],
                ["v_cvt_pk_bf16_f32 v%d, v%d, v%d" % (s + 1, s + 2, s + 3)], [ad(s + 2)]]
    def bmk(k):
        src = 32 + 4 * (k // 4) + ((k % 4) >> 1)
        return ["v_perm_b32 v%d, v%d, v%d, v%d" % (16 + 4 * (k & 1) + c, src, src, HS[c] if k & 1 else 8 + c) for c in range(4)]
    for g in soft(0):
        for x in g: E(x)
    for x in bmk(0): E(x)
    E("s_nop 0")
    if OPT['fine'] and not L0: E("s_memrealtime s[58:59]")
    for k in range(32):
        b = 16 + 4 * (k & 1)
        if L0: vgroup(2)
        if not L0 and k == OPT['kf']: eflag()
        if L0 and k == OPT['late']:
            E("v_and_b32 v4, 15, v0"); E("v_lshlrev_b32 v4, 4, v4")
            VM('cnt2', "buffer_load_dword v4, v4, s[76:79], 0 offen sc1")
        for hf in range(2):
            u = 2 * k + hf
            if inlds(u):
                n = lu.index(u)
                E("s_waitcnt lgkmcnt(%d)" % (nis[0] - 1 - n)); A = vr(64 + 4 * (n % 4))
            else:
                if L0: wait_tag('V%d' % u)
                A = vr(144 + 4 * (k - 4))
            acc = vr(24 + 4 * hf)
            E("v_mfma_f32_16x16x32_bf16 %s, %s, %s, %s" % (acc, A, vr(b), "0" if k == 0 else acc))
            if inlds(u): ldsread()
            if hf == 0:
                if k < 31:
                    for x in bmk(k + 1): E(x)
            elif k < 28:
                for x in soft(k // 4 + 1)[k % 4]: E(x)
    E("v_add_f32 v13, v6, v7")
    if OPT['fine'] and not L0: E("s_memrealtime s[60:61]")
    if L0:
        wait_tag('cnt2')
        E("v_and_b32 v6, 15, v0"); E("v_cmp_gt_u32 vcc, 8, v6"); E("v_mov_b32 v7, 24"); E("v_lshlrev_b32 v6, 4, v6"); E("v_cndmask_b32 v7, v7, 8, vcc")
        E("s_mov_b32 s98, 0"); Lb("Lcnt2")
        E("v_cmp_gt_u32 vcc, v7, v4"); E("s_cbranch_vccz Lcnt2d")
        E("buffer_load_dword v4, v6, s[76:79], 0 offen sc1"); E("s_waitcnt vmcnt(0)")
        E("s_add_u32 s98, s98, 1"); E("s_cmp_lt_u32 s98, 0x8000"); E("s_cbranch_scc1 Lcnt2")
        Lb("Lcnt2d")
stamp(); stamp_n[0] -= OPT['stamps']
core(True)
E("s_barrier")
eflag()
E("s_branch Lepi")
Lb("Lqpoll1")
worker(0, 0, lambda: ppoll(OPT['nq'], lambda i: ["buffer_load_dwordx4 %s, v1, s[64:67], s90 offen sc1" % vr(60 - 4 * i)],
                           lambda i: check(range(60 - 4 * i, 64 - 4 * i)), lambda i: E("ds_write_b128 v1, %s offset:%d" % (vr(60 - 4 * i), QL)), 0, OPT['zq']))
bar()
stamp()
core(False)
Lb("Lepi")
E("v_mov_b32 v6, v13"); E("s_nop 1"); E("v_permlane16_swap_b32 v13, v6"); E("s_nop 1"); E("v_add_f32 v13, v13, v6")
E("v_mov_b32 v6, v13"); E("s_nop 1"); E("v_permlane32_swap_b32 v13, v6"); E("s_nop 1"); E("v_add_f32 v13, v13, v6")
E("v_bfe_u32 v6, v0, 3, 1"); E("v_lshlrev_b32 v7, 10, v6"); E("v_bfe_u32 v1, v0, 4, 2"); E("v_lshl_add_u32 v7, v1, 5, v7")
E("v_and_b32 v1, 7, v0"); E("v_lshl_add_u32 v7, v1, 2, v7"); E("s_lshl_b32 s8, s7, 11"); E("v_add_u32 v7, s8, v7")
E("s_lshl_b32 s8, s7, 4"); E("v_lshl_add_u32 v6, v6, 3, s8")
for hf in range(2):
    for r in range(4): E("ds_write_b32 v7, v%d offset:%d" % (24 + 4 * hf + r, OM + (r * 2 + hf) * 128))
E("s_mov_b64 exec, 0x101"); E("ds_write_b64 v6, v[12:13] offset:%d" % ML); E("s_mov_b64 exec, -1")
E("v_lshlrev_b32 v6, 2, v0"); E("v_lshrrev_b32 v2, 7, v0"); E("v_lshlrev_b32 v3, 3, v2")
E("v_lshlrev_b32 v1, 10, v2"); E("v_bfe_u32 v7, v0, 6, 1"); E("v_lshl_add_u32 v1, v7, 7, v1"); E("v_bfe_u32 v7, v0, 2, 2"); E("v_lshl_add_u32 v1, v7, 8, v1")
E("v_bfe_u32 v7, v0, 4, 2"); E("v_lshl_add_u32 v1, v7, 5, v1"); E("v_and_b32 v7, 3, v0"); E("v_lshl_add_u32 v1, v7, 3, v1")
E("v_lshlrev_b32 v7, 6, v2"); E("s_add_u32 s8, s84, s86"); E("s_add_u32 s9, s85, s86")
bar()
for w in range(4): E("ds_read_b64 %s, v3 offset:%d" % (vr(40 + 2 * w, 2), ML + 16 * w))
for w in range(4): E("ds_read_b64 %s, v1 offset:%d" % (vr(32 + 2 * w, 2), OM + 2048 * w))
E("s_waitcnt lgkmcnt(4)")
E("v_max_f32 v26, v40, v42"); E("v_max3_f32 v26, v26, v44, v46")
for w in range(4): E("v_sub_f32 v%d, v%d, v26" % (40 + 2 * w, 40 + 2 * w)); E("v_mul_f32 v%d, s99, v%d" % (40 + 2 * w, 40 + 2 * w))
for w in range(4): E("v_exp_f32 v%d, v%d" % (40 + 2 * w, 40 + 2 * w))
E("s_waitcnt lgkmcnt(0)")
E("v_mul_f32 v24, v40, v32"); E("v_mul_f32 v25, v40, v33"); E("v_mul_f32 v27, v40, v41")
for w in range(1, 4):
    E("v_fmac_f32 v24, v%d, v%d" % (40 + 2 * w, 32 + 2 * w)); E("v_fmac_f32 v25, v%d, v%d" % (40 + 2 * w, 33 + 2 * w)); E("v_fmac_f32 v27, v%d, v%d" % (40 + 2 * w, 41 + 2 * w))
E("v_cvt_pk_bf16_f32 v24, v24, v25"); E("v_min_u32 v24, -2, v24"); E("v_min_u32 v26, -2, v26"); E("v_min_u32 v27, -2, v27")
E("buffer_store_dword v24, v6, s[64:67], s8 offen sc1")
E("s_and_b32 s10, s7, 1"); E("s_cmp_lg_u32 s10, 0"); E("s_cbranch_scc1 Lnoml")
E("s_mov_b64 exec, 1"); E("buffer_store_dwordx2 v[26:27], v7, s[64:67], s9 offen sc1"); E("s_mov_b64 exec, -1")
Lb("Lnoml")
stamp()
if OPT['fine']:
    for i in range(3):
        l = lab("fs"); E("s_cmp_lg_u32 s7, 0"); E("s_cbranch_scc1 " + l); E("s_cmp_lg_u32 s3, 1"); E("s_cbranch_scc1 " + l)
        E("v_mov_b32 v6, s%d" % (56 + 2 * i)); E("s_lshl_b32 s9, s2, 8"); E("s_add_u32 s9, s9, 0x%x" % (STP + 128 + (20 + i) * 4)); E("v_mov_b32 v7, 0")
        E("s_mov_b64 exec, 1"); E("buffer_store_dword v6, v7, s[64:67], s9 offen"); E("s_mov_b64 exec, -1"); Lb(l)

if OPT['dbg']:
    E("s_cmp_lg_u32 s3, 0"); E("s_cbranch_scc1 Ldbg1"); dbgt(1); Lb("Ldbg1")
E("s_cmp_eq_u32 s12, 1"); E("s_cbranch_scc1 Lg")
E("s_cmp_eq_u32 s12, 0"); E("s_cbranch_scc1 Lq")
E("s_cmp_eq_u32 s12, 3"); E("s_cbranch_scc1 Lf")
lane("v15"); E("v_lshlrev_b32 v1, 3, v15"); E("v_and_b32 v2, 56, v1"); E("s_mul_i32 s8, s7, %d" % PITCH); E("v_add_u32 v3, s8, v1")
E("s_lshl_b32 s8, s7, 3"); E("s_add_u32 s8, s8, s4"); E("s_lshl_b32 s9, s8, 13"); E("s_add_u32 s9, s9, s86"); E("s_lshl_b32 s10, s88, 9"); E("s_add_u32 s9, s9, s10"); E("s_add_u32 s10, s9, 4096")
E("s_lshl_b32 s11, s8, 7"); E("s_add_u32 s11, s11, s86"); E("s_add_u32 s11, s11, 0x%x" % MLB); E("s_lshl_b32 s8, s88, 6"); E("s_add_u32 s11, s11, s8")
OBB = [44, 62]
def obl(i): return ["buffer_load_dwordx2 %s, v2, s[64:67], s11 offen sc1" % vr(OBB[i] + 16, 2)] + \
    ["buffer_load_dwordx2 %s, v1, s[64:67], %s offen offset:%d sc1" % (vr(OBB[i] + 2 * s, 2), "s9" if s < 4 else "s10", (s % 4) * 1024) for s in range(8)]
D3 = ["quad_perm:[1,0,3,2] row_mask:0xf bank_mask:0xf", "quad_perm:[2,3,0,1] row_mask:0xf bank_mask:0xf", "row_half_mirror row_mask:0xf bank_mask:0xf"]
def obs(i):
    o = OBB[i]
    ecount(XS1)
    def unp(s):
        for q in range(2): E("v_lshlrev_b32 v%d, 16, v%d" % (16 + 2 * s + q, o + 2 * s + q)); E("v_and_b32 v%d, 0xffff0000, v%d" % (o + 2 * s + q, o + 2 * s + q))
    E("v_max_f32_dpp v6, v%d, v%d " % (o + 16, o + 16) + D3[0]); unp(0)
    E("v_max_f32_dpp v6, v6, v6 " + D3[1]); unp(1)
    E("v_max_f32_dpp v6, v6, v6 " + D3[2]); unp(2)
    E("v_sub_f32 v6, v%d, v6" % (o + 16)); E("v_mul_f32 v6, s99, v6"); E("v_exp_f32 v6, v6"); unp(3)
    E("v_mul_f32 v7, v6, v%d" % (o + 17)); unp(4)
    E("v_add_f32_dpp v7, v7, v7 " + D3[0]); unp(5)
    E("v_add_f32_dpp v7, v7, v7 " + D3[1]); unp(6)
    E("v_add_f32_dpp v7, v7, v7 " + D3[2]); unp(7)
    for s in range(8): E("v_readlane_b32 s%d, v6, %d" % (16 + s, s))
    E("v_rcp_f32 v7, v7")
    for s in range(8):
        for q in range(4):
            src = (16 if q % 2 == 0 else o) + 2 * s + q // 2
            if s == 0: E("v_mul_f32 v%d, s16, v%d" % (32 + q, src))
            else: E("v_fmac_f32 v%d, s%d, v%d" % (32 + q, 16 + s, src))
if OPT['ef']:
    E("s_lshl_b32 s8, s7, 3"); E("s_add_u32 s8, s8, s4"); E("s_lshl_b32 s8, s8, 5"); E("s_add_u32 s8, s8, s86"); E("s_add_u32 s16, s8, 0x%x" % FLG); E("v_lshrrev_b32 v6, 1, v2")
    ppoll(1, lambda i: ["buffer_load_dword v7, v6, s[64:67], s16 offen sc1"], lambda i: E("v_cmp_eq_u32 vcc, -1, v7"), lambda i: None)
    E("s_cmp_eq_u32 s3, 0"); E("s_cbranch_scc1 Lnodw")
    if OPT['dw']: E("s_sleep %d" % OPT['dw'])
    Lb("Lnodw")
    if OPT['dw0']: E("s_sleep %d" % OPT['dw0'])
def ecount(base):
    if not OPT['ec']: return
    E("s_lshl_b32 s8, s14, 7"); E("s_add_u32 s8, s8, s15"); E("s_add_u32 s8, s8, s86"); E("s_add_u32 s8, s8, 0x%x" % (base + 0x4000))
    E("v_mov_b32 v4, 1"); E("v_mov_b32 v5, 0"); E("s_mov_b64 exec, 1"); E("buffer_atomic_add v4, v5, s[64:67], s8 offen sc1"); E("s_mov_b64 exec, -1")
ppoll(OPT['no'], obl, lambda i: check(range(OBB[i], OBB[i] + 18)), obs, OPT['io'], OPT['zo'])
for q in range(4): E("v_mul_f32 v%d, v%d, v7" % (32 + q, 32 + q))
for q in range(2): E("v_cvt_pk_bf16_f32 v%d, v%d, v%d" % (36 + q, 32 + 2 * q, 33 + 2 * q))
E("ds_write_b64 v3, v[36:37] offset:%d" % ACT1)
stamp()
def xatomic(base):
    E("v_rndne_f32 v25, v24"); E("v_sub_f32 v26, v24, v25"); E("v_cvt_i32_f32 v25, v25"); E("v_mul_f32 v26, s96, v26"); E("v_cvt_i32_f32 v24, v26")
    E("v_lshlrev_b32 v1, 12, v1"); E("v_lshl_add_u32 v1, v2, 3, v1")
    E("v_ashrrev_i32 v26, 31, v24"); E("v_add_u32 v25, v25, v26"); E("v_and_or_b32 v24, v24, s95, 1")
    E("s_lshl_b32 s8, s89, 3"); E("s_add_u32 s8, s8, s86"); E("s_add_u32 s8, s8, 0x%x" % base)
    for r in range(OPT['R']):
        if r: E("s_add_u32 s8, s8, 0x4000")
        E("buffer_atomic_add_x2 v[24:25], v1, s[64:67], s8 offen sc1")
dense(8, ACT1, RW, (8, 12, 16, 20, 32, 36, 40)); xatomic(XS1)
stamp()
E("s_cmp_lg_u32 s88, 0"); E("s_cbranch_scc1 Lnexts")
lane("v15"); E("v_min_u32 v1, 27, v15"); E("v_lshlrev_b32 v1, 4, v1")
E("s_lshl_b32 s8, s7, 12"); E("s_mul_i32 s9, s4, 448"); E("s_add_u32 s9, s9, s8"); E("s_add_u32 s9, s9, s86"); E("s_add_u32 s9, s9, 0x%x" % AB)
E("s_mul_i32 s8, s7, %d" % PITCH); E("v_add_u32 v2, s8, v1")
E("s_sub_u32 s10, s9, 0x%x" % (AB - AU))
def absucc(i):
    for q in range(4):
        E("v_lshlrev_b32 v16, 16, v%d" % (64 + q)); E("v_and_b32 v17, 0xffff0000, v%d" % (64 + q)); E("v_lshlrev_b32 v18, 16, v%d" % (68 + q)); E("v_and_b32 v19, 0xffff0000, v%d" % (68 + q))
        E("v_pk_mul_f32 v[16:17], v[16:17], v[18:19]"); E("v_cvt_pk_bf16_f32 v%d, v16, v17" % (20 + q))
    E("ds_write_b128 v2, v[20:23] offset:%d" % ACT0)
ppoll(1, lambda i: ["buffer_load_dwordx4 v[64:67], v1, s[64:67], s9 offen sc1", "buffer_load_dwordx4 v[68:71], v1, s[64:67], s10 offen sc1"],
      lambda i: check(range(64, 72)), absucc, OPT['ia'], OPT['za'])
stamp()
dense(7, ACT0, RW + 32); xatomic(XS2)
stamp()
E("s_branch Lnext")
Lb("Lg")
xinit()
E("s_cmp_eq_u32 s3, 0"); E("s_cbranch_scc1 Lg1")
xfront([("0x%x" % XS2, 8)])
Lb("Lg1")
E("s_add_u32 s91, s86, 0x%x" % XS1)
xtrig("s91", 16, OPT['ig'])
xfront([("s91", 16)], 0, 1, OPT['l2'])
stamp()
xunpack(); layernorm(ACT0)
dense(14, ACT0)
E("s_bitcmp1_b32 s2, 0"); E("s_cbranch_scc1 Lnogelu")
bf16r("v24", "v24")
k2 = -2 * 0.7978845608028654 * 1.4426950408889634
E("v_mul_f32 v26, v24, v24"); E("v_mov_b32 v25, %s" % f32(k2)); E("v_fmac_f32 v25, %s, v26" % f32(k2 * 0.044715))
E("v_mul_f32 v25, v25, v24"); E("v_exp_f32 v25, v25"); E("s_nop 0"); E("v_add_f32 v25, 1.0, v25"); E("v_rcp_f32 v25, v25"); E("s_nop 0")
E("v_mul_f32 v24, v25, v24")
Lb("Lnogelu")
E("v_lshlrev_b32 v1, 12, v1"); E("v_lshl_add_u32 v1, v2, 1, v1")
E("v_mov_b32_dpp v26, v24 quad_perm:[1,0,3,2] row_mask:0xf bank_mask:0xf")
E("s_add_u32 s8, s86, s87"); E("s_mov_b32 exec_lo, 0x55555555"); E("s_mov_b32 exec_hi, 0x55555555")
E("v_cvt_pk_bf16_f32 v24, v24, v26"); E("v_min_u32 v24, -2, v24")
E("buffer_store_dword v24, v1, s[64:67], s8 offen sc1"); E("s_mov_b64 exec, -1")
stamp()
E("s_branch Lnextg")
Lb("Lq")
E("s_cmp_lg_u32 s3, 0"); E("s_cbranch_scc1 Lend")
xinit()
xtrig("0x%x" % XS2, 8, OPT['it'])
xfront([("0x%x" % XS1, 16), ("0x%x" % XS2, 8)], 0, 1, OPT['l2'])
stamp()
xunpack(); layernorm(ACT0)
E("s_mov_b32 s82, 0x%x" % QB1)
qbody()
stamp()
E("s_branch Lnext")
Lb("Lf")
E("s_cmp_eq_u32 s3, 0"); E("s_cbranch_scc1 Lnexts")
E("s_cmp_lg_u32 s2, 255"); E("s_cbranch_scc1 Lend")
xinit()
xfront([("0x%x" % XS1, 16), ("0x%x" % XS2, 8)])
xfront([("0x%x" % (XS1 + LSTEP), 16)], OPT['lazy'])
xfront([("0x%x" % (XS2 + LSTEP), 8)], 0, OPT['nx'])
E("v_lshrrev_b32 v1, 1, v1"); E("v_lshrrev_b32 v2, 1, v2"); E("s_mul_i32 s8, s7, 896")
E("buffer_store_dwordx2 v[8:9], v1, s[72:75], s8 offen")
E("s_mov_b32 exec_hi, 0xffff")
E("buffer_store_dwordx2 v[10:11], v2, s[72:75], s8 offen")
stamp()
dbgt(2)
E("s_branch Lend")
Lb("Lnexts")
if OPT['iq']: E("s_cmp_lg_u32 s3, 0"); E("s_cbranch_scc1 Lend"); E("s_sleep %d" % OPT['iq'])
Lb("Lnextg")
if OPT['iq']: E("s_cmp_lg_u32 s3, 0"); E("s_cbranch_scc1 Lend"); E("s_sleep %d" % OPT['iq'])
Lb("Lnext")
E("s_cmp_lg_u32 s3, 0"); E("s_cbranch_scc1 Lend")
E("s_waitcnt vmcnt(0)")
E("s_mov_b32 s3, 1"); E("s_mov_b32 s86, 0x%x" % LSTEP); E("s_mov_b32 s82, 0x%x" % QB1)
E("s_branch Lloop")

Lb("Lend")
E("s_endpgm")
out += ['.section .rodata,"a"', ".p2align 6", ".amdhsa_kernel %s_kernel" % NAME,
        "  .amdhsa_next_free_vgpr 512", "  .amdhsa_next_free_sgpr 102", "  .amdhsa_accum_offset 256",
        "  .amdhsa_group_segment_fixed_size 0", "  .amdhsa_kernarg_size 96", "  .amdhsa_user_sgpr_count 2",
        "  .amdhsa_user_sgpr_kernarg_segment_ptr 1", "  .amdhsa_system_sgpr_workgroup_id_x 1", ".end_amdhsa_kernel"]
open(sys.argv[1], "w").write("\n".join(out) + "\n")
```

```python
import sys, struct
NAME = "interleave_layers__gqa_block_cached__geglu_ffn__decode"
OPT = dict(nt=1, stamps=0, p1=34, pq=52, pw=70, vpre=16, lazy=8, k0=0, k1=6, k2=6, k3=4, trig=1, wnt=1, dbg=0, fine=0, late=8, R=1, np=1, nq=1, no=1, nx=1, rtt=21, iq=0, zq=0, io=0, zo=0, ig=0, it=0, zt=0, ia=0, za=0, ef=1, kf=24, dw=0, dw0=0, ec=0, l2=0, l2o=0, cnt=0, map=1, lay=3, th=25, gm=0, X=24)
for a in sys.argv[2:]:
    k, v = a.split('='); OPT[k] = int(v)
out = []
SS, SW, ST = [(18, 16, 13), (13, 16, 18), (13, 19, 16), (15, 13, 18), (16, 19, 13), (18, 13, 15)][OPT['lay']]
def E(s): out.append("    " + s)
def Lb(s): out.append(s + ":")
def f32(x): return "0x%08x" % struct.unpack('<I', struct.pack('<f', x))[0]
NT = ["", " nt", " sc1 nt", " sc0 sc1 nt", " sc0 nt", " sc1"][OPT['nt']]; WNT = ["", " nt"][OPT['wnt']]
NLDSV = 36; VBASE = 16384; LDS_TOTAL = 163840
ACT0 = 0; OM = 0; ACT1 = 8192; QL = 8192; XRES = 12544; ML = 16128; QF = 16256; PITCH = 1088
OB = 0; XS1 = 0x60000; XS2 = 0x70000; AB = 0x58000; MLB = 0x5C000; QB1 = 0x48000; FLG = 0x5D000; AU = 0x40000; QB0 = 0x100000; LSTEP = 0x80000; STP = 0x300000
RW = 80
vm = []
def VM(tag, s): vm.append(tag); E(s)
def wait_tag(tag):
    idx = max(i for i, t in enumerate(vm) if t == tag)
    E("s_waitcnt vmcnt(%d)" % min(len(vm) - 1 - idx, 63))
uid = [0]
def lab(p): uid[0] += 1; return "L%s%d" % (p, uid[0])
stamp_n = [0]
def stamp(wave=0):
    if not OPT['stamps']: return
    n = stamp_n[0]; stamp_n[0] += 1; l = lab("st")
    E("s_cmp_lg_u32 s7, %d" % wave); E("s_cbranch_scc1 " + l)
    E("s_memrealtime s[8:9]"); E("s_waitcnt lgkmcnt(0)")
    E("v_mov_b32 v6, s8"); E("s_lshl_b32 s9, s2, 8"); E("s_lshl_b32 s8, s3, 7"); E("s_add_u32 s9, s9, s8")
    E("s_add_u32 s9, s9, 0x%x" % (STP + n * 4)); E("v_mov_b32 v7, 0")
    E("s_mov_b64 exec, 1"); E("buffer_store_dword v6, v7, s[64:67], s9 offen"); E("s_mov_b64 exec, -1")
    Lb(l)
def bf16r(dst, src): E("v_cvt_pk_bf16_f32 %s, %s, %s" % (dst, src, src)); E("v_lshlrev_b32 %s, 16, %s" % (dst, dst))
def vr(a, n=4): return "v[%d:%d]" % (a, a + n - 1)
def ar(a, n=4): return "a[%d:%d]" % (a, a + n - 1)
def poll(loads, chk, sleep=0, l2=0):
    l = lab("poll")
    if l2:
        for s in loads: E(s.replace(" sc1", ""))
        E("s_waitcnt vmcnt(0)"); chk()
        E("s_cbranch_vccz %sd" % l)
    E("s_mov_b32 s98, 0"); Lb(l)
    for s in loads: E(s)
    E("s_waitcnt vmcnt(0)"); chk()
    E("s_cbranch_vccz %sd" % l)
    if sleep: E("s_sleep %d" % sleep)
    E("s_add_u32 s98, s98, 1"); E("s_cmp_lt_u32 s98, 0x8000"); E("s_cbranch_scc1 " + l)
    Lb(l + "d")
def ppoll(n, loads, chk, succ, ini=0, slp=0):
    l = lab("pp"); m = len(loads(0))
    E("s_mov_b32 s98, 0")
    if ini: E("s_sleep %d" % ini)
    for i in range(n):
        if i: E("s_sleep %d" % (OPT['rtt'] // n))
        for x in loads(i): E(x)
    Lb(l)
    for i in range(n):
        E("s_waitcnt vmcnt(%d)" % ((n - 1) * m)); chk(i)
        E("s_cbranch_vccz %s_%d" % (l, i))
        if slp: E("s_sleep %d" % slp)
        for x in loads(i): E(x)
    E("s_add_u32 s98, s98, 1"); E("s_cmp_lt_u32 s98, 0x4000"); E("s_cbranch_scc1 " + l)
    for i in range(n - 1, -1, -1):
        Lb("%s_%d" % (l, i)); succ(i)
        if i: E("s_branch %sd" % l)
    Lb(l + "d")
def check(regs, t="v15"):
    r = list(regs)
    E("v_max3_u32 %s, v%d, v%d, v%d" % (t, r[0], r[1], r[2])); r = r[3:]
    while len(r) >= 2: E("v_max3_u32 %s, %s, v%d, v%d" % (t, t, r[0], r[1])); r = r[2:]
    if r: E("v_max_u32 %s, %s, v%d" % (t, t, r[0]))
    E("v_cmp_eq_u32 vcc, -1, %s" % t)
kpos = [0]
def kload(n):
    T, t = n // 8, n % 8
    E("s_add_u32 s10, s80, %d" % (T << ST))
    VM('K', "buffer_load_dwordx4 %s, v4, s[40:43], s10 offen offset:%d%s" % (ar(4 * n), 64 * t, NT))
def kgroup(cnt, cond=True):
    l = lab("kg")
    if cond: E("s_cmp_lg_u32 s3, 0"); E("s_cbranch_scc1 " + l)
    for _ in range(cnt): kload(kpos[0]); kpos[0] += 1
    if cond: Lb(l)
def inlds(u): return u % 2 == 0 or u < 8
def lslot(u): return u if u < 8 else 8 + (u // 2 - 4)
def vload(u):
    T, r, hf = u // 8, (u // 2) % 4, u % 2
    E("s_add_u32 s10, s80, %d" % (T << ST))
    io = r * 512 + hf * 256
    if inlds(u):
        E("s_add_u32 m0, s81, %d" % (lslot(u) * 1024 + 4096 - io)); E("s_nop 0")
        VM('V%d' % u, "buffer_load_dwordx4 v5, s[44:47], s10 offen offset:%d%s lds" % (io, NT))
    else:
        VM('V%d' % u, "buffer_load_dwordx4 %s, v5, s[44:47], s10 offen offset:%d%s" % (vr(144 + 4 * (u // 2 - 4)), io, NT))
vpos = [0]
def vgroup(cnt):
    cnt = min(cnt, 64 - vpos[0])
    for _ in range(cnt): vload(vpos[0]); vpos[0] += 1
def lane(dst): E("v_and_b32 %s, 63, v0" % dst)
def xaddr():
    lane("v15"); E("v_lshlrev_b32 v1, 4, v15"); E("v_min_u32 v2, 47, v15"); E("v_lshlrev_b32 v2, 4, v2"); E("v_add_u32 v2, 1024, v2")
    E("s_mul_i32 s8, s7, 896"); E("s_add_u32 s8, s8, %d" % XRES)
    E("v_lshrrev_b32 v3, 1, v1"); E("v_add_u32 v3, s8, v3"); E("v_lshrrev_b32 v14, 1, v2"); E("v_add_u32 v14, s8, v14")
def xinit():
    xaddr()
    E("ds_read_b64 v[8:9], v3"); E("ds_read_b64 v[10:11], v14")
    E("v_lshlrev_b32 v6, 1, v1"); E("v_lshlrev_b32 v7, 1, v2")
def xtrig(off, P, ini):
    if not OPT['trig']: return
    E("s_add_u32 s9, s15, %s" % off); E("s_and_b32 s8, s2, 7"); E("s_mul_i32 s8, s8, 3"); E("s_bfe_u32 s10, s2, 0x20003"); E("s_add_u32 s8, s8, s10")
    if OPT['ec']:
        E("s_add_u32 s8, s4, s13"); E("s_and_b32 s8, s8, 7"); E("s_cmp_eq_u32 s8, 7"); E("s_cselect_b32 s8, s10, s8"); E("s_add_u32 s9, s9, 0x4000")
    E("s_lshl_b32 s8, s8, 7"); E("s_add_u32 s9, s9, s8"); E("v_mov_b32 v25, 0")
    ppoll(OPT['np'], lambda i: ["buffer_load_dword v%d, v25, s[64:67], s9 offen sc1" % (72 + i)],
          lambda i: (E("v_and_b32 v24, %d, v%d" % (P, 72 + i)), E("v_cmp_eq_u32 vcc, 0, v24")), lambda i: None, ini, OPT['zt'])
def xfront(lst, sleep=0, pipe=1, l2=0):
    loads = []
    for n, (off, P) in enumerate(lst):
        E("s_add_u32 s%d, s15, %s" % (9 + n, off))
        loads += ["buffer_load_dwordx4 %s, v%d, s[64:67], s%d offen offset:%d sc1" % (vr(32 + 16 * n + 4 * i), 6 + i // 2, 9 + n, 16 * (i & 1)) for i in range(4)]
    def chk():
        for n, (off, P) in enumerate(lst):
            o = 32 + 16 * n
            E("v_and_b32 v24, v%d, v%d" % (o, o + 2)); E("v_and_b32 v25, v%d, v%d" % (o + 4, o + 6)); E("v_and_b32 v26, v%d, v%d" % (o + 8, o + 10)); E("v_and_b32 v27, v%d, v%d" % (o + 12, o + 14))
            E("v_and_b32 v24, v24, v25"); E("v_and_b32 v26, v26, v27"); E("v_and_b32 v24, v24, v26"); E("v_and_b32 v%d, %d, v24" % (28 + n, P))
        if len(lst) == 2: E("v_min_u32 v28, v28, v29")
        E("v_cmp_eq_u32 vcc, 0, v28")
    if pipe > 1:
        P = lst[0][1]
        def chk2(i):
            o = 32 + 16 * i
            E("v_and_b32 v24, v%d, v%d" % (o, o + 2)); E("v_and_b32 v25, v%d, v%d" % (o + 4, o + 6)); E("v_and_b32 v26, v%d, v%d" % (o + 8, o + 10)); E("v_and_b32 v27, v%d, v%d" % (o + 12, o + 14))
            E("v_and_b32 v24, v24, v25"); E("v_and_b32 v26, v26, v27"); E("v_and_b32 v24, v24, v26"); E("v_and_b32 v28, %d, v24" % P); E("v_cmp_eq_u32 vcc, 0, v28")
        def dec(i):
            o = 32 + 16 * i
            for q in range(8): E("v_lshrrev_b32 v%d, 31, v%d" % (16 + q, o + 2 * q)); E("v_cvt_f32_i32 v%d, v%d" % (o + 2 * q, o + 2 * q))
            for q in range(8): E("v_add_u32 v%d, v%d, v%d" % (16 + q, 16 + q, o + 1 + 2 * q))
            for q in range(8): E("v_cvt_f32_i32 v%d, v%d" % (16 + q, 16 + q))
            for q in range(8): E("v_fmac_f32 v%d, s97, v%d" % (16 + q, o + 2 * q))
        ppoll(pipe, lambda i: ["buffer_load_dwordx4 %s, v%d, s[64:67], s9 offen offset:%d sc1" % (vr(32 + 16 * i + 4 * j), 6 + j // 2, 16 * (j & 1)) for j in range(4)], chk2, dec)
    else: poll(loads, chk, sleep, l2)
    E("s_waitcnt lgkmcnt(0)")
    for n in range(len(lst)):
        o = 32 + 16 * n
        if pipe == 1:
            for q in range(8): E("v_lshrrev_b32 v%d, 31, v%d" % (16 + q, o + 2 * q)); E("v_cvt_f32_i32 v%d, v%d" % (o + 2 * q, o + 2 * q))
            for q in range(8): E("v_add_u32 v%d, v%d, v%d" % (16 + q, 16 + q, o + 1 + 2 * q))
            for q in range(8): E("v_cvt_f32_i32 v%d, v%d" % (16 + q, 16 + q))
            for q in range(8): E("v_fmac_f32 v%d, s97, v%d" % (16 + q, o + 2 * q))
        for q in range(4):
            E("v_cvt_pk_bf16_f32 v24, v%d, v%d" % (16 + 2 * q, 17 + 2 * q))
            E("v_lshlrev_b32 v25, 16, v24"); E("v_and_b32 v26, 0xffff0000, v24")
            E("v_lshlrev_b32 v27, 16, v%d" % (8 + q)); E("v_and_b32 v28, 0xffff0000, v%d" % (8 + q))
            E("v_add_f32 v25, v25, v27"); E("v_add_f32 v26, v26, v28")
            E("v_cvt_pk_bf16_f32 v%d, v25, v26" % (8 + q))
def xunpack():
    for q in range(4): E("v_lshlrev_b32 v%d, 16, v%d" % (16 + 2 * q, 8 + q)); E("v_and_b32 v%d, 0xffff0000, v%d" % (17 + 2 * q, 8 + q))
    E("ds_write_b64 v3, v[8:9]"); E("ds_write_b64 v14, v[10:11]")
def layernorm(act):
    E("v_add_f32 v24, v16, v17"); E("v_add_f32 v26, v18, v19"); E("v_mul_f32 v25, v16, v16"); E("v_add_f32 v24, v24, v26")
    for q in (17, 18, 19): E("v_fmac_f32 v25, v%d, v%d" % (q, q))
    E("s_mov_b32 exec_hi, 0xffff")
    for q in (20, 21, 22, 23): E("v_add_f32 v24, v24, v%d" % q); E("v_fmac_f32 v25, v%d, v%d" % (q, q))
    E("s_mov_b32 exec_hi, -1"); E("s_nop 1")
    for c in ["row_shr:1 row_mask:0xf bank_mask:0xf bound_ctrl:0", "row_shr:2 row_mask:0xf bank_mask:0xf bound_ctrl:0", "row_shr:4 row_mask:0xf bank_mask:0xf bound_ctrl:0",
              "row_shr:8 row_mask:0xf bank_mask:0xf bound_ctrl:0", "row_bcast:15 row_mask:0xa bank_mask:0xf", "row_bcast:31 row_mask:0xc bank_mask:0xf"]:
        E("v_add_f32_dpp v24, v24, v24 " + c); E("v_add_f32_dpp v25, v25, v25 " + c); E("s_nop 0")
    E("v_readlane_b32 s8, v24, 63"); E("v_readlane_b32 s9, v25, 63")
    E("s_mul_i32 s10, s7, %d" % PITCH); E("s_add_u32 s10, s10, %d" % act)
    E("v_mov_b32 v26, %s" % f32(1 / 448)); E("v_mul_f32 v24, s8, v26"); E("v_mul_f32 v25, s9, v26")
    E("v_fma_f32 v25, -v24, v24, v25"); E("v_max_f32 v25, 0, v25")
    E("v_cvt_pk_bf16_f32 v26, v24, v25"); E("v_lshlrev_b32 v24, 16, v26"); E("v_and_b32 v25, 0xffff0000, v26")
    E("v_add_f32 v25, %s, v25" % f32(1e-5)); bf16r("v25", "v25")
    E("v_sqrt_f32 v25, v25")
    for q in range(8): E("v_sub_f32 v%d, v%d, v24" % (16 + q, 16 + q))
    bf16r("v25", "v25"); E("v_rcp_f32 v25, v25")
    for q in range(4):
        E("v_cvt_pk_bf16_f32 v26, v%d, v%d" % (16 + 2 * q, 17 + 2 * q)); E("v_lshlrev_b32 v%d, 16, v26" % (16 + 2 * q)); E("v_and_b32 v%d, 0xffff0000, v26" % (17 + 2 * q))
    for q in range(8): E("v_mul_f32 v%d, v%d, v25" % (16 + q, 16 + q))
    for q in range(4): E("v_cvt_pk_bf16_f32 v%d, v%d, v%d" % (24 + q, 16 + 2 * q, 17 + 2 * q))
    E("v_lshrrev_b32 v1, 1, v1"); E("v_add_u32 v1, s10, v1"); E("v_lshrrev_b32 v2, 1, v2"); E("v_add_u32 v2, s10, v2")
    E("ds_write_b64 v1, v[24:25]"); E("ds_write_b64 v2, v[26:27]")
def bar(): E("s_waitcnt lgkmcnt(0)"); E("s_barrier")
def dense(T, act, RW=80, sl=(32, 36, 40, 44, 48, 52, 56, 60)):
    n = len(sl)
    E("v_bfe_u32 v1, v0, 2, 2"); E("v_mul_u32_u24 v1, %d, v1" % PITCH); E("v_bfe_u32 v2, v0, 4, 2"); E("v_lshl_add_u32 v1, v2, 4, v1")
    bar()
    for t in range(min(n, T)): E("ds_read_b128 %s, v1 offset:%d" % (vr(sl[t]), act + 64 * t))
    issued = min(n, T)
    for t in range(T):
        E("s_waitcnt lgkmcnt(%d)" % (issued - 1 - t))
        acc = vr(24 + 4 * (t & 1))
        E("v_mfma_f32_16x16x32_bf16 %s, %s, %s, %s" % (acc, vr(sl[t % n]), vr(RW + 4 * t), "0" if t < 2 else acc))
        if issued < T: E("ds_read_b128 %s, v1 offset:%d" % (vr(sl[issued % n]), act + 64 * issued)); issued += 1
    E("v_bfe_u32 v1, v0, 4, 2"); E("v_and_b32 v2, 15, v0"); E("s_nop 6"); E("v_add_f32 v24, v24, v28")
def worker(wave, limit, body):
    l = lab("wk")
    E("s_cmp_lg_u32 s7, %d" % wave); E("s_cbranch_scc1 " + l)
    if limit: E("s_cmp_ge_u32 s13, %d" % limit); E("s_cbranch_scc1 " + l)
    body(); Lb(l)

hdr = open("cdna_kernels/%s.s.ref" % NAME).read().split("\n")
for l in hdr:
    if l.startswith("; @launch"): out.append("; @launch grid=(256,1,1) block=(256,1,1) lds=%d" % LDS_TOTAL)
    elif l.startswith(";"): out.append(l)
    else: break
out += ['.amdgcn_target "amdgcn-amd-amdhsa--gfx950"', ".text", ".globl %s_kernel" % NAME, ".p2align 8",
        ".type %s_kernel,@function" % NAME, "%s_kernel:" % NAME]
E("s_cmp_ge_u32 s2, 256"); E("s_cbranch_scc1 Lend")
if OPT['dbg']: E("s_memrealtime s[100:101]")
def dbgt(n):
    if not OPT['dbg']: return
    l = lab("dbg")
    E("s_cmp_lg_u32 s7, 0"); E("s_cbranch_scc1 " + l)
    E("s_memrealtime s[8:9]"); E("s_waitcnt lgkmcnt(0)"); E("s_sub_u32 s8, s8, s100"); E("v_mov_b32 v6, s8"); E("v_mov_b32 v7, 0")
    E("s_mov_b64 exec, 1"); E("buffer_atomic_umax v6, v7, s[76:79], 0 offen offset:%d sc1" % (4 * n)); E("s_mov_b64 exec, -1")
    Lb(l)
E("s_load_dwordx16 s[16:31], s[0:1], 0"); E("s_load_dwordx8 s[32:39], s[0:1], 64")
E("v_lshrrev_b32 v1, 6, v0"); E("s_and_b32 s4, s2, 7"); E("v_readfirstlane_b32 s7, v1")
E("s_lshr_b32 s13, s2, 3"); E("s_and_b32 s5, s13, 3"); E("s_lshr_b32 s6, s2, 5"); E("s_mov_b32 s3, 0")
E("v_and_b32 v1, 15, v0"); E("v_bfe_u32 v2, v0, 4, 2")
E("v_lshlrev_b32 v4, 9, v1"); E("v_lshl_add_u32 v4, v2, 4, v4")
E("v_lshlrev_b32 v5, 11, v2"); E("v_lshl_add_u32 v5, v1, 4, v5")
E("s_mov_b32 s62, s4")
if OPT['map'] == 1: E("s_and_b32 s62, s13, 7"); E("s_lshr_b32 s5, s2, 6"); E("s_mov_b32 s6, s4")
if OPT['map'] == 2: E("s_add_u32 s62, s4, s6"); E("s_and_b32 s62, s62, 7")
E("s_lshl_b32 s8, s5, 3"); E("s_add_u32 s8, s8, s62"); E("s_lshl_b32 s9, s8, 21")
E("s_lshl_b32 s80, s7, %d" % SW); E("s_lshl_b32 s10, s6, %d" % SS); E("s_add_u32 s80, s80, s10"); E("s_mul_i32 s81, s7, %d" % (NLDSV * 1024)); E("s_add_u32 s81, s81, %d" % (VBASE - 4096))

E("s_lshl_b32 s84, s8, 13"); E("s_lshl_b32 s10, s6, 10"); E("s_add_u32 s84, s84, s10")
E("s_lshl_b32 s85, s8, 7"); E("s_lshl_b32 s10, s6, 3"); E("s_add_u32 s85, s85, s10"); E("s_add_u32 s85, s85, 0x%x" % MLB)
E("s_mov_b32 s86, 0")
E("s_mov_b32 s82, 0x%x" % QB0)
E("s_lshl_b32 s11, s7, 4")
E("s_lshl_b32 s83, s2, 7"); E("s_lshl_b32 s10, s7, 5"); E("s_add_u32 s83, s83, s10")
E("s_sub_u32 s87, s2, 64"); E("s_lshr_b32 s87, s87, 1"); E("s_lshl_b32 s63, s87, 7"); E("s_add_u32 s87, s63, s10")
E("s_bitcmp1_b32 s2, 0"); E("s_cselect_b32 s10, 0, 0x%x" % (AB - AU)); E("s_add_u32 s87, s87, s10"); E("s_add_u32 s87, s87, 0x%x" % AU)
E("s_max_u32 s14, s13, 15"); E("s_sub_u32 s14, s14, 15"); E("s_min_u32 s14, s14, 13")
E("s_cmp_ge_u32 s14, 7"); E("s_cselect_b32 s88, 1, 0"); E("s_mul_i32 s10, s88, 7"); E("s_sub_u32 s14, s14, s10")
E("s_lshl_b32 s89, s14, 6"); E("s_add_u32 s89, s89, s11")
E("s_mov_b32 s12, 0"); E("s_cmp_ge_u32 s13, 8"); E("s_cselect_b32 s12, 1, s12"); E("s_cmp_ge_u32 s13, 15"); E("s_cselect_b32 s12, 2, s12")
E("s_cmp_ge_u32 s13, 29"); E("s_cselect_b32 s12, 3, s12")
E("s_mov_b32 s99, %s" % f32(0.0625 * 1.4426950408889634))
E("s_and_b32 s15, s13, %d" % (OPT['R'] - 1)); E("s_lshl_b32 s15, s15, 14"); E("s_lshl_b32 s10, s7, 12"); E("s_add_u32 s15, s15, s10")
E("s_mov_b32 s97, %s" % f32(2.0 ** -32)); E("s_mov_b32 s96, %s" % f32(2.0 ** 32)); E("s_movk_i32 s95, 0xffe0")
E("s_waitcnt lgkmcnt(0)")
def srd(d, lo, hi, n, add=None):
    if add: E("s_add_u32 s%d, s%d, %s" % (d, lo, add)); E("s_addc_u32 s%d, s%d, 0" % (d + 1, hi))
    else: E("s_mov_b32 s%d, s%d" % (d, lo)); E("s_mov_b32 s%d, s%d" % (d + 1, hi))
    E("s_mov_b32 s%d, 0x%x" % (d + 2, n)); E("s_mov_b32 s%d, 0x00020000" % (d + 3))
srd(40, 18, 19, 1 << 21, "s9"); srd(44, 20, 21, 1 << 21, "s9")
srd(64, 38, 39, 0x400000); srd(68, 16, 17, 3584); srd(72, 34, 35, 3584); srd(76, 36, 37, 256)
stamp()
if OPT['th']:
    E("s_cmp_lt_u32 s13, 22"); E("s_cbranch_scc1 Lth"); E("s_sleep %d" % OPT['th'])
    E("s_cmp_lt_u32 s13, 29"); E("s_cbranch_scc1 Lth"); E("s_sleep %d" % OPT['th'])
    Lb("Lth")
kgroup(OPT['k0'], False)
xaddr()
E("v_lshrrev_b32 v6, 1, v1"); E("v_lshrrev_b32 v7, 1, v2"); E("s_mul_i32 s8, s7, 896")
VM('x', "buffer_load_dwordx2 v[8:9], v6, s[68:71], s8 offen"); VM('x', "buffer_load_dwordx2 v[10:11], v7, s[68:71], s8 offen")
lane("v15"); E("v_lshrrev_b32 v12, 3, v15"); E("v_and_b32 v13, 7, v15")
for m in range(4): E("v_xor_b32 v%d, %d, v13" % (16 + m, 2 * m))
srd(48, 22, 23, 448 * 4096 * 2); E("s_lshl_b32 s92, s2, 7"); E("s_movk_i32 s93, 8192"); E("s_lshl_b32 s10, s7, 7")
E("s_cmp_eq_u32 s12, 0"); E("s_cbranch_scc1 Lwsel")
E("s_bitcmp1_b32 s2, 0"); E("s_cselect_b32 s48, s30, s28"); E("s_cselect_b32 s49, s31, s29"); E("s_mov_b32 s50, 0x%x" % (448 * 1792 * 2))
E("s_mov_b32 s92, s63"); E("s_movk_i32 s93, 3584")
E("s_cmp_eq_u32 s12, 1"); E("s_cbranch_scc1 Lwsel")
E("s_movk_i32 s93, 896"); E("s_and_b32 s10, s7, 1"); E("s_lshl_b32 s10, s10, 7")
E("s_mov_b32 s48, s24"); E("s_mov_b32 s49, s25"); E("s_mov_b32 s50, 0x%x" % (4096 * 448 * 2))
E("s_lshl_b32 s8, s4, 1"); E("s_add_u32 s8, s8, s88"); E("s_mul_i32 s92, s8, %d" % (256 * 896)); E("s_lshl_b32 s8, s14, 7"); E("s_add_u32 s92, s92, s8")
E("s_cmp_eq_u32 s12, 3"); E("s_cselect_b32 s50, 0, s50")
E("s_cmp_lt_u32 s7, 2"); E("s_cbranch_scc1 Lwsel")
E("s_mov_b32 s48, s32"); E("s_mov_b32 s49, s33"); E("s_add_u32 s50, s4, 1"); E("s_mul_i32 s50, s50, %d" % (224 * 896))
E("s_cmp_lg_u32 s88, 0"); E("s_cselect_b32 s50, 0, s50")
E("s_mul_i32 s92, s4, %d" % (224 * 896)); E("s_add_u32 s92, s92, s8")
Lb("Lwsel")
E("s_mov_b32 s52, s48"); E("s_mov_b32 s53, s49"); E("s_lshl_b32 s94, s93, 3")
Lb("Lwsel2")
E("s_mov_b32 s54, s50"); E("s_mov_b32 s55, 0x00020000")
E("s_mul_i32 s10, s10, s93"); E("s_add_u32 s92, s92, s10"); E("s_add_u32 s94, s94, s92")
E("v_mul_lo_u32 v12, v12, s93"); E("s_lshl_b32 s93, s93, 4")
for m in range(4): E("v_lshl_add_u32 v%d, v%d, 4, v12" % (16 + m, 16 + m))
E("s_lshl_b32 s11, s7, 14"); E("s_add_u32 s11, s11, %d" % VBASE)
for f in range(8):
    E("s_add_u32 m0, s11, %d" % (2048 * f)); E("s_nop 0")
    VM('w', "buffer_load_dwordx4 v%d, s[48:51], s92 offen%s lds" % (16 + (2 * f) % 4, WNT))
    E("s_add_u32 m0, s11, %d" % (2048 * f + 1024)); E("s_nop 0")
    VM('w', "buffer_load_dwordx4 v%d, s[52:55], s94 offen%s lds" % (16 + (2 * f + 1) % 4, WNT))
    if f < 7: E("s_add_u32 s92, s92, s93"); E("s_add_u32 s94, s94, s93")
    if f == 3:
        E("s_and_b32 s8, s2, 0x60"); E("s_cmp_eq_u32 s8, 0x60"); E("s_cselect_b32 s8, 0, -1")
        for r in range(4): E("v_mov_b32 v%d, s8" % (24 + r))
        E("v_lshlrev_b32 v7, 4, v0"); E("s_lshl_b32 s8, s2, 12")
        VM('clr', "buffer_store_dwordx4 v[24:27], v7, s[64:67], s8 offen %s" % ["sc1", "sc1 nt", "sc0 sc1", "sc0 sc1 nt"][OPT['cnt']])
        E("s_cmp_lg_u32 s12, 0"); E("s_cbranch_scc1 Lnoclrq")
        E("v_bfe_u32 v12, v0, 4, 2"); E("v_and_b32 v13, 15, v0"); E("v_lshlrev_b32 v12, 13, v12"); E("v_lshl_add_u32 v12, v13, 1, v12"); E("s_add_u32 s8, s82, s83")
        E("s_mov_b32 exec_lo, 0x55555555"); E("s_mov_b32 exec_hi, 0x55555555")
        E("buffer_store_dword v24, v12, s[64:67], s8 offen sc1"); E("s_mov_b64 exec, -1")
        Lb("Lnoclrq")
def qaddr(): E("v_lshlrev_b32 v1, 13, v1"); E("v_lshl_add_u32 v1, v2, 1, v1"); E("s_add_u32 s8, s82, s83"); E("s_mov_b32 exec_lo, 0x55555555"); E("s_mov_b32 exec_hi, 0x55555555")
kgroup(OPT['k1'], False)
stamp()
E("v_mov_b32 v6, 0"); E("ds_write_b32 v6, v6 offset:%d" % QF)
wait_tag('x')
xunpack()
E("s_waitcnt lgkmcnt(0)")
def trblock(isq, ka, kb):
    kgroup(ka, False)
    E("v_bfe_u32 v12, v0, 4, 2"); E("v_bfe_u32 v13, v0, 2, 2"); E("v_xor_b32 v7, s7, v12"); E("v_and_b32 v15, 3, v0")
    E("v_lshl_add_u32 v6, v12, 3, v13"); E("v_lshlrev_b32 v6, 7, v6"); E("v_lshl_add_u32 v6, v7, 5, v6"); E("v_lshl_add_u32 v6, v15, 3, v6"); E("v_add_u32 v16, 512, v6")
    E("v_add_u32 v6, %d, v6" % VBASE); E("v_add_u32 v16, %d, v16" % VBASE)
    wait_tag('w')
    E("s_barrier")
    worker(0, 0, sig)
    for f in range(16):
        E("ds_read_b64_tr_b16 %s, v6 offset:%d" % (vr(RW + 4 * f, 2), f * 4096)); E("ds_read_b64_tr_b16 %s, v16 offset:%d" % (vr(RW + 4 * f + 2, 2), f * 4096))
        if f % 4 == 3 and f < 15: E("s_waitcnt lgkmcnt(4)")
    kgroup(kb, False)
    if not isq: bar()
def sig():
    E("s_mov_b64 exec, 1"); E("s_add_u32 s9, s4, 8"); E("s_cmp_eq_u32 s12, 0"); E("s_cselect_b32 s9, s13, s9"); E("s_lshl_b32 s9, s9, 4"); E("v_mov_b32 v25, 1"); E("v_mov_b32 v26, 0")
    E("buffer_atomic_add v25, v26, s[76:79], s9 offen sc1"); E("s_mov_b64 exec, -1")
def qbody():
    dense(14, ACT0)
    E("s_nop 1"); E("v_mov_b32_dpp v25, v24 quad_perm:[1,0,3,2] row_mask:0xf bank_mask:0xf")
    E("v_cvt_pk_bf16_f32 v24, v24, v25"); E("v_min_u32 v24, -2, v24"); qaddr()
    E("buffer_store_dword v24, v1, s[64:67], s8 offen sc1"); E("s_mov_b64 exec, -1")
E("s_cmp_lg_u32 s12, 0"); E("s_cbranch_scc1 Lpro2")
sv = (list(vm), kpos[0])
layernorm(ACT0)
trblock(True, OPT['k2'], OPT['k3'])
qbody()
stamp(); stamp_n[0] -= OPT['stamps']
kgroup(OPT['X'] - kpos[0], False)
E("s_branch Lpro3")
Lb("Lpro2")
vm[:] = sv[0]; kpos[0] = sv[1]
trblock(False, OPT['X'] - 4 - kpos[0], 4)
stamp()
Lb("Lpro3")
dbgt(3)
Lb("Lloop")

lane("v15"); E("v_lshlrev_b32 v1, 4, v15"); E("v_add_u32 v3, s81, v1")
E("v_bfe_u32 v2, v0, 3, 1"); E("v_lshlrev_b32 v2, 9, v2"); E("v_bfe_u32 v6, v0, 4, 2"); E("v_lshl_add_u32 v2, v6, 4, v2")
E("v_and_b32 v6, 1, v0"); E("v_cmp_eq_u32 vcc, 0, v6"); E("v_mov_b32 v7, 0x01000c0c"); E("v_mov_b32 v12, 0x0c0c0100"); E("v_cndmask_b32 v7, v7, v12, vcc")
E("v_bfe_u32 v6, v0, 1, 2"); E("v_mov_b32 v12, 0x0c0c0c0c"); E("s_mov_b32 s91, 0x02020202")
for r in range(4): E("v_cmp_eq_u32 vcc, %d, v6" % r); E("s_nop 1"); E("v_cndmask_b32 v%d, v12, v7, vcc" % (8 + r))
E("s_lshl_b32 s8, s5, 13"); E("s_lshl_b32 s9, s62, 10"); E("s_add_u32 s90, s8, s9"); E("s_add_u32 s90, s90, s82")
qload = "buffer_load_dwordx4 v[16:19], v1, s[64:67], s90 offen sc1"
E("s_cmp_lg_u32 s3, 0"); E("s_cbranch_scc1 Lqpoll1")
E("v_mov_b32 v6, s62"); E("v_lshlrev_b32 v6, 4, v6")
pos = kpos[0]
mark = {}
def wmark(t): E("s_waitcnt vmcnt(%d)" % min(63, len(vm) - mark[t]))
while pos < 64 + OPT['vpre']:
    if pos < 64: kload(pos); kpos[0] += 1
    else: vload(pos - 64); vpos[0] += 1
    pos += 1
    if pos == OPT['p1']:
        worker(0, 0, lambda: E("buffer_load_dword v7, v6, s[76:79], 0 offen sc1")); mark['cnt'] = len(vm)
    if pos == OPT['pq']:
        def f():
            wmark('cnt')
            E("s_mov_b32 s98, 0"); Lb("Lcnt")
            E("v_cmp_gt_u32 vcc, 8, v7"); E("s_cbranch_vccz Lcntd")
            E("buffer_load_dword v7, v6, s[76:79], 0 offen sc1"); E("s_waitcnt vmcnt(0)")
            E("s_add_u32 s98, s98, 1"); E("s_cmp_lt_u32 s98, 0x8000"); E("s_cbranch_scc1 Lcnt")
            Lb("Lcntd")
            E(qload)
        worker(0, 0, f); mark['q'] = len(vm)
    if pos == OPT['pw']:
        def f():
            wmark('q')
            check(range(16, 20))
            E("s_cbranch_vccz Lattn")
            poll([qload], lambda: check(range(16, 20)))
            Lb("Lattn")
            E("ds_write_b128 v1, v[16:19] offset:%d" % QL)
            E("v_mov_b32 v6, 0"); E("v_mov_b32 v7, 1")
            E("s_waitcnt lgkmcnt(0)")
            E("ds_write_b32 v6, v7 offset:%d" % QF)
        worker(0, 0, f)
E("v_mov_b32 v6, 0"); E("s_mov_b32 s98, 0"); Lb("Lqf")
E("ds_read_b32 v7, v6 offset:%d" % QF); E("s_waitcnt lgkmcnt(0)")
E("v_cmp_eq_u32 vcc, 0, v7"); E("s_cbranch_vccz Lqfd")
E("s_sleep 2"); E("s_add_u32 s98, s98, 1"); E("s_cmp_lt_u32 s98, 0x400000"); E("s_cbranch_scc1 Lqf")
Lb("Lqfd")
def round_tile(T, first):
    s = 32 + 4 * T
    return ["v_cvt_pk_bf16_f32 v6, v%d, v%d" % (s, s + 1), "v_cvt_pk_bf16_f32 v7, v%d, v%d" % (s + 2, s + 3),
            "v_lshlrev_b32 v%d, 16, v6" % s, "v_and_b32 v%d, 0xffff0000, v6" % (s + 1),
            "v_lshlrev_b32 v%d, 16, v7" % (s + 2), "v_and_b32 v%d, 0xffff0000, v7" % (s + 3),
            ("v_max_f32 v12, v%d, v%d" % (s, s + 1)) if first else ("v_max3_f32 v12, v12, v%d, v%d" % (s, s + 1)),
            "v_max3_f32 v12, v12, v%d, v%d" % (s + 2, s + 3)]
def FR(t): return vr(16 + 4 * t) if t < 4 else vr(64 + 4 * (t - 4))
HS = [1, 2, 13, 15]
def eflag():
    if not OPT['ef']: return
    l = lab("ef"); E("s_cmp_lg_u32 s7, 0"); E("s_cbranch_scc1 " + l)
    E("s_sub_u32 s8, s85, 0x%x" % MLB); E("s_lshr_b32 s9, s8, 7"); E("s_lshl_b32 s9, s9, 5"); E("s_lshl_b32 s8, s6, 2"); E("s_add_u32 s8, s8, s9"); E("s_add_u32 s8, s8, s86"); E("s_add_u32 s8, s8, 0x%x" % FLG)
    E("v_mov_b32 v4, 0"); E("s_mov_b64 exec, 1"); E("buffer_store_dword v4, v4, s[64:67], s8 offen sc1"); E("s_mov_b64 exec, -1")
    Lb(l)
def core(L0):
    for t in range(8): E("ds_read_b128 %s, v2 offset:%d" % (FR(t), QL + 64 * t))
    for G in range(4):
        if L0:
            vgroup(4)
            E("s_waitcnt vmcnt(%d)" % min(63, len(vm) - 1 - [j for j, x in enumerate(vm) if x == 'K'][16 * G + 15]))
        if not L0 and G == 4 - (OPT['nq'] + 1) // 2: E("s_waitcnt vmcnt(0)")
        if G: extra = [None] * 3 + round_tile(2 * G - 2, G == 1) + round_tile(2 * G - 1, False)
        else:
            extra = []
            for c in range(4): extra += ["v_lshrrev_b32 v6, 2, v%d" % (8 + c), "v_bfi_b32 v6, v6, 0, s91", "v_or_b32 v%d, v6, v%d" % (HS[c], 8 + c)]
        for t in range(8):
            if G == 0: E("s_waitcnt lgkmcnt(%d)" % (7 - t))
            for d in range(2):
                T = 2 * G + d
                E("v_mfma_f32_16x16x32_bf16 %s, %s, %s, %s" % (vr(32 + 4 * T), ar(32 * T + 4 * t), FR(t), "0" if t == 0 else vr(32 + 4 * T)))
                for _ in range(2 if t >= 5 else 1):
                    if extra:
                        x = extra.pop(0)
                        if x: E(x)
        assert not extra
    if OPT['fine'] and not L0: E("s_memrealtime s[56:57]")
    lu = [u for u in range(64) if inlds(u)]
    nis = [0]
    def ldsread():
        if nis[0] >= len(lu): return
        u = lu[nis[0]]
        if L0: wait_tag('V%d' % u)
        E("ds_read_b128 %s, v3 offset:%d" % (vr(64 + 4 * (nis[0] % 4)), 4096 + lslot(u) * 1024)); nis[0] += 1
    for _ in range(4): ldsread()
    E("s_nop 3")
    for x in round_tile(6, False): E(x)
    for x in round_tile(7, False): E(x)
    E("v_mov_b32 v6, v12"); E("s_nop 1"); E("v_permlane16_swap_b32 v12, v6"); E("s_nop 1"); E("v_max_f32 v12, v12, v6")
    E("v_mov_b32 v6, v12"); E("s_nop 1"); E("v_permlane32_swap_b32 v12, v6"); E("v_mov_b32 v7, 0"); E("s_nop 0"); E("v_max_f32 v12, v12, v6")
    E("v_mul_f32 v14, s99, v12"); E("v_mov_b32 v6, 0")
    def soft(T):
        s = 32 + 4 * T
        fm = lambda a: "v_pk_fma_f32 %s, %s, s[98:99], v[14:15] op_sel:[0,1,0] op_sel_hi:[1,1,0] neg_lo:[0,0,1] neg_hi:[0,0,1]" % (vr(a, 2), vr(a, 2))
        ex = lambda a: "v_exp_f32 v%d, v%d" % (a, a)
        ad = lambda a: "v_pk_add_f32 v[6:7], v[6:7], %s" % vr(a, 2)
        return [[fm(s), fm(s + 2), ex(s), ex(s + 1)], [ex(s + 2), ex(s + 3), ad(s), "v_cvt_pk_bf16_f32 v%d, v%d, v%d" % (s, s, s + 1)],
                ["v_cvt_pk_bf16_f32 v%d, v%d, v%d" % (s + 1, s + 2, s + 3)], [ad(s + 2)]]
    def bmk(k):
        src = 32 + 4 * (k // 4) + ((k % 4) >> 1)
        return ["v_perm_b32 v%d, v%d, v%d, v%d" % (16 + 4 * (k & 1) + c, src, src, HS[c] if k & 1 else 8 + c) for c in range(4)]
    for g in soft(0):
        for x in g: E(x)
    for x in bmk(0): E(x)
    E("s_nop 0")
    if OPT['fine'] and not L0: E("s_memrealtime s[58:59]")
    for k in range(32):
        b = 16 + 4 * (k & 1)
        if L0: vgroup(2)
        if not L0 and k == OPT['kf']: eflag()
        if L0 and k == OPT['late']:
            worker(0, 0, lambda: (E("v_and_b32 v4, 15, v0"), E("v_lshlrev_b32 v4, 4, v4"), E("buffer_load_dword v4, v4, s[76:79], 0 offen sc1"))); mark['cnt2'] = len(vm)
        for hf in range(2):
            u = 2 * k + hf
            if inlds(u):
                n = lu.index(u)
                E("s_waitcnt lgkmcnt(%d)" % (nis[0] - 1 - n)); A = vr(64 + 4 * (n % 4))
            else:
                if L0: wait_tag('V%d' % u)
                A = vr(144 + 4 * (k - 4))
            acc = vr(24 + 4 * hf)
            E("v_mfma_f32_16x16x32_bf16 %s, %s, %s, %s" % (acc, A, vr(b), "0" if k == 0 else acc))
            if inlds(u): ldsread()
            if hf == 0:
                if k < 31:
                    for x in bmk(k + 1): E(x)
            elif k < 28:
                for x in soft(k // 4 + 1)[k % 4]: E(x)
    E("v_add_f32 v13, v6, v7")
    if OPT['fine'] and not L0: E("s_memrealtime s[60:61]")
    if L0:
        E("s_cmp_lg_u32 s7, 0"); E("s_cbranch_scc1 Lcnt2d")
        wmark('cnt2')
        E("v_and_b32 v6, 15, v0"); E("v_cmp_gt_u32 vcc, 8, v6"); E("v_mov_b32 v7, 24"); E("v_lshlrev_b32 v6, 4, v6"); E("v_cndmask_b32 v7, v7, 8, vcc")
        E("s_mov_b32 s98, 0"); Lb("Lcnt2")
        E("v_cmp_gt_u32 vcc, v7, v4"); E("s_cbranch_vccz Lcnt2d")
        E("buffer_load_dword v4, v6, s[76:79], 0 offen sc1"); E("s_waitcnt vmcnt(0)")
        E("s_add_u32 s98, s98, 1"); E("s_cmp_lt_u32 s98, 0x8000"); E("s_cbranch_scc1 Lcnt2")
        Lb("Lcnt2d")
stamp(); stamp_n[0] -= OPT['stamps']
core(True)
E("s_barrier")
eflag()
E("s_branch Lepi")
Lb("Lqpoll1")
worker(0, 0, lambda: ppoll(OPT['nq'], lambda i: ["buffer_load_dwordx4 %s, v1, s[64:67], s90 offen sc1" % vr(60 - 4 * i)],
                           lambda i: check(range(60 - 4 * i, 64 - 4 * i)), lambda i: E("ds_write_b128 v1, %s offset:%d" % (vr(60 - 4 * i), QL)), 0, OPT['zq']))
bar()
stamp()
core(False)
Lb("Lepi")
E("v_mov_b32 v6, v13"); E("s_nop 1"); E("v_permlane16_swap_b32 v13, v6"); E("s_nop 1"); E("v_add_f32 v13, v13, v6")
E("v_mov_b32 v6, v13"); E("s_nop 1"); E("v_permlane32_swap_b32 v13, v6"); E("s_nop 1"); E("v_add_f32 v13, v13, v6")
E("v_bfe_u32 v6, v0, 3, 1"); E("v_lshlrev_b32 v7, 10, v6"); E("v_bfe_u32 v1, v0, 4, 2"); E("v_lshl_add_u32 v7, v1, 5, v7")
E("v_and_b32 v1, 7, v0"); E("v_lshl_add_u32 v7, v1, 2, v7"); E("s_lshl_b32 s8, s7, 11"); E("v_add_u32 v7, s8, v7")
E("s_lshl_b32 s8, s7, 4"); E("v_lshl_add_u32 v6, v6, 3, s8")
for hf in range(2):
    for r in range(4): E("ds_write_b32 v7, v%d offset:%d" % (24 + 4 * hf + r, OM + (r * 2 + hf) * 128))
E("s_mov_b64 exec, 0x101"); E("ds_write_b64 v6, v[12:13] offset:%d" % ML); E("s_mov_b64 exec, -1")
E("v_lshlrev_b32 v6, 2, v0"); E("v_lshrrev_b32 v2, 7, v0"); E("v_lshlrev_b32 v3, 3, v2")
E("v_lshlrev_b32 v1, 10, v2"); E("v_bfe_u32 v7, v0, 6, 1"); E("v_lshl_add_u32 v1, v7, 7, v1"); E("v_bfe_u32 v7, v0, 2, 2"); E("v_lshl_add_u32 v1, v7, 8, v1")
E("v_bfe_u32 v7, v0, 4, 2"); E("v_lshl_add_u32 v1, v7, 5, v1"); E("v_and_b32 v7, 3, v0"); E("v_lshl_add_u32 v1, v7, 3, v1")
E("v_lshlrev_b32 v7, 6, v2"); E("s_add_u32 s8, s84, s86"); E("s_add_u32 s9, s85, s86")
bar()
for w in range(4): E("ds_read_b64 %s, v3 offset:%d" % (vr(40 + 2 * w, 2), ML + 16 * w))
for w in range(4): E("ds_read_b64 %s, v1 offset:%d" % (vr(32 + 2 * w, 2), OM + 2048 * w))
E("s_waitcnt lgkmcnt(4)")
E("v_max_f32 v26, v40, v42"); E("v_max3_f32 v26, v26, v44, v46")
for w in range(4): E("v_sub_f32 v%d, v%d, v26" % (40 + 2 * w, 40 + 2 * w)); E("v_mul_f32 v%d, s99, v%d" % (40 + 2 * w, 40 + 2 * w))
for w in range(4): E("v_exp_f32 v%d, v%d" % (40 + 2 * w, 40 + 2 * w))
E("s_waitcnt lgkmcnt(0)")
E("v_mul_f32 v24, v40, v32"); E("v_mul_f32 v25, v40, v33"); E("v_mul_f32 v27, v40, v41")
for w in range(1, 4):
    E("v_fmac_f32 v24, v%d, v%d" % (40 + 2 * w, 32 + 2 * w)); E("v_fmac_f32 v25, v%d, v%d" % (40 + 2 * w, 33 + 2 * w)); E("v_fmac_f32 v27, v%d, v%d" % (40 + 2 * w, 41 + 2 * w))
E("v_cvt_pk_bf16_f32 v24, v24, v25"); E("v_min_u32 v24, -2, v24"); E("v_min_u32 v26, -2, v26"); E("v_min_u32 v27, -2, v27")
E("buffer_store_dword v24, v6, s[64:67], s8 offen sc1")
E("s_and_b32 s10, s7, 1"); E("s_cmp_lg_u32 s10, 0"); E("s_cbranch_scc1 Lnoml")
E("s_mov_b64 exec, 1"); E("buffer_store_dwordx2 v[26:27], v7, s[64:67], s9 offen sc1"); E("s_mov_b64 exec, -1")
Lb("Lnoml")
stamp()
if OPT['fine']:
    for i in range(3):
        l = lab("fs"); E("s_cmp_lg_u32 s7, 0"); E("s_cbranch_scc1 " + l); E("s_cmp_lg_u32 s3, 1"); E("s_cbranch_scc1 " + l)
        E("v_mov_b32 v6, s%d" % (56 + 2 * i)); E("s_lshl_b32 s9, s2, 8"); E("s_add_u32 s9, s9, 0x%x" % (STP + 128 + (20 + i) * 4)); E("v_mov_b32 v7, 0")
        E("s_mov_b64 exec, 1"); E("buffer_store_dword v6, v7, s[64:67], s9 offen"); E("s_mov_b64 exec, -1"); Lb(l)

if OPT['dbg']:
    E("s_cmp_lg_u32 s3, 0"); E("s_cbranch_scc1 Ldbg1"); dbgt(1); Lb("Ldbg1")
E("s_cmp_eq_u32 s12, 1"); E("s_cbranch_scc1 Lg")
E("s_cmp_eq_u32 s12, 0"); E("s_cbranch_scc1 Lq")
E("s_cmp_eq_u32 s12, 3"); E("s_cbranch_scc1 Lf")
lane("v15"); E("v_lshlrev_b32 v1, 3, v15"); E("v_and_b32 v2, 56, v1"); E("s_mul_i32 s8, s7, %d" % PITCH); E("v_add_u32 v3, s8, v1")
E("s_lshl_b32 s8, s7, 3"); E("s_add_u32 s8, s8, s4"); E("s_lshl_b32 s9, s8, 13"); E("s_add_u32 s9, s9, s86"); E("s_lshl_b32 s10, s88, 9"); E("s_add_u32 s9, s9, s10"); E("s_add_u32 s10, s9, 4096")
E("s_lshl_b32 s11, s8, 7"); E("s_add_u32 s11, s11, s86"); E("s_add_u32 s11, s11, 0x%x" % MLB); E("s_lshl_b32 s8, s88, 6"); E("s_add_u32 s11, s11, s8")
OBB = [44, 62]
def obl(i): return ["buffer_load_dwordx2 %s, v2, s[64:67], s11 offen sc1" % vr(OBB[i] + 16, 2)] + \
    ["buffer_load_dwordx2 %s, v1, s[64:67], %s offen offset:%d sc1" % (vr(OBB[i] + 2 * s, 2), "s9" if s < 4 else "s10", (s % 4) * 1024) for s in range(8)]
D3 = ["quad_perm:[1,0,3,2] row_mask:0xf bank_mask:0xf", "quad_perm:[2,3,0,1] row_mask:0xf bank_mask:0xf", "row_half_mirror row_mask:0xf bank_mask:0xf"]
def obs(i):
    o = OBB[i]
    ecount(XS1)
    def unp(s):
        for q in range(2): E("v_lshlrev_b32 v%d, 16, v%d" % (16 + 2 * s + q, o + 2 * s + q)); E("v_and_b32 v%d, 0xffff0000, v%d" % (o + 2 * s + q, o + 2 * s + q))
    E("v_max_f32_dpp v6, v%d, v%d " % (o + 16, o + 16) + D3[0]); unp(0)
    E("v_max_f32_dpp v6, v6, v6 " + D3[1]); unp(1)
    E("v_max_f32_dpp v6, v6, v6 " + D3[2]); unp(2)
    E("v_sub_f32 v6, v%d, v6" % (o + 16)); E("v_mul_f32 v6, s99, v6"); E("v_exp_f32 v6, v6"); unp(3)
    E("v_mul_f32 v7, v6, v%d" % (o + 17)); unp(4)
    E("v_add_f32_dpp v7, v7, v7 " + D3[0]); unp(5)
    E("v_add_f32_dpp v7, v7, v7 " + D3[1]); unp(6)
    E("v_add_f32_dpp v7, v7, v7 " + D3[2]); unp(7)
    for s in range(8): E("v_readlane_b32 s%d, v6, %d" % (16 + s, s))
    E("v_rcp_f32 v7, v7")
    for s in range(8):
        for q in range(4):
            src = (16 if q % 2 == 0 else o) + 2 * s + q // 2
            if s == 0: E("v_mul_f32 v%d, s16, v%d" % (32 + q, src))
            else: E("v_fmac_f32 v%d, s%d, v%d" % (32 + q, 16 + s, src))
if OPT['ef']:
    E("s_lshl_b32 s8, s7, 3"); E("s_add_u32 s8, s8, s4"); E("s_lshl_b32 s8, s8, 5"); E("s_add_u32 s8, s8, s86"); E("s_add_u32 s16, s8, 0x%x" % FLG); E("v_lshrrev_b32 v6, 1, v2")
    ppoll(1, lambda i: ["buffer_load_dword v7, v6, s[64:67], s16 offen sc1"], lambda i: E("v_cmp_eq_u32 vcc, -1, v7"), lambda i: None)
    E("s_cmp_eq_u32 s3, 0"); E("s_cbranch_scc1 Lnodw")
    if OPT['dw']: E("s_sleep %d" % OPT['dw'])
    Lb("Lnodw")
    if OPT['dw0']: E("s_sleep %d" % OPT['dw0'])
def ecount(base):
    if not OPT['ec']: return
    E("s_lshl_b32 s8, s14, 7"); E("s_add_u32 s8, s8, s15"); E("s_add_u32 s8, s8, s86"); E("s_add_u32 s8, s8, 0x%x" % (base + 0x4000))
    E("v_mov_b32 v4, 1"); E("v_mov_b32 v5, 0"); E("s_mov_b64 exec, 1"); E("buffer_atomic_add v4, v5, s[64:67], s8 offen sc1"); E("s_mov_b64 exec, -1")
ppoll(OPT['no'], obl, lambda i: check(range(OBB[i], OBB[i] + 18)), obs, OPT['io'], OPT['zo'])
for q in range(4): E("v_mul_f32 v%d, v%d, v7" % (32 + q, 32 + q))
for q in range(2): E("v_cvt_pk_bf16_f32 v%d, v%d, v%d" % (36 + q, 32 + 2 * q, 33 + 2 * q))
E("ds_write_b64 v3, v[36:37] offset:%d" % ACT1)
stamp()
def xatomic(base):
    E("v_rndne_f32 v25, v24"); E("v_sub_f32 v26, v24, v25"); E("v_cvt_i32_f32 v25, v25"); E("v_mul_f32 v26, s96, v26"); E("v_cvt_i32_f32 v24, v26")
    E("v_lshlrev_b32 v1, 12, v1"); E("v_lshl_add_u32 v1, v2, 3, v1")
    E("v_ashrrev_i32 v26, 31, v24"); E("v_add_u32 v25, v25, v26"); E("v_and_or_b32 v24, v24, s95, 1")
    E("s_lshl_b32 s8, s89, 3"); E("s_add_u32 s8, s8, s86"); E("s_add_u32 s8, s8, 0x%x" % base)
    for r in range(OPT['R']):
        if r: E("s_add_u32 s8, s8, 0x4000")
        E("buffer_atomic_add_x2 v[24:25], v1, s[64:67], s8 offen sc1")
dense(8, ACT1, RW, (8, 12, 16, 20, 32, 36, 40)); xatomic(XS1)
stamp()
E("s_cmp_lg_u32 s88, 0"); E("s_cbranch_scc1 Lnexts")
lane("v15"); E("v_min_u32 v1, 27, v15"); E("v_lshlrev_b32 v1, 4, v1")
E("s_lshl_b32 s8, s7, 12"); E("s_mul_i32 s9, s4, 448"); E("s_add_u32 s9, s9, s8"); E("s_add_u32 s9, s9, s86"); E("s_add_u32 s9, s9, 0x%x" % AB)
E("s_mul_i32 s8, s7, %d" % PITCH); E("v_add_u32 v2, s8, v1")
E("s_sub_u32 s10, s9, 0x%x" % (AB - AU))
def absucc(i):
    for q in range(4):
        E("v_lshlrev_b32 v16, 16, v%d" % (64 + q)); E("v_and_b32 v17, 0xffff0000, v%d" % (64 + q)); E("v_lshlrev_b32 v18, 16, v%d" % (68 + q)); E("v_and_b32 v19, 0xffff0000, v%d" % (68 + q))
        E("v_pk_mul_f32 v[16:17], v[16:17], v[18:19]"); E("v_cvt_pk_bf16_f32 v%d, v16, v17" % (20 + q))
    E("ds_write_b128 v2, v[20:23] offset:%d" % ACT0)
ppoll(1, lambda i: ["buffer_load_dwordx4 v[64:67], v1, s[64:67], s9 offen sc1", "buffer_load_dwordx4 v[68:71], v1, s[64:67], s10 offen sc1"],
      lambda i: check(range(64, 72)), absucc, OPT['ia'], OPT['za'])
stamp()
dense(7, ACT0, RW + 32); xatomic(XS2)
stamp()
E("s_branch Lnext")
Lb("Lg")
xinit()
E("s_cmp_eq_u32 s3, 0"); E("s_cbranch_scc1 Lg1")
xfront([("0x%x" % XS2, 8)])
Lb("Lg1")
E("s_add_u32 s91, s86, 0x%x" % XS1)
xtrig("s91", 16, OPT['ig'])
xfront([("s91", 16)], 0, 1, OPT['l2'])
stamp()
xunpack(); layernorm(ACT0)
dense(14, ACT0)
E("s_bitcmp1_b32 s2, 0"); E("s_cbranch_scc1 Lnogelu")
bf16r("v24", "v24")
k2 = -2 * 0.7978845608028654 * 1.4426950408889634
E("v_mul_f32 v26, v24, v24"); E("v_mov_b32 v25, %s" % f32(k2)); E("v_fmac_f32 v25, %s, v26" % f32(k2 * 0.044715))
E("v_mul_f32 v25, v25, v24"); E("v_exp_f32 v25, v25"); E("s_nop 0"); E("v_add_f32 v25, 1.0, v25"); E("v_rcp_f32 v25, v25"); E("s_nop 0")
E("v_mul_f32 v24, v25, v24")
Lb("Lnogelu")
E("v_lshlrev_b32 v1, 12, v1"); E("v_lshl_add_u32 v1, v2, 1, v1")
E("v_mov_b32_dpp v26, v24 quad_perm:[1,0,3,2] row_mask:0xf bank_mask:0xf")
E("s_add_u32 s8, s86, s87"); E("s_mov_b32 exec_lo, 0x55555555"); E("s_mov_b32 exec_hi, 0x55555555")
E("v_cvt_pk_bf16_f32 v24, v24, v26"); E("v_min_u32 v24, -2, v24")
E("buffer_store_dword v24, v1, s[64:67], s8 offen sc1"); E("s_mov_b64 exec, -1")
stamp()
E("s_branch Lnextg")
Lb("Lq")
E("s_cmp_lg_u32 s3, 0"); E("s_cbranch_scc1 Lend")
xinit()
xtrig("0x%x" % XS2, 8, OPT['it'])
xfront([("0x%x" % XS1, 16), ("0x%x" % XS2, 8)], 0, 1, OPT['l2'])
stamp()
xunpack(); layernorm(ACT0)
E("s_mov_b32 s82, 0x%x" % QB1)
qbody()
stamp()
E("s_branch Lnext")
Lb("Lf")
E("s_cmp_eq_u32 s3, 0"); E("s_cbranch_scc1 Lnexts")
E("s_cmp_lg_u32 s2, 255"); E("s_cbranch_scc1 Lend")
xinit()
xfront([("0x%x" % XS1, 16), ("0x%x" % XS2, 8)])
xfront([("0x%x" % (XS1 + LSTEP), 16)], OPT['lazy'])
xfront([("0x%x" % (XS2 + LSTEP), 8)], 0, OPT['nx'])
E("v_lshrrev_b32 v1, 1, v1"); E("v_lshrrev_b32 v2, 1, v2"); E("s_mul_i32 s8, s7, 896")
E("buffer_store_dwordx2 v[8:9], v1, s[72:75], s8 offen")
E("s_mov_b32 exec_hi, 0xffff")
E("buffer_store_dwordx2 v[10:11], v2, s[72:75], s8 offen")
stamp()
dbgt(2)
E("s_branch Lend")
Lb("Lnexts")
if OPT['iq']: E("s_cmp_lg_u32 s3, 0"); E("s_cbranch_scc1 Lend"); E("s_sleep %d" % OPT['iq'])
Lb("Lnextg")
if OPT['iq']: E("s_cmp_lg_u32 s3, 0"); E("s_cbranch_scc1 Lend"); E("s_sleep %d" % OPT['iq'])
Lb("Lnext")
E("s_cmp_lg_u32 s3, 0"); E("s_cbranch_scc1 Lend")
E("s_waitcnt vmcnt(0)")
E("s_mov_b32 s3, 1"); E("s_mov_b32 s86, 0x%x" % LSTEP); E("s_mov_b32 s82, 0x%x" % QB1)
E("s_branch Lloop")

Lb("Lend")
E("s_endpgm")
out += ['.section .rodata,"a"', ".p2align 6", ".amdhsa_kernel %s_kernel" % NAME,
        "  .amdhsa_next_free_vgpr 512", "  .amdhsa_next_free_sgpr 102", "  .amdhsa_accum_offset 256",
        "  .amdhsa_group_segment_fixed_size 0", "  .amdhsa_kernarg_size 96", "  .amdhsa_user_sgpr_count 2",
        "  .amdhsa_user_sgpr_kernarg_segment_ptr 1", "  .amdhsa_system_sgpr_workgroup_id_x 1", ".end_amdhsa_kernel"]
open(sys.argv[1], "w").write("\n".join(out) + "\n")
```

```python
import sys, struct
NAME = "interleave_layers__gqa_block_cached__geglu_ffn__decode"
OPT = dict(hr=0, qr=0, ht=0, qt=0, rp=2, la=1, lt=1, fin=1, nt=1, stamps=0, p1=34, pq=52, pw=70, vpre=16, lazy=8, k0=0, k1=6, k2=6, k3=4, trig=1, wnt=1, dbg=0, fine=0, late=8, R=1, np=1, nq=1, no=1, nx=1, rtt=21, iq=0, zq=0, io=0, zo=0, ig=0, it=0, zt=0, ia=0, za=0, ef=1, kf=24, dw=0, dw0=0, ec=0, l2=0, l2o=0, cnt=0, map=1, lay=3, th=25, gm=0, X=24)
for a in sys.argv[2:]:
    k, v = a.split('='); OPT[k] = int(v)
out = []
SS, SW, ST = [(18, 16, 13), (13, 16, 18), (13, 19, 16), (15, 13, 18), (16, 19, 13), (18, 13, 15)][OPT['lay']]
def E(s): out.append("    " + s)
def Lb(s): out.append(s + ":")
def f32(x): return "0x%08x" % struct.unpack('<I', struct.pack('<f', x))[0]
NT = ["", " nt", " sc1 nt", " sc0 sc1 nt", " sc0 nt", " sc1"][OPT['nt']]; WNT = ["", " nt"][OPT['wnt']]
NLDSV = 36; VBASE = 16384; LDS_TOTAL = 163840
ACT0 = 0; OM = 0; ACT1 = 8192; QL = 8192; XRES = 12544; ML = 16128; QF = 16256; PITCH = 1088
OB = 0; XS1 = 0x60000; XS2 = 0x70000; AB = 0x54000; MLB = 0x5C000; QB1 = 0x48000; FLG = 0x5D000; AU = 0x40000; QB0 = 0x100000; LSTEP = 0x80000; STP = 0x300000; XV1 = 0x50000; XV2 = 0x52000; assert OPT['rp'] <= 2
RW = 80
vm = []
def VM(tag, s): vm.append(tag); E(s)
def wait_tag(tag):
    idx = max(i for i, t in enumerate(vm) if t == tag)
    E("s_waitcnt vmcnt(%d)" % min(len(vm) - 1 - idx, 63))
uid = [0]
def lab(p): uid[0] += 1; return "L%s%d" % (p, uid[0])
stamp_n = [0]
def stamp(wave=0):
    if not OPT['stamps']: return
    n = stamp_n[0]; stamp_n[0] += 1; l = lab("st")
    E("s_cmp_lg_u32 s7, %d" % wave); E("s_cbranch_scc1 " + l)
    E("s_memrealtime s[8:9]"); E("s_waitcnt lgkmcnt(0)")
    E("v_mov_b32 v6, s8"); E("s_lshl_b32 s9, s2, 8"); E("s_lshl_b32 s8, s3, 7"); E("s_add_u32 s9, s9, s8")
    E("s_add_u32 s9, s9, 0x%x" % (STP + n * 4)); E("v_mov_b32 v7, 0")
    E("s_mov_b64 exec, 1"); E("buffer_store_dword v6, v7, s[64:67], s9 offen"); E("s_mov_b64 exec, -1")
    Lb(l)
def bf16r(dst, src): E("v_cvt_pk_bf16_f32 %s, %s, %s" % (dst, src, src)); E("v_lshlrev_b32 %s, 16, %s" % (dst, dst))
def vr(a, n=4): return "v[%d:%d]" % (a, a + n - 1)
def ar(a, n=4): return "a[%d:%d]" % (a, a + n - 1)
def poll(loads, chk, sleep=0, l2=0):
    l = lab("poll")
    if l2:
        for s in loads: E(s.replace(" sc1", ""))
        E("s_waitcnt vmcnt(0)"); chk()
        E("s_cbranch_vccz %sd" % l)
    E("s_mov_b32 s98, 0"); Lb(l)
    for s in loads: E(s)
    E("s_waitcnt vmcnt(0)"); chk()
    E("s_cbranch_vccz %sd" % l)
    if sleep: E("s_sleep %d" % sleep)
    E("s_add_u32 s98, s98, 1"); E("s_cmp_lt_u32 s98, 0x8000"); E("s_cbranch_scc1 " + l)
    Lb(l + "d")
def ppoll(n, loads, chk, succ, ini=0, slp=0):
    l = lab("pp"); m = len(loads(0))
    E("s_mov_b32 s98, 0")
    if ini: E("s_sleep %d" % ini)
    for i in range(n):
        if i: E("s_sleep %d" % (OPT['rtt'] // n))
        for x in loads(i): E(x)
    Lb(l)
    for i in range(n):
        E("s_waitcnt vmcnt(%d)" % ((n - 1) * m)); chk(i)
        E("s_cbranch_vccz %s_%d" % (l, i))
        if slp: E("s_sleep %d" % slp)
        for x in loads(i): E(x)
    E("s_add_u32 s98, s98, 1"); E("s_cmp_lt_u32 s98, 0x4000"); E("s_cbranch_scc1 " + l)
    for i in range(n - 1, -1, -1):
        Lb("%s_%d" % (l, i)); succ(i)
        if i: E("s_branch %sd" % l)
    Lb(l + "d")
def check(regs, t="v15"):
    r = list(regs)
    E("v_max3_u32 %s, v%d, v%d, v%d" % (t, r[0], r[1], r[2])); r = r[3:]
    while len(r) >= 2: E("v_max3_u32 %s, %s, v%d, v%d" % (t, t, r[0], r[1])); r = r[2:]
    if r: E("v_max_u32 %s, %s, v%d" % (t, t, r[0]))
    E("v_cmp_eq_u32 vcc, -1, %s" % t)
kpos = [0]
def kload(n):
    T, t = n // 8, n % 8
    E("s_add_u32 s10, s80, %d" % (T << ST))
    VM('K', "buffer_load_dwordx4 %s, v4, s[40:43], s10 offen offset:%d%s" % (ar(4 * n), 64 * t, NT))
def kgroup(cnt, cond=True):
    l = lab("kg")
    if cond: E("s_cmp_lg_u32 s3, 0"); E("s_cbranch_scc1 " + l)
    for _ in range(cnt): kload(kpos[0]); kpos[0] += 1
    if cond: Lb(l)
def inlds(u): return u % 2 == 0 or u < 8
def lslot(u): return u if u < 8 else 8 + (u // 2 - 4)
def vload(u):
    T, r, hf = u // 8, (u // 2) % 4, u % 2
    E("s_add_u32 s10, s80, %d" % (T << ST))
    io = r * 512 + hf * 256
    if inlds(u):
        E("s_add_u32 m0, s81, %d" % (lslot(u) * 1024 + 4096 - io)); E("s_nop 0")
        VM('V%d' % u, "buffer_load_dwordx4 v5, s[44:47], s10 offen offset:%d%s lds" % (io, NT))
    else:
        VM('V%d' % u, "buffer_load_dwordx4 %s, v5, s[44:47], s10 offen offset:%d%s" % (vr(144 + 4 * (u // 2 - 4)), io, NT))
vpos = [0]
def vgroup(cnt):
    cnt = min(cnt, 64 - vpos[0])
    for _ in range(cnt): vload(vpos[0]); vpos[0] += 1
def lane(dst): E("v_and_b32 %s, 63, v0" % dst)
def xaddr():
    lane("v15"); E("v_lshlrev_b32 v1, 4, v15"); E("v_min_u32 v2, 47, v15"); E("v_lshlrev_b32 v2, 4, v2"); E("v_add_u32 v2, 1024, v2")
    E("s_mul_i32 s8, s7, 896"); E("s_add_u32 s8, s8, %d" % XRES)
    E("v_lshrrev_b32 v3, 1, v1"); E("v_add_u32 v3, s8, v3"); E("v_lshrrev_b32 v14, 1, v2"); E("v_add_u32 v14, s8, v14")
def xinit():
    xaddr()
    E("ds_read_b64 v[8:9], v3"); E("ds_read_b64 v[10:11], v14")
    E("v_lshlrev_b32 v6, 1, v1"); E("v_lshlrev_b32 v7, 1, v2")
def xtrig(off, P, ini):
    if not OPT['trig']: return
    E("s_add_u32 s9, s15, %s" % off); E("s_and_b32 s8, s2, 7"); E("s_mul_i32 s8, s8, 3"); E("s_bfe_u32 s10, s2, 0x20003"); E("s_add_u32 s8, s8, s10")
    if OPT['ec']:
        E("s_add_u32 s8, s4, s13"); E("s_and_b32 s8, s8, 7"); E("s_cmp_eq_u32 s8, 7"); E("s_cselect_b32 s8, s10, s8"); E("s_add_u32 s9, s9, 0x4000")
    E("s_lshl_b32 s8, s8, 7"); E("s_add_u32 s9, s9, s8"); E("v_mov_b32 v25, 0")
    ppoll(OPT['np'], lambda i: ["buffer_load_dword v%d, v25, s[64:67], s9 offen sc1" % (72 + i)],
          lambda i: (E("v_and_b32 v24, %d, v%d" % (P, 72 + i)), E("v_cmp_eq_u32 vcc, 0, v24")), lambda i: None, ini, OPT['zt'])
def xfront(lst, sleep=0, pipe=1, l2=0):
    loads = []
    for n, (off, P) in enumerate(lst):
        E("s_add_u32 s%d, s15, %s" % (9 + n, off))
        loads += ["buffer_load_dwordx4 %s, v%d, s[64:67], s%d offen offset:%d sc1" % (vr(32 + 16 * n + 4 * i), 6 + i // 2, 9 + n, 16 * (i & 1)) for i in range(4)]
    def chk():
        for n, (off, P) in enumerate(lst):
            o = 32 + 16 * n
            E("v_and_b32 v24, v%d, v%d" % (o, o + 2)); E("v_and_b32 v25, v%d, v%d" % (o + 4, o + 6)); E("v_and_b32 v26, v%d, v%d" % (o + 8, o + 10)); E("v_and_b32 v27, v%d, v%d" % (o + 12, o + 14))
            E("v_and_b32 v24, v24, v25"); E("v_and_b32 v26, v26, v27"); E("v_and_b32 v24, v24, v26"); E("v_and_b32 v%d, %d, v24" % (28 + n, P))
        if len(lst) == 2: E("v_min_u32 v28, v28, v29")
        E("v_cmp_eq_u32 vcc, 0, v28")
    if pipe > 1:
        P = lst[0][1]
        def chk2(i):
            o = 32 + 16 * i
            E("v_and_b32 v24, v%d, v%d" % (o, o + 2)); E("v_and_b32 v25, v%d, v%d" % (o + 4, o + 6)); E("v_and_b32 v26, v%d, v%d" % (o + 8, o + 10)); E("v_and_b32 v27, v%d, v%d" % (o + 12, o + 14))
            E("v_and_b32 v24, v24, v25"); E("v_and_b32 v26, v26, v27"); E("v_and_b32 v24, v24, v26"); E("v_and_b32 v28, %d, v24" % P); E("v_cmp_eq_u32 vcc, 0, v28")
        def dec(i):
            o = 32 + 16 * i
            for q in range(8): E("v_lshrrev_b32 v%d, 31, v%d" % (16 + q, o + 2 * q)); E("v_cvt_f32_i32 v%d, v%d" % (o + 2 * q, o + 2 * q))
            for q in range(8): E("v_add_u32 v%d, v%d, v%d" % (16 + q, 16 + q, o + 1 + 2 * q))
            for q in range(8): E("v_cvt_f32_i32 v%d, v%d" % (16 + q, 16 + q))
            for q in range(8): E("v_fmac_f32 v%d, s97, v%d" % (16 + q, o + 2 * q))
        ppoll(pipe, lambda i: ["buffer_load_dwordx4 %s, v%d, s[64:67], s9 offen offset:%d sc1" % (vr(32 + 16 * i + 4 * j), 6 + j // 2, 16 * (j & 1)) for j in range(4)], chk2, dec)
    else: poll(loads, chk, sleep, l2)
    E("s_waitcnt lgkmcnt(0)")
    for n in range(len(lst)):
        o = 32 + 16 * n
        if pipe == 1:
            for q in range(8): E("v_lshrrev_b32 v%d, 31, v%d" % (16 + q, o + 2 * q)); E("v_cvt_f32_i32 v%d, v%d" % (o + 2 * q, o + 2 * q))
            for q in range(8): E("v_add_u32 v%d, v%d, v%d" % (16 + q, 16 + q, o + 1 + 2 * q))
            for q in range(8): E("v_cvt_f32_i32 v%d, v%d" % (16 + q, 16 + q))
            for q in range(8): E("v_fmac_f32 v%d, s97, v%d" % (16 + q, o + 2 * q))
        for q in range(4):
            E("v_cvt_pk_bf16_f32 v24, v%d, v%d" % (16 + 2 * q, 17 + 2 * q))
            E("v_lshlrev_b32 v25, 16, v24"); E("v_and_b32 v26, 0xffff0000, v24")
            E("v_lshlrev_b32 v27, 16, v%d" % (8 + q)); E("v_and_b32 v28, 0xffff0000, v%d" % (8 + q))
            E("v_add_f32 v25, v25, v27"); E("v_add_f32 v26, v26, v28")
            E("v_cvt_pk_bf16_f32 v%d, v25, v26" % (8 + q))
def xpoll(off):
    xaddr(); E("v_lshrrev_b32 v6, 1, v1"); E("v_lshrrev_b32 v7, 1, v2"); E("s_mul_i32 s9, s7, 896"); E("s_add_u32 s9, s9, %s" % off); E("s_add_u32 s9, s9, s56")
    if OPT['lt']:
        E("s_lshr_b32 s8, s2, %d" % (OPT['rp'].bit_length() - 1)); E("s_and_b32 s8, s8, 7"); E("s_min_u32 s8, s8, 6"); E("s_lshl_b32 s8, s8, 7"); E("s_add_u32 s10, s9, s8"); E("v_mov_b32 v25, 0")
        ppoll(1, lambda i: ["buffer_load_ushort v72, v25, s[64:67], s10 offen sc1"], lambda i: E("v_cmp_eq_u16 vcc, -1, v72"), lambda i: None)
    def chk(i):
        E("v_pk_max_u16 v24, v8, v9"); E("v_pk_max_u16 v25, v10, v11"); E("v_pk_max_u16 v24, v24, v25")
        E("v_lshrrev_b32 v25, 16, v24"); E("v_max_u16 v24, v24, v25"); E("v_cmp_eq_u16 vcc, -1, v24")
    ppoll(1, lambda i: ["buffer_load_dwordx2 v[8:9], v6, s[64:67], s9 offen sc1", "buffer_load_dwordx2 v[10:11], v7, s[64:67], s9 offen sc1"], chk, lambda i: None, 0, OPT['zt'])
def xunpack(wr=1):
    for q in range(4): E("v_lshlrev_b32 v%d, 16, v%d" % (16 + 2 * q, 8 + q)); E("v_and_b32 v%d, 0xffff0000, v%d" % (17 + 2 * q, 8 + q))
    if wr: E("ds_write_b64 v3, v[8:9]"); E("ds_write_b64 v14, v[10:11]")
def layernorm(act):
    E("v_add_f32 v24, v16, v17"); E("v_add_f32 v26, v18, v19"); E("v_mul_f32 v25, v16, v16"); E("v_add_f32 v24, v24, v26")
    for q in (17, 18, 19): E("v_fmac_f32 v25, v%d, v%d" % (q, q))
    E("s_mov_b32 exec_hi, 0xffff")
    for q in (20, 21, 22, 23): E("v_add_f32 v24, v24, v%d" % q); E("v_fmac_f32 v25, v%d, v%d" % (q, q))
    E("s_mov_b32 exec_hi, -1"); E("s_nop 1")
    for c in ["row_shr:1 row_mask:0xf bank_mask:0xf bound_ctrl:0", "row_shr:2 row_mask:0xf bank_mask:0xf bound_ctrl:0", "row_shr:4 row_mask:0xf bank_mask:0xf bound_ctrl:0",
              "row_shr:8 row_mask:0xf bank_mask:0xf bound_ctrl:0", "row_bcast:15 row_mask:0xa bank_mask:0xf", "row_bcast:31 row_mask:0xc bank_mask:0xf"]:
        E("v_add_f32_dpp v24, v24, v24 " + c); E("v_add_f32_dpp v25, v25, v25 " + c); E("s_nop 0")
    E("v_readlane_b32 s8, v24, 63"); E("v_readlane_b32 s9, v25, 63")
    E("s_mul_i32 s10, s7, %d" % PITCH); E("s_add_u32 s10, s10, %d" % act)
    E("v_mov_b32 v26, %s" % f32(1 / 448)); E("v_mul_f32 v24, s8, v26"); E("v_mul_f32 v25, s9, v26")
    E("v_fma_f32 v25, -v24, v24, v25"); E("v_max_f32 v25, 0, v25")
    E("v_cvt_pk_bf16_f32 v26, v24, v25"); E("v_lshlrev_b32 v24, 16, v26"); E("v_and_b32 v25, 0xffff0000, v26")
    E("v_add_f32 v25, %s, v25" % f32(1e-5)); bf16r("v25", "v25")
    E("v_sqrt_f32 v25, v25")
    for q in range(8): E("v_sub_f32 v%d, v%d, v24" % (16 + q, 16 + q))
    bf16r("v25", "v25"); E("v_rcp_f32 v25, v25")
    for q in range(4):
        E("v_cvt_pk_bf16_f32 v26, v%d, v%d" % (16 + 2 * q, 17 + 2 * q)); E("v_lshlrev_b32 v%d, 16, v26" % (16 + 2 * q)); E("v_and_b32 v%d, 0xffff0000, v26" % (17 + 2 * q))
    for q in range(8): E("v_mul_f32 v%d, v%d, v25" % (16 + q, 16 + q))
    for q in range(4): E("v_cvt_pk_bf16_f32 v%d, v%d, v%d" % (24 + q, 16 + 2 * q, 17 + 2 * q))
    E("v_lshrrev_b32 v1, 1, v1"); E("v_add_u32 v1, s10, v1"); E("v_lshrrev_b32 v2, 1, v2"); E("v_add_u32 v2, s10, v2")
    E("ds_write_b64 v1, v[24:25]"); E("ds_write_b64 v2, v[26:27]")
def bar(): E("s_waitcnt lgkmcnt(0)"); E("s_barrier")
def dense(T, act, RW=80, sl=(32, 36, 40, 44, 48, 52, 56, 60)):
    n = len(sl)
    E("v_bfe_u32 v1, v0, 2, 2"); E("v_mul_u32_u24 v1, %d, v1" % PITCH); E("v_bfe_u32 v2, v0, 4, 2"); E("v_lshl_add_u32 v1, v2, 4, v1")
    bar()
    for t in range(min(n, T)): E("ds_read_b128 %s, v1 offset:%d" % (vr(sl[t]), act + 64 * t))
    issued = min(n, T)
    for t in range(T):
        E("s_waitcnt lgkmcnt(%d)" % (issued - 1 - t))
        acc = vr(24 + 4 * (t & 1))
        E("v_mfma_f32_16x16x32_bf16 %s, %s, %s, %s" % (acc, vr(sl[t % n]), vr(RW + 4 * t), "0" if t < 2 else acc))
        if issued < T: E("ds_read_b128 %s, v1 offset:%d" % (vr(sl[issued % n]), act + 64 * issued)); issued += 1
    E("v_bfe_u32 v1, v0, 4, 2"); E("v_and_b32 v2, 15, v0"); E("s_nop 6"); E("v_add_f32 v24, v24, v28")
def worker(wave, limit, body):
    l = lab("wk")
    E("s_cmp_lg_u32 s7, %d" % wave); E("s_cbranch_scc1 " + l)
    if limit: E("s_cmp_ge_u32 s13, %d" % limit); E("s_cbranch_scc1 " + l)
    body(); Lb(l)

hdr = open("cdna_kernels/%s.s.ref" % NAME).read().split("\n")
for l in hdr:
    if l.startswith("; @launch"): out.append("; @launch grid=(256,1,1) block=(256,1,1) lds=%d" % LDS_TOTAL)
    elif l.startswith(";"): out.append(l)
    else: break
out += ['.amdgcn_target "amdgcn-amd-amdhsa--gfx950"', ".text", ".globl %s_kernel" % NAME, ".p2align 8",
        ".type %s_kernel,@function" % NAME, "%s_kernel:" % NAME]
E("s_cmp_ge_u32 s2, 256"); E("s_cbranch_scc1 Lend")
if OPT['dbg']: E("s_memrealtime s[100:101]")
def dbgt(n):
    if not OPT['dbg']: return
    l = lab("dbg")
    E("s_cmp_lg_u32 s7, 0"); E("s_cbranch_scc1 " + l)
    E("s_memrealtime s[8:9]"); E("s_waitcnt lgkmcnt(0)"); E("s_sub_u32 s8, s8, s100"); E("v_mov_b32 v6, s8"); E("v_mov_b32 v7, 0")
    E("s_mov_b64 exec, 1"); E("buffer_atomic_umax v6, v7, s[76:79], 0 offen offset:%d sc1" % (4 * n)); E("s_mov_b64 exec, -1")
    Lb(l)
E("s_load_dwordx16 s[16:31], s[0:1], 0"); E("s_load_dwordx8 s[32:39], s[0:1], 64")
E("v_lshrrev_b32 v1, 6, v0"); E("s_and_b32 s4, s2, 7"); E("v_readfirstlane_b32 s7, v1")
E("s_lshr_b32 s13, s2, 3"); E("s_and_b32 s5, s13, 3"); E("s_lshr_b32 s6, s2, 5"); E("s_mov_b32 s3, 0")
E("v_and_b32 v1, 15, v0"); E("v_bfe_u32 v2, v0, 4, 2")
E("v_lshlrev_b32 v4, 9, v1"); E("v_lshl_add_u32 v4, v2, 4, v4")
E("v_lshlrev_b32 v5, 11, v2"); E("v_lshl_add_u32 v5, v1, 4, v5")
E("s_mov_b32 s62, s4")
if OPT['map'] == 1: E("s_and_b32 s62, s13, 7"); E("s_lshr_b32 s5, s2, 6"); E("s_mov_b32 s6, s4")
if OPT['map'] == 2: E("s_add_u32 s62, s4, s6"); E("s_and_b32 s62, s62, 7")
E("s_lshl_b32 s8, s5, 3"); E("s_add_u32 s8, s8, s62"); E("s_lshl_b32 s9, s8, 21")
E("s_lshl_b32 s80, s7, %d" % SW); E("s_lshl_b32 s10, s6, %d" % SS); E("s_add_u32 s80, s80, s10"); E("s_mul_i32 s81, s7, %d" % (NLDSV * 1024)); E("s_add_u32 s81, s81, %d" % (VBASE - 4096))

E("s_lshl_b32 s84, s8, 13"); E("s_lshl_b32 s10, s6, 10"); E("s_add_u32 s84, s84, s10")
E("s_lshl_b32 s85, s8, 7"); E("s_lshl_b32 s10, s6, 3"); E("s_add_u32 s85, s85, s10"); E("s_add_u32 s85, s85, 0x%x" % MLB)
E("s_mov_b32 s86, 0")
E("s_mov_b32 s82, 0x%x" % QB0)
E("s_lshl_b32 s11, s7, 4")
E("s_lshl_b32 s83, s2, 7"); E("s_lshl_b32 s10, s7, 5"); E("s_add_u32 s83, s83, s10")
E("s_sub_u32 s87, s2, 64"); E("s_lshr_b32 s87, s87, 1"); E("s_lshl_b32 s63, s87, 7"); E("s_add_u32 s87, s63, s10")
E("s_bitcmp1_b32 s2, 0"); E("s_cselect_b32 s10, 0, 0x%x" % (AB - AU)); E("s_add_u32 s87, s87, s10"); E("s_add_u32 s87, s87, 0x%x" % AU)
E("s_max_u32 s14, s13, 15"); E("s_sub_u32 s14, s14, 15"); E("s_min_u32 s14, s14, 13")
E("s_cmp_ge_u32 s14, 7"); E("s_cselect_b32 s88, 1, 0"); E("s_mul_i32 s10, s88, 7"); E("s_sub_u32 s14, s14, s10")
E("s_lshl_b32 s89, s14, 6"); E("s_add_u32 s89, s89, s11")
E("s_mov_b32 s12, 0"); E("s_cmp_ge_u32 s13, 8"); E("s_cselect_b32 s12, 1, s12"); E("s_cmp_ge_u32 s13, 15"); E("s_cselect_b32 s12, 2, s12")
E("s_cmp_ge_u32 s13, 29"); E("s_cselect_b32 s12, 3, s12")
E("s_mov_b32 s99, %s" % f32(0.0625 * 1.4426950408889634))
E("s_and_b32 s15, s13, %d" % (OPT['R'] - 1)); E("s_lshl_b32 s15, s15, 14"); E("s_lshl_b32 s10, s7, 12"); E("s_add_u32 s15, s15, s10")
E("s_and_b32 s56, s2, %d" % (OPT['rp'] - 1)); E("s_lshl_b32 s56, s56, 12"); E("s_mov_b32 s97, %s" % f32(2.0 ** -32)); E("s_mov_b32 s96, %s" % f32(2.0 ** 32)); E("s_movk_i32 s95, 0xffe0")
E("s_waitcnt lgkmcnt(0)")
def srd(d, lo, hi, n, add=None):
    if add: E("s_add_u32 s%d, s%d, %s" % (d, lo, add)); E("s_addc_u32 s%d, s%d, 0" % (d + 1, hi))
    else: E("s_mov_b32 s%d, s%d" % (d, lo)); E("s_mov_b32 s%d, s%d" % (d + 1, hi))
    E("s_mov_b32 s%d, 0x%x" % (d + 2, n)); E("s_mov_b32 s%d, 0x00020000" % (d + 3))
srd(40, 18, 19, 1 << 21, "s9"); srd(44, 20, 21, 1 << 21, "s9")
srd(64, 38, 39, 0x400000); srd(68, 16, 17, 3584); srd(72, 34, 35, 3584); srd(76, 36, 37, 256)
stamp()
if OPT['th']:
    E("s_cmp_lt_u32 s13, 22"); E("s_cbranch_scc1 Lth"); E("s_sleep %d" % OPT['th'])
    E("s_cmp_lt_u32 s13, 29"); E("s_cbranch_scc1 Lth"); E("s_sleep %d" % OPT['th'])
    Lb("Lth")
kgroup(OPT['k0'], False)
xaddr()
E("v_lshrrev_b32 v6, 1, v1"); E("v_lshrrev_b32 v7, 1, v2"); E("s_mul_i32 s8, s7, 896")
VM('x', "buffer_load_dwordx2 v[8:9], v6, s[68:71], s8 offen"); VM('x', "buffer_load_dwordx2 v[10:11], v7, s[68:71], s8 offen")
lane("v15"); E("v_lshrrev_b32 v12, 3, v15"); E("v_and_b32 v13, 7, v15")
for m in range(4): E("v_xor_b32 v%d, %d, v13" % (16 + m, 2 * m))
srd(48, 22, 23, 448 * 4096 * 2); E("s_lshl_b32 s92, s2, 7"); E("s_movk_i32 s93, 8192"); E("s_lshl_b32 s10, s7, 7")
E("s_cmp_eq_u32 s12, 0"); E("s_cbranch_scc1 Lwsel")
E("s_bitcmp1_b32 s2, 0"); E("s_cselect_b32 s48, s30, s28"); E("s_cselect_b32 s49, s31, s29"); E("s_mov_b32 s50, 0x%x" % (448 * 1792 * 2))
E("s_mov_b32 s92, s63"); E("s_movk_i32 s93, 3584")
E("s_cmp_eq_u32 s12, 1"); E("s_cbranch_scc1 Lwsel")
E("s_movk_i32 s93, 896"); E("s_and_b32 s10, s7, 1"); E("s_lshl_b32 s10, s10, 7")
E("s_mov_b32 s48, s24"); E("s_mov_b32 s49, s25"); E("s_mov_b32 s50, 0x%x" % (4096 * 448 * 2))
E("s_lshl_b32 s8, s4, 1"); E("s_add_u32 s8, s8, s88"); E("s_mul_i32 s92, s8, %d" % (256 * 896)); E("s_lshl_b32 s8, s14, 7"); E("s_add_u32 s92, s92, s8")
E("s_cmp_eq_u32 s12, 3"); E("s_cselect_b32 s50, 0, s50")
E("s_cmp_lt_u32 s7, 2"); E("s_cbranch_scc1 Lwsel")
E("s_mov_b32 s48, s32"); E("s_mov_b32 s49, s33"); E("s_add_u32 s50, s4, 1"); E("s_mul_i32 s50, s50, %d" % (224 * 896))
E("s_cmp_lg_u32 s88, 0"); E("s_cselect_b32 s50, 0, s50")
E("s_mul_i32 s92, s4, %d" % (224 * 896)); E("s_add_u32 s92, s92, s8")
Lb("Lwsel")
E("s_mov_b32 s52, s48"); E("s_mov_b32 s53, s49"); E("s_lshl_b32 s94, s93, 3")
Lb("Lwsel2")
E("s_mov_b32 s54, s50"); E("s_mov_b32 s55, 0x00020000")
E("s_mul_i32 s10, s10, s93"); E("s_add_u32 s92, s92, s10"); E("s_add_u32 s94, s94, s92")
E("v_mul_lo_u32 v12, v12, s93"); E("s_lshl_b32 s93, s93, 4")
for m in range(4): E("v_lshl_add_u32 v%d, v%d, 4, v12" % (16 + m, 16 + m))
E("s_lshl_b32 s11, s7, 14"); E("s_add_u32 s11, s11, %d" % VBASE)
for f in range(8):
    E("s_add_u32 m0, s11, %d" % (2048 * f)); E("s_nop 0")
    VM('w', "buffer_load_dwordx4 v%d, s[48:51], s92 offen%s lds" % (16 + (2 * f) % 4, WNT))
    E("s_add_u32 m0, s11, %d" % (2048 * f + 1024)); E("s_nop 0")
    VM('w', "buffer_load_dwordx4 v%d, s[52:55], s94 offen%s lds" % (16 + (2 * f + 1) % 4, WNT))
    if f < 7: E("s_add_u32 s92, s92, s93"); E("s_add_u32 s94, s94, s93")
    if f == 3:
        E("s_and_b32 s8, s2, 0x60"); E("s_cmp_eq_u32 s8, 0x60"); E("s_cselect_b32 s8, 0, -1")
        for r in range(4): E("v_mov_b32 v%d, s8" % (24 + r))
        E("v_lshlrev_b32 v7, 4, v0"); E("s_lshl_b32 s8, s2, 12")
        VM('clr', "buffer_store_dwordx4 v[24:27], v7, s[64:67], s8 offen %s" % ["sc1", "sc1 nt", "sc0 sc1", "sc0 sc1 nt"][OPT['cnt']])
        E("s_cmp_lg_u32 s12, 0"); E("s_cbranch_scc1 Lnoclrq")
        E("v_bfe_u32 v12, v0, 4, 2"); E("v_and_b32 v13, 15, v0"); E("v_lshlrev_b32 v12, 13, v12"); E("v_lshl_add_u32 v12, v13, 1, v12"); E("s_add_u32 s8, s82, s83")
        E("s_mov_b32 exec_lo, 0x55555555"); E("s_mov_b32 exec_hi, 0x55555555")
        E("buffer_store_dword v24, v12, s[64:67], s8 offen sc1"); E("s_mov_b64 exec, -1")
        Lb("Lnoclrq")
def qaddr(): E("v_lshlrev_b32 v1, 13, v1"); E("v_lshl_add_u32 v1, v2, 1, v1"); E("s_add_u32 s8, s82, s83"); E("s_mov_b32 exec_lo, 0x55555555"); E("s_mov_b32 exec_hi, 0x55555555")
kgroup(OPT['k1'], False)
stamp()
E("v_mov_b32 v6, 0"); E("ds_write_b32 v6, v6 offset:%d" % QF)
wait_tag('x')
xunpack()
E("s_waitcnt lgkmcnt(0)")
def trblock(isq, ka, kb):
    kgroup(ka, False)
    E("v_bfe_u32 v12, v0, 4, 2"); E("v_bfe_u32 v13, v0, 2, 2"); E("v_xor_b32 v7, s7, v12"); E("v_and_b32 v15, 3, v0")
    E("v_lshl_add_u32 v6, v12, 3, v13"); E("v_lshlrev_b32 v6, 7, v6"); E("v_lshl_add_u32 v6, v7, 5, v6"); E("v_lshl_add_u32 v6, v15, 3, v6"); E("v_add_u32 v16, 512, v6")
    E("v_add_u32 v6, %d, v6" % VBASE); E("v_add_u32 v16, %d, v16" % VBASE)
    wait_tag('w')
    E("s_barrier")
    worker(0, 0, sig)
    for f in range(16):
        E("ds_read_b64_tr_b16 %s, v6 offset:%d" % (vr(RW + 4 * f, 2), f * 4096)); E("ds_read_b64_tr_b16 %s, v16 offset:%d" % (vr(RW + 4 * f + 2, 2), f * 4096))
        if f % 4 == 3 and f < 15: E("s_waitcnt lgkmcnt(4)")
    kgroup(kb, False)
    if not isq: bar()
def sig():
    E("s_mov_b64 exec, 1"); E("s_add_u32 s9, s4, 8"); E("s_cmp_eq_u32 s12, 0"); E("s_cselect_b32 s9, s13, s9"); E("s_lshl_b32 s9, s9, 4"); E("v_mov_b32 v25, 1"); E("v_mov_b32 v26, 0")
    E("buffer_atomic_add v25, v26, s[76:79], s9 offen sc1"); E("s_mov_b64 exec, -1")
def qbody(r=0):
    dense(14, ACT0)
    E("s_nop 1"); E("v_mov_b32_dpp v25, v24 quad_perm:[1,0,3,2] row_mask:0xf bank_mask:0xf")
    E("v_cvt_pk_bf16_f32 v24, v24, v25"); E("v_min_u32 v24, -2, v24"); qaddr()
    E("buffer_store_dword v24, v1, s[64:67], s8 offen sc1")
    if r: E("s_add_u32 s8, s8, 0x%x" % LSTEP); E("buffer_store_dword v24, v1, s[64:67], s8 offen sc1")
    E("s_mov_b64 exec, -1")
E("s_cmp_lg_u32 s12, 0"); E("s_cbranch_scc1 Lpro2")
sv = (list(vm), kpos[0])
layernorm(ACT0)
trblock(True, OPT['k2'], OPT['k3'])
qbody()
stamp(); stamp_n[0] -= OPT['stamps']
kgroup(OPT['X'] - kpos[0], False)
E("s_branch Lpro3")
Lb("Lpro2")
vm[:] = sv[0]; kpos[0] = sv[1]
trblock(False, OPT['X'] - 4 - kpos[0], 4)
stamp()
Lb("Lpro3")
dbgt(3)
Lb("Lloop")

lane("v15"); E("v_lshlrev_b32 v1, 4, v15"); E("v_add_u32 v3, s81, v1")
E("v_bfe_u32 v2, v0, 3, 1"); E("v_lshlrev_b32 v2, 9, v2"); E("v_bfe_u32 v6, v0, 4, 2"); E("v_lshl_add_u32 v2, v6, 4, v2")
E("v_and_b32 v6, 1, v0"); E("v_cmp_eq_u32 vcc, 0, v6"); E("v_mov_b32 v7, 0x01000c0c"); E("v_mov_b32 v12, 0x0c0c0100"); E("v_cndmask_b32 v7, v7, v12, vcc")
E("v_bfe_u32 v6, v0, 1, 2"); E("v_mov_b32 v12, 0x0c0c0c0c"); E("s_mov_b32 s91, 0x02020202")
for r in range(4): E("v_cmp_eq_u32 vcc, %d, v6" % r); E("s_nop 1"); E("v_cndmask_b32 v%d, v12, v7, vcc" % (8 + r))
E("s_lshl_b32 s8, s5, 13"); E("s_lshl_b32 s9, s62, 10"); E("s_add_u32 s90, s8, s9"); E("s_add_u32 s90, s90, s82")
qload = "buffer_load_dwordx4 v[16:19], v1, s[64:67], s90 offen sc1"
E("s_cmp_lg_u32 s3, 0"); E("s_cbranch_scc1 Lqpoll1")
E("v_mov_b32 v6, s62"); E("v_lshlrev_b32 v6, 4, v6")
pos = kpos[0]
mark = {}
def wmark(t): E("s_waitcnt vmcnt(%d)" % min(63, len(vm) - mark[t]))
while pos < 64 + OPT['vpre']:
    if pos < 64: kload(pos); kpos[0] += 1
    else: vload(pos - 64); vpos[0] += 1
    pos += 1
    if pos == OPT['p1']:
        worker(0, 0, lambda: E("buffer_load_dword v7, v6, s[76:79], 0 offen sc1")); mark['cnt'] = len(vm)
    if pos == OPT['pq']:
        def f():
            wmark('cnt')
            E("s_mov_b32 s98, 0"); Lb("Lcnt")
            E("v_cmp_gt_u32 vcc, 8, v7"); E("s_cbranch_vccz Lcntd")
            E("buffer_load_dword v7, v6, s[76:79], 0 offen sc1"); E("s_waitcnt vmcnt(0)")
            E("s_add_u32 s98, s98, 1"); E("s_cmp_lt_u32 s98, 0x8000"); E("s_cbranch_scc1 Lcnt")
            Lb("Lcntd")
            E(qload)
        worker(0, 0, f); mark['q'] = len(vm)
    if pos == OPT['pw']:
        def f():
            wmark('q')
            check(range(16, 20))
            E("s_cbranch_vccz Lattn")
            poll([qload], lambda: check(range(16, 20)))
            Lb("Lattn")
            E("ds_write_b128 v1, v[16:19] offset:%d" % QL)
            E("v_mov_b32 v6, 0"); E("v_mov_b32 v7, 1")
            E("s_waitcnt lgkmcnt(0)")
            E("ds_write_b32 v6, v7 offset:%d" % QF)
        worker(0, 0, f)
E("v_mov_b32 v6, 0"); E("s_mov_b32 s98, 0"); Lb("Lqf")
E("ds_read_b32 v7, v6 offset:%d" % QF); E("s_waitcnt lgkmcnt(0)")
E("v_cmp_eq_u32 vcc, 0, v7"); E("s_cbranch_vccz Lqfd")
E("s_sleep 2"); E("s_add_u32 s98, s98, 1"); E("s_cmp_lt_u32 s98, 0x400000"); E("s_cbranch_scc1 Lqf")
Lb("Lqfd")
def round_tile(T, first):
    s = 32 + 4 * T
    return ["v_cvt_pk_bf16_f32 v6, v%d, v%d" % (s, s + 1), "v_cvt_pk_bf16_f32 v7, v%d, v%d" % (s + 2, s + 3),
            "v_lshlrev_b32 v%d, 16, v6" % s, "v_and_b32 v%d, 0xffff0000, v6" % (s + 1),
            "v_lshlrev_b32 v%d, 16, v7" % (s + 2), "v_and_b32 v%d, 0xffff0000, v7" % (s + 3),
            ("v_max_f32 v12, v%d, v%d" % (s, s + 1)) if first else ("v_max3_f32 v12, v12, v%d, v%d" % (s, s + 1)),
            "v_max3_f32 v12, v12, v%d, v%d" % (s + 2, s + 3)]
def FR(t): return vr(16 + 4 * t) if t < 4 else vr(64 + 4 * (t - 4))
HS = [1, 2, 13, 15]
def eflag():
    if not OPT['ef']: return
    l = lab("ef"); E("s_cmp_lg_u32 s7, 0"); E("s_cbranch_scc1 " + l)
    E("s_sub_u32 s8, s85, 0x%x" % MLB); E("s_lshr_b32 s9, s8, 7"); E("s_lshl_b32 s9, s9, 5"); E("s_lshl_b32 s8, s6, 2"); E("s_add_u32 s8, s8, s9"); E("s_add_u32 s8, s8, s86"); E("s_add_u32 s8, s8, 0x%x" % FLG)
    E("v_mov_b32 v4, 0"); E("s_mov_b64 exec, 1"); E("buffer_store_dword v4, v4, s[64:67], s8 offen sc1"); E("s_mov_b64 exec, -1")
    Lb(l)
def core(L0):
    for t in range(8): E("ds_read_b128 %s, v2 offset:%d" % (FR(t), QL + 64 * t))
    for G in range(4):
        if L0:
            vgroup(4)
            E("s_waitcnt vmcnt(%d)" % min(63, len(vm) - 1 - [j for j, x in enumerate(vm) if x == 'K'][16 * G + 15]))
        if not L0 and G == 4 - (OPT['nq'] + 1) // 2: E("s_waitcnt vmcnt(0)")
        if G: extra = [None] * 3 + round_tile(2 * G - 2, G == 1) + round_tile(2 * G - 1, False)
        else:
            extra = []
            for c in range(4): extra += ["v_lshrrev_b32 v6, 2, v%d" % (8 + c), "v_bfi_b32 v6, v6, 0, s91", "v_or_b32 v%d, v6, v%d" % (HS[c], 8 + c)]
        for t in range(8):
            if G == 0: E("s_waitcnt lgkmcnt(%d)" % (7 - t))
            for d in range(2):
                T = 2 * G + d
                E("v_mfma_f32_16x16x32_bf16 %s, %s, %s, %s" % (vr(32 + 4 * T), ar(32 * T + 4 * t), FR(t), "0" if t == 0 else vr(32 + 4 * T)))
                for _ in range(2 if t >= 5 else 1):
                    if extra:
                        x = extra.pop(0)
                        if x: E(x)
        assert not extra
    if OPT['fine'] and not L0: E("s_memrealtime s[56:57]")
    lu = [u for u in range(64) if inlds(u)]
    nis = [0]
    def ldsread():
        if nis[0] >= len(lu): return
        u = lu[nis[0]]
        if L0: wait_tag('V%d' % u)
        E("ds_read_b128 %s, v3 offset:%d" % (vr(64 + 4 * (nis[0] % 4)), 4096 + lslot(u) * 1024)); nis[0] += 1
    for _ in range(4): ldsread()
    E("s_nop 3")
    for x in round_tile(6, False): E(x)
    for x in round_tile(7, False): E(x)
    E("v_mov_b32 v6, v12"); E("s_nop 1"); E("v_permlane16_swap_b32 v12, v6"); E("s_nop 1"); E("v_max_f32 v12, v12, v6")
    E("v_mov_b32 v6, v12"); E("s_nop 1"); E("v_permlane32_swap_b32 v12, v6"); E("v_mov_b32 v7, 0"); E("s_nop 0"); E("v_max_f32 v12, v12, v6")
    E("v_mul_f32 v14, s99, v12"); E("v_mov_b32 v6, 0")
    def soft(T):
        s = 32 + 4 * T
        fm = lambda a: "v_pk_fma_f32 %s, %s, s[98:99], v[14:15] op_sel:[0,1,0] op_sel_hi:[1,1,0] neg_lo:[0,0,1] neg_hi:[0,0,1]" % (vr(a, 2), vr(a, 2))
        ex = lambda a: "v_exp_f32 v%d, v%d" % (a, a)
        ad = lambda a: "v_pk_add_f32 v[6:7], v[6:7], %s" % vr(a, 2)
        return [[fm(s), fm(s + 2), ex(s), ex(s + 1)], [ex(s + 2), ex(s + 3), ad(s), "v_cvt_pk_bf16_f32 v%d, v%d, v%d" % (s, s, s + 1)],
                ["v_cvt_pk_bf16_f32 v%d, v%d, v%d" % (s + 1, s + 2, s + 3)], [ad(s + 2)]]
    def bmk(k):
        src = 32 + 4 * (k // 4) + ((k % 4) >> 1)
        return ["v_perm_b32 v%d, v%d, v%d, v%d" % (16 + 4 * (k & 1) + c, src, src, HS[c] if k & 1 else 8 + c) for c in range(4)]
    for g in soft(0):
        for x in g: E(x)
    for x in bmk(0): E(x)
    E("s_nop 0")
    if OPT['fine'] and not L0: E("s_memrealtime s[58:59]")
    for k in range(32):
        b = 16 + 4 * (k & 1)
        if L0: vgroup(2)
        if not L0 and k == OPT['kf']: eflag()
        if L0 and k == OPT['late']:
            worker(0, 0, lambda: (E("v_and_b32 v4, 15, v0"), E("v_lshlrev_b32 v4, 4, v4"), E("buffer_load_dword v4, v4, s[76:79], 0 offen sc1"))); mark['cnt2'] = len(vm)
        for hf in range(2):
            u = 2 * k + hf
            if inlds(u):
                n = lu.index(u)
                E("s_waitcnt lgkmcnt(%d)" % (nis[0] - 1 - n)); A = vr(64 + 4 * (n % 4))
            else:
                if L0: wait_tag('V%d' % u)
                A = vr(144 + 4 * (k - 4))
            acc = vr(24 + 4 * hf)
            E("v_mfma_f32_16x16x32_bf16 %s, %s, %s, %s" % (acc, A, vr(b), "0" if k == 0 else acc))
            if inlds(u): ldsread()
            if hf == 0:
                if k < 31:
                    for x in bmk(k + 1): E(x)
            elif k < 28:
                for x in soft(k // 4 + 1)[k % 4]: E(x)
    E("v_add_f32 v13, v6, v7")
    if OPT['fine'] and not L0: E("s_memrealtime s[60:61]")
    if L0:
        E("s_cmp_lg_u32 s7, 0"); E("s_cbranch_scc1 Lcnt2d")
        wmark('cnt2')
        E("v_and_b32 v6, 15, v0"); E("v_cmp_gt_u32 vcc, 8, v6"); E("v_mov_b32 v7, 24"); E("v_lshlrev_b32 v6, 4, v6"); E("v_cndmask_b32 v7, v7, 8, vcc")
        E("s_mov_b32 s98, 0"); Lb("Lcnt2")
        E("v_cmp_gt_u32 vcc, v7, v4"); E("s_cbranch_vccz Lcnt2d")
        E("buffer_load_dword v4, v6, s[76:79], 0 offen sc1"); E("s_waitcnt vmcnt(0)")
        E("s_add_u32 s98, s98, 1"); E("s_cmp_lt_u32 s98, 0x8000"); E("s_cbranch_scc1 Lcnt2")
        Lb("Lcnt2d")
stamp(); stamp_n[0] -= OPT['stamps']
core(True)
E("s_barrier")
eflag()
E("s_branch Lepi")
Lb("Lqpoll1")
if OPT['qr']: E("s_and_b32 s8, s2, 1"); E("s_mul_i32 s8, s8, 0x%x" % LSTEP); E("s_add_u32 s90, s90, s8")
def qtrig():
    E("s_cmp_eq_u32 s12, 0"); E("s_cbranch_scc1 Lnqt")
    E("s_lshr_b32 s8, s2, 3"); E("s_and_b32 s8, s8, 31"); E("s_min_u32 s8, s8, 27"); E("s_lshl_b32 s8, s8, 7"); E("s_add_u32 s8, s8, s56"); E("s_add_u32 s57, s8, 0x%x" % XV2); E("v_mov_b32 v59, 0")
    ppoll(1, lambda i: ["buffer_load_ushort v60, v59, s[64:67], s57 offen sc1"], lambda i: E("v_cmp_eq_u16 vcc, -1, v60"), lambda i: None)
    Lb("Lnqt")
if OPT['qt']: worker(0, 0, qtrig)
worker(0, 0, lambda: ppoll(OPT['nq'], lambda i: ["buffer_load_dwordx4 %s, v1, s[64:67], s90 offen sc1" % vr(60 - 4 * i)],
                           lambda i: check(range(60 - 4 * i, 64 - 4 * i)), lambda i: E("ds_write_b128 v1, %s offset:%d" % (vr(60 - 4 * i), QL)), 0, OPT['zq']))
bar()
stamp()
core(False)
Lb("Lepi")
E("v_mov_b32 v6, v13"); E("s_nop 1"); E("v_permlane16_swap_b32 v13, v6"); E("s_nop 1"); E("v_add_f32 v13, v13, v6")
E("v_mov_b32 v6, v13"); E("s_nop 1"); E("v_permlane32_swap_b32 v13, v6"); E("s_nop 1"); E("v_add_f32 v13, v13, v6")
E("v_bfe_u32 v6, v0, 3, 1"); E("v_lshlrev_b32 v7, 10, v6"); E("v_bfe_u32 v1, v0, 4, 2"); E("v_lshl_add_u32 v7, v1, 5, v7")
E("v_and_b32 v1, 7, v0"); E("v_lshl_add_u32 v7, v1, 2, v7"); E("s_lshl_b32 s8, s7, 11"); E("v_add_u32 v7, s8, v7")
E("s_lshl_b32 s8, s7, 4"); E("v_lshl_add_u32 v6, v6, 3, s8")
for hf in range(2):
    for r in range(4): E("ds_write_b32 v7, v%d offset:%d" % (24 + 4 * hf + r, OM + (r * 2 + hf) * 128))
E("s_mov_b64 exec, 0x101"); E("ds_write_b64 v6, v[12:13] offset:%d" % ML); E("s_mov_b64 exec, -1")
E("v_lshlrev_b32 v6, 2, v0"); E("v_lshrrev_b32 v2, 7, v0"); E("v_lshlrev_b32 v3, 3, v2")
E("v_lshlrev_b32 v1, 10, v2"); E("v_bfe_u32 v7, v0, 6, 1"); E("v_lshl_add_u32 v1, v7, 7, v1"); E("v_bfe_u32 v7, v0, 2, 2"); E("v_lshl_add_u32 v1, v7, 8, v1")
E("v_bfe_u32 v7, v0, 4, 2"); E("v_lshl_add_u32 v1, v7, 5, v1"); E("v_and_b32 v7, 3, v0"); E("v_lshl_add_u32 v1, v7, 3, v1")
E("v_lshlrev_b32 v7, 6, v2"); E("s_add_u32 s8, s84, s86"); E("s_add_u32 s9, s85, s86")
bar()
for w in range(4): E("ds_read_b64 %s, v3 offset:%d" % (vr(40 + 2 * w, 2), ML + 16 * w))
for w in range(4): E("ds_read_b64 %s, v1 offset:%d" % (vr(32 + 2 * w, 2), OM + 2048 * w))
E("s_waitcnt lgkmcnt(4)")
E("v_max_f32 v26, v40, v42"); E("v_max3_f32 v26, v26, v44, v46")
for w in range(4): E("v_sub_f32 v%d, v%d, v26" % (40 + 2 * w, 40 + 2 * w)); E("v_mul_f32 v%d, s99, v%d" % (40 + 2 * w, 40 + 2 * w))
for w in range(4): E("v_exp_f32 v%d, v%d" % (40 + 2 * w, 40 + 2 * w))
E("s_waitcnt lgkmcnt(0)")
E("v_mul_f32 v24, v40, v32"); E("v_mul_f32 v25, v40, v33"); E("v_mul_f32 v27, v40, v41")
for w in range(1, 4):
    E("v_fmac_f32 v24, v%d, v%d" % (40 + 2 * w, 32 + 2 * w)); E("v_fmac_f32 v25, v%d, v%d" % (40 + 2 * w, 33 + 2 * w)); E("v_fmac_f32 v27, v%d, v%d" % (40 + 2 * w, 41 + 2 * w))
E("v_cvt_pk_bf16_f32 v24, v24, v25"); E("v_min_u32 v24, -2, v24"); E("v_min_u32 v26, -2, v26"); E("v_min_u32 v27, -2, v27")
E("buffer_store_dword v24, v6, s[64:67], s8 offen sc1")
E("s_and_b32 s10, s7, 1"); E("s_cmp_lg_u32 s10, 0"); E("s_cbranch_scc1 Lnoml")
E("s_mov_b64 exec, 1"); E("buffer_store_dwordx2 v[26:27], v7, s[64:67], s9 offen sc1"); E("s_mov_b64 exec, -1")
Lb("Lnoml")
stamp()
if OPT['fine']:
    for i in range(3):
        l = lab("fs"); E("s_cmp_lg_u32 s7, 0"); E("s_cbranch_scc1 " + l); E("s_cmp_lg_u32 s3, 1"); E("s_cbranch_scc1 " + l)
        E("v_mov_b32 v6, s%d" % (56 + 2 * i)); E("s_lshl_b32 s9, s2, 8"); E("s_add_u32 s9, s9, 0x%x" % (STP + 128 + (20 + i) * 4)); E("v_mov_b32 v7, 0")
        E("s_mov_b64 exec, 1"); E("buffer_store_dword v6, v7, s[64:67], s9 offen"); E("s_mov_b64 exec, -1"); Lb(l)

if OPT['dbg']:
    E("s_cmp_lg_u32 s3, 0"); E("s_cbranch_scc1 Ldbg1"); dbgt(1); Lb("Ldbg1")
E("s_cmp_eq_u32 s12, 1"); E("s_cbranch_scc1 Lg")
E("s_cmp_eq_u32 s12, 0"); E("s_cbranch_scc1 Lq")
E("s_cmp_eq_u32 s12, 3"); E("s_cbranch_scc1 Lf")
lane("v15"); E("v_lshlrev_b32 v1, 3, v15"); E("v_and_b32 v2, 56, v1"); E("s_mul_i32 s8, s7, %d" % PITCH); E("v_add_u32 v3, s8, v1")
E("s_lshl_b32 s8, s7, 3"); E("s_add_u32 s8, s8, s4"); E("s_lshl_b32 s9, s8, 13"); E("s_add_u32 s9, s9, s86"); E("s_lshl_b32 s10, s88, 9"); E("s_add_u32 s9, s9, s10"); E("s_add_u32 s10, s9, 4096")
E("s_lshl_b32 s11, s8, 7"); E("s_add_u32 s11, s11, s86"); E("s_add_u32 s11, s11, 0x%x" % MLB); E("s_lshl_b32 s8, s88, 6"); E("s_add_u32 s11, s11, s8")
OBB = [44, 62]
if OPT['la']:
    E("v_bfe_u32 v72, v0, 4, 2"); E("v_and_b32 v73, 15, v0"); E("v_add_u32 v73, s89, v73"); E("v_mul_u32_u24 v72, 896, v72"); E("v_lshl_add_u32 v73, v73, 1, v72")
    E("s_cmp_eq_u32 s3, 0"); E("s_cbranch_scc1 Lra"); E("s_add_u32 s8, s56, 0x%x" % XV2)
    E("buffer_load_ushort v72, v73, s[64:67], s8 offen sc1"); E("s_branch Lrb")
    Lb("Lra"); E("buffer_load_ushort v72, v73, s[68:71], 0 offen"); Lb("Lrb")
def obl(i): return ["buffer_load_dwordx2 %s, v2, s[64:67], s11 offen sc1" % vr(OBB[i] + 16, 2)] + \
    ["buffer_load_dwordx2 %s, v1, s[64:67], %s offen offset:%d sc1" % (vr(OBB[i] + 2 * s, 2), "s9" if s < 4 else "s10", (s % 4) * 1024) for s in range(8)]
D3 = ["quad_perm:[1,0,3,2] row_mask:0xf bank_mask:0xf", "quad_perm:[2,3,0,1] row_mask:0xf bank_mask:0xf", "row_half_mirror row_mask:0xf bank_mask:0xf"]
def obs(i):
    o = OBB[i]
    ecount(XS1)
    def unp(s):
        for q in range(2): E("v_lshlrev_b32 v%d, 16, v%d" % (16 + 2 * s + q, o + 2 * s + q)); E("v_and_b32 v%d, 0xffff0000, v%d" % (o + 2 * s + q, o + 2 * s + q))
    E("v_max_f32_dpp v6, v%d, v%d " % (o + 16, o + 16) + D3[0]); unp(0)
    E("v_max_f32_dpp v6, v6, v6 " + D3[1]); unp(1)
    E("v_max_f32_dpp v6, v6, v6 " + D3[2]); unp(2)
    E("v_sub_f32 v6, v%d, v6" % (o + 16)); E("v_mul_f32 v6, s99, v6"); E("v_exp_f32 v6, v6"); unp(3)
    E("v_mul_f32 v7, v6, v%d" % (o + 17)); unp(4)
    E("v_add_f32_dpp v7, v7, v7 " + D3[0]); unp(5)
    E("v_add_f32_dpp v7, v7, v7 " + D3[1]); unp(6)
    E("v_add_f32_dpp v7, v7, v7 " + D3[2]); unp(7)
    for s in range(8): E("v_readlane_b32 s%d, v6, %d" % (16 + s, s))
    E("v_rcp_f32 v7, v7")
    for s in range(8):
        for q in range(4):
            src = (16 if q % 2 == 0 else o) + 2 * s + q // 2
            if s == 0: E("v_mul_f32 v%d, s16, v%d" % (32 + q, src))
            else: E("v_fmac_f32 v%d, s%d, v%d" % (32 + q, 16 + s, src))
if OPT['ef']:
    E("s_lshl_b32 s8, s7, 3"); E("s_add_u32 s8, s8, s4"); E("s_lshl_b32 s8, s8, 5"); E("s_add_u32 s8, s8, s86"); E("s_add_u32 s16, s8, 0x%x" % FLG); E("v_lshrrev_b32 v6, 1, v2")
    ppoll(1, lambda i: ["buffer_load_dword v7, v6, s[64:67], s16 offen sc1"], lambda i: E("v_cmp_eq_u32 vcc, -1, v7"), lambda i: None)
    E("s_cmp_eq_u32 s3, 0"); E("s_cbranch_scc1 Lnodw")
    if OPT['dw']: E("s_sleep %d" % OPT['dw'])
    Lb("Lnodw")
    if OPT['dw0']: E("s_sleep %d" % OPT['dw0'])
def ecount(base):
    if not OPT['ec']: return
    E("s_lshl_b32 s8, s14, 7"); E("s_add_u32 s8, s8, s15"); E("s_add_u32 s8, s8, s86"); E("s_add_u32 s8, s8, 0x%x" % (base + 0x4000))
    E("v_mov_b32 v4, 1"); E("v_mov_b32 v5, 0"); E("s_mov_b64 exec, 1"); E("buffer_atomic_add v4, v5, s[64:67], s8 offen sc1"); E("s_mov_b64 exec, -1")
ppoll(OPT['no'], obl, lambda i: check(range(OBB[i], OBB[i] + 18)), obs, OPT['io'], OPT['zo'])
for q in range(4): E("v_mul_f32 v%d, v%d, v7" % (32 + q, 32 + q))
for q in range(2): E("v_cvt_pk_bf16_f32 v%d, v%d, v%d" % (36 + q, 32 + 2 * q, 33 + 2 * q))
E("ds_write_b64 v3, v[36:37] offset:%d" % ACT1)
stamp()
def dec1(lo, t):
    E("v_lshrrev_b32 v%d, 31, v%d" % (t, lo)); E("v_cvt_f32_i32 v%d, v%d" % (lo, lo)); E("v_add_u32 v%d, v%d, v%d" % (t, t, lo + 1))
    E("v_cvt_f32_i32 v%d, v%d" % (t, t)); E("v_fmac_f32 v%d, s97, v%d" % (t, lo))
def addx(t): bf16r("v%d" % t, "v%d" % t); E("v_add_f32 v150, v%d, v150" % t); bf16r("v150", "v150")
def xatomic(base):
    E("v_rndne_f32 v25, v24"); E("v_sub_f32 v26, v24, v25"); E("v_cvt_i32_f32 v25, v25"); E("v_mul_f32 v26, s96, v26"); E("v_cvt_i32_f32 v24, v26")
    E("v_lshlrev_b32 v1, 12, v1"); E("v_lshl_add_u32 v1, v2, 3, v1")
    E("v_ashrrev_i32 v26, 31, v24"); E("v_add_u32 v25, v25, v26"); E("v_and_or_b32 v24, v24, s95, 1")
    E("s_lshl_b32 s8, s89, 3"); E("s_add_u32 s8, s8, s86"); E("s_add_u32 s8, s8, 0x%x" % base)
    if OPT['la']:
        P = 16 if base == XS1 else 8; l = lab("xa")
        E("v_mov_b32 v74, v24"); E("v_mov_b32 v75, v25")
        E("buffer_atomic_add_x2 v[24:25], v1, s[64:67], s8 offen sc0 sc1")
        E("s_mov_b32 s98, 0"); E("s_add_u32 s8, s86, 0x%x" % (XV1 if base == XS1 else XV2))
        Lb(l + "r"); E("s_waitcnt vmcnt(0)")
        if base == XS2:
            E("v_cmp_eq_u16 vcc, -1, v72"); E("s_cbranch_vccz " + l + "k")
            E("buffer_load_ushort v72, v73, s[64:67], s11 offen sc1")
            E("s_add_u32 s98, s98, 1"); E("s_cmp_lt_u32 s98, 0x4000"); E("s_cbranch_scc1 " + l + "r"); E("s_waitcnt vmcnt(0)")
            Lb(l + "k")
        E("v_add_co_u32 v24, vcc, v24, v74"); E("v_addc_co_u32 v25, vcc, v25, v75, vcc")
        E("v_and_b32 v76, %d, v24" % P); E("v_lshlrev_b32 v72, 16, v72")
        dec1(24, 77); E("v_cmp_ne_u32 vcc, 0, v76")
        bf16r("v77", "v77"); E("v_add_f32 v72, v77, v72"); E("v_cvt_pk_bf16_f32 v72, v72, v72")
        E("s_mov_b64 exec, vcc")
        if base == XS2:
            E("s_cmp_eq_u32 s3, 0"); E("s_cbranch_scc1 " + l + "p")
            E("buffer_store_short v72, v73, s[72:75], 0 offen"); E("s_branch " + l + "e"); Lb(l + "p")
        E("v_min_u16 v72, -2, v72")
        for r in range(OPT['rp']):
            if r: E("s_add_u32 s8, s8, 0x1000")
            E("buffer_store_short v72, v73, s[64:67], s8 offen sc1")
        Lb(l + "e"); E("s_mov_b64 exec, -1")
        return
    if base == XS2 and OPT['fin']:
        E("s_cmp_eq_u32 s3, 0"); E("s_cbranch_scc1 Lplain")
        E("v_mov_b32 v148, v24"); E("v_mov_b32 v149, v25")
        E("buffer_atomic_add_x2 v[24:25], v1, s[64:67], s8 offen sc0 sc1")
        E("s_mov_b32 s98, 0")
        Lb("Lre"); E("s_waitcnt vmcnt(0)")
        E("v_and_b32 v156, 16, v152"); E("v_cmp_eq_u32 vcc, 0, v156"); E("s_cbranch_vccz Lok")
        E("buffer_load_dwordx2 v[152:153], v146, s[64:67], s11 offen sc1")
        E("s_add_u32 s98, s98, 1"); E("s_cmp_lt_u32 s98, 0x4000"); E("s_cbranch_scc1 Lre"); E("s_waitcnt vmcnt(0)")
        Lb("Lok")
        E("v_add_co_u32 v24, vcc, v24, v148"); E("v_addc_co_u32 v25, vcc, v25, v149, vcc")
        E("v_and_b32 v158, 8, v24")
        dec1(152, 156); dec1(24, 157); addx(156)
        E("v_cmp_ne_u32 vcc, 0, v158")
        bf16r("v157", "v157"); E("v_add_f32 v150, v150, v157"); E("v_cvt_pk_bf16_f32 v150, v150, v150")
        E("s_mov_b64 exec, vcc")
        E("buffer_store_short v150, v147, s[72:75], 0 offen")
        E("s_mov_b64 exec, -1")
        stamp()
        E("s_branch Lend")
        Lb("Lplain")
    for r in range(OPT['R']):
        if r: E("s_add_u32 s8, s8, 0x4000")
        E("buffer_atomic_add_x2 v[24:25], v1, s[64:67], s8 offen sc1")
dense(8, ACT1, RW, (8, 12, 16, 20, 32, 36, 40)); xatomic(XS1)
stamp()
E("s_cmp_lg_u32 s88, 0"); E("s_cbranch_scc1 Lnexts")
if OPT['la']: E("s_add_u32 s11, s86, 0x%x" % XV1); E("s_add_u32 s11, s11, s56")
elif OPT['fin']:
    E("s_cmp_eq_u32 s3, 0"); E("s_cbranch_scc1 Lfa")
    E("v_bfe_u32 v144, v0, 4, 2"); E("v_and_b32 v145, 15, v0"); E("v_add_u32 v145, s89, v145")
    E("v_lshlrev_b32 v146, 12, v144"); E("v_lshl_add_u32 v146, v145, 3, v146")
    E("v_mul_u32_u24 v147, 896, v144"); E("v_lshl_add_u32 v147, v145, 1, v147")
    E("s_mov_b32 s8, 0x%x" % XS1); E("buffer_load_dwordx2 v[152:153], v146, s[64:67], s8 offen sc1")
    E("s_mov_b32 s9, 0x%x" % XS2); E("buffer_load_dwordx2 v[154:155], v146, s[64:67], s9 offen sc1")
    E("buffer_load_ushort v150, v147, s[68:71], 0 offen")
    E("s_mov_b32 s11, 0x%x" % (XS1 + LSTEP))
    E("s_waitcnt vmcnt(0)"); E("v_lshlrev_b32 v150, 16, v150")
    dec1(152, 156); addx(156); dec1(154, 157); addx(157)
    Lb("Lfa")
lane("v15"); E("v_min_u32 v1, 27, v15"); E("v_lshlrev_b32 v1, 4, v1")
E("s_lshl_b32 s8, s7, 12"); E("s_mul_i32 s9, s4, 448"); E("s_add_u32 s9, s9, s8"); E("s_add_u32 s9, s9, s86"); E("s_add_u32 s9, s9, 0x%x" % AB)
E("s_mul_i32 s8, s7, %d" % PITCH); E("v_add_u32 v2, s8, v1")
if OPT['hr']: E("s_and_b32 s8, s14, 1"); E("s_lshl_b32 s8, s8, 14"); E("s_add_u32 s9, s9, s8")
E("s_sub_u32 s10, s9, 0x%x" % (AB - AU))
def absucc(i):
    if OPT['la']: E("buffer_load_ushort v72, v73, s[64:67], s11 offen sc1")
    elif OPT['fin']:
        E("s_cmp_eq_u32 s3, 0"); E("s_cbranch_scc1 Lfb"); E("buffer_load_dwordx2 v[152:153], v146, s[64:67], s11 offen sc1"); Lb("Lfb")
    for q in range(4):
        E("v_lshlrev_b32 v16, 16, v%d" % (64 + q)); E("v_and_b32 v17, 0xffff0000, v%d" % (64 + q)); E("v_lshlrev_b32 v18, 16, v%d" % (68 + q)); E("v_and_b32 v19, 0xffff0000, v%d" % (68 + q))
        E("v_pk_mul_f32 v[16:17], v[16:17], v[18:19]"); E("v_cvt_pk_bf16_f32 v%d, v16, v17" % (20 + q))
    E("ds_write_b128 v2, v[20:23] offset:%d" % ACT0)
if OPT['ht']:
    E("s_mul_i32 s8, s7, 896"); E("s_add_u32 s8, s8, s11"); E("s_lshl_b32 s16, s89, 1"); E("s_add_u32 s16, s16, s8"); E("v_mov_b32 v64, 0")
    ppoll(1, lambda i: ["buffer_load_ushort v65, v64, s[64:67], s16 offen sc1"], lambda i: E("v_cmp_eq_u16 vcc, -1, v65"), lambda i: None)
ppoll(1, lambda i: ["buffer_load_dwordx4 v[64:67], v1, s[64:67], s9 offen sc1", "buffer_load_dwordx4 v[68:71], v1, s[64:67], s10 offen sc1"],
      lambda i: check(range(64, 72)), absucc, OPT['ia'], OPT['za'])
stamp()
dense(7, ACT0, RW + 32); xatomic(XS2)
stamp()
E("s_branch Lnext")
Lb("Lg")
if OPT['la']: E("s_add_u32 s91, s86, 0x%x" % XV1); xpoll("s91")
else:
    xinit()
    E("s_cmp_eq_u32 s3, 0"); E("s_cbranch_scc1 Lg1")
    xfront([("0x%x" % XS2, 8)])
    Lb("Lg1")
    E("s_add_u32 s91, s86, 0x%x" % XS1)
    xtrig("s91", 16, OPT['ig'])
    xfront([("s91", 16)], 0, 1, OPT['l2'])
stamp()
xunpack(1 - OPT['la']); layernorm(ACT0)
dense(14, ACT0)
E("s_bitcmp1_b32 s2, 0"); E("s_cbranch_scc1 Lnogelu")
bf16r("v24", "v24")
k2 = -2 * 0.7978845608028654 * 1.4426950408889634
E("v_mul_f32 v26, v24, v24"); E("v_mov_b32 v25, %s" % f32(k2)); E("v_fmac_f32 v25, %s, v26" % f32(k2 * 0.044715))
E("v_mul_f32 v25, v25, v24"); E("v_exp_f32 v25, v25"); E("s_nop 0"); E("v_add_f32 v25, 1.0, v25"); E("v_rcp_f32 v25, v25"); E("s_nop 0")
E("v_mul_f32 v24, v25, v24")
Lb("Lnogelu")
E("v_lshlrev_b32 v1, 12, v1"); E("v_lshl_add_u32 v1, v2, 1, v1")
E("v_mov_b32_dpp v26, v24 quad_perm:[1,0,3,2] row_mask:0xf bank_mask:0xf")
E("s_add_u32 s8, s86, s87"); E("s_mov_b32 exec_lo, 0x55555555"); E("s_mov_b32 exec_hi, 0x55555555")
E("v_cvt_pk_bf16_f32 v24, v24, v26"); E("v_min_u32 v24, -2, v24")
E("buffer_store_dword v24, v1, s[64:67], s8 offen sc1")
if OPT['hr']: E("s_add_u32 s8, s8, 0x4000"); E("buffer_store_dword v24, v1, s[64:67], s8 offen sc1")
E("s_mov_b64 exec, -1")
stamp()
E("s_branch Lnextg")
Lb("Lq")
E("s_cmp_lg_u32 s3, 0"); E("s_cbranch_scc1 Lend")
if OPT['la']: xpoll("0x%x" % XV2)
else:
    xinit()
    xtrig("0x%x" % XS2, 8, OPT['it'])
    xfront([("0x%x" % XS1, 16), ("0x%x" % XS2, 8)], 0, 1, OPT['l2'])
stamp()
xunpack(1 - OPT['la']); layernorm(ACT0)
E("s_mov_b32 s82, 0x%x" % QB1)
qbody(OPT['qr'])
stamp()
E("s_branch Lnext")
Lb("Lf")
E("s_cmp_eq_u32 s3, 0"); E("s_cbranch_scc1 Lnexts")
if OPT['fin']: E("s_branch Lend")
E("s_cmp_lg_u32 s2, 255"); E("s_cbranch_scc1 Lend")
xinit()
xfront([("0x%x" % XS1, 16), ("0x%x" % XS2, 8)])
xfront([("0x%x" % (XS1 + LSTEP), 16)], OPT['lazy'])
xfront([("0x%x" % (XS2 + LSTEP), 8)], 0, OPT['nx'])
E("v_lshrrev_b32 v1, 1, v1"); E("v_lshrrev_b32 v2, 1, v2"); E("s_mul_i32 s8, s7, 896")
E("buffer_store_dwordx2 v[8:9], v1, s[72:75], s8 offen")
E("s_mov_b32 exec_hi, 0xffff")
E("buffer_store_dwordx2 v[10:11], v2, s[72:75], s8 offen")
stamp()
dbgt(2)
E("s_branch Lend")
Lb("Lnexts")
if OPT['iq']: E("s_cmp_lg_u32 s3, 0"); E("s_cbranch_scc1 Lend"); E("s_sleep %d" % OPT['iq'])
Lb("Lnextg")
if OPT['iq']: E("s_cmp_lg_u32 s3, 0"); E("s_cbranch_scc1 Lend"); E("s_sleep %d" % OPT['iq'])
Lb("Lnext")
E("s_cmp_lg_u32 s3, 0"); E("s_cbranch_scc1 Lend")
E("s_waitcnt vmcnt(0)")
E("s_mov_b32 s3, 1"); E("s_mov_b32 s86, 0x%x" % LSTEP); E("s_mov_b32 s82, 0x%x" % QB1)
E("s_branch Lloop")

Lb("Lend")
E("s_endpgm")
out += ['.section .rodata,"a"', ".p2align 6", ".amdhsa_kernel %s_kernel" % NAME,
        "  .amdhsa_next_free_vgpr 512", "  .amdhsa_next_free_sgpr 102", "  .amdhsa_accum_offset 256",
        "  .amdhsa_group_segment_fixed_size 0", "  .amdhsa_kernarg_size 96", "  .amdhsa_user_sgpr_count 2",
        "  .amdhsa_user_sgpr_kernarg_segment_ptr 1", "  .amdhsa_system_sgpr_workgroup_id_x 1", ".end_amdhsa_kernel"]
open(sys.argv[1], "w").write("\n".join(out) + "\n")
```

```python
import sys, struct
NAME = "interleave_layers__gqa_block_cached__geglu_ffn__decode"
OPT = dict(pf=0, pd=0, xe=0, xd=10, xq=10, hr=0, qr=0, ht=0, qt=0, rp=2, la=1, lt=1, fin=1, nt=1, stamps=0, p1=34, pq=52, pw=70, vpre=16, lazy=8, k0=0, k1=6, k2=6, k3=4, trig=1, wnt=1, dbg=0, fine=0, late=8, R=1, np=1, nq=1, no=1, nx=1, rtt=21, iq=0, zq=0, io=0, zo=0, ig=0, it=0, zt=0, ia=0, za=0, ef=1, kf=24, dw=0, dw0=0, ec=0, l2=0, l2o=0, cnt=0, map=1, lay=3, th=25, gm=0, X=24)
for a in sys.argv[2:]:
    k, v = a.split('='); OPT[k] = int(v)
out = []
SS, SW, ST = [(18, 16, 13), (13, 16, 18), (13, 19, 16), (15, 13, 18), (16, 19, 13), (18, 13, 15)][OPT['lay']]
def E(s): out.append("    " + s)
def Lb(s): out.append(s + ":")
def f32(x): return "0x%08x" % struct.unpack('<I', struct.pack('<f', x))[0]
NT = ["", " nt", " sc1 nt", " sc0 sc1 nt", " sc0 nt", " sc1"][OPT['nt']]; WNT = ["", " nt"][OPT['wnt']]
NLDSV = 36; VBASE = 16384; LDS_TOTAL = 163840
ACT0 = 0; OM = 0; ACT1 = 8192; QL = 8192; XRES = 12544; ML = 16128; QF = 16256; PITCH = 1088
OB = 0; XS1 = 0x60000; XS2 = 0x70000; AB = 0x54000; MLB = 0x5C000; QB1 = 0x48000; FLG = 0x5D000; AU = 0x40000; QB0 = 0x100000; LSTEP = 0x80000; STP = 0x300000; EF = 0x58000; XV1 = 0x50000; XV2 = 0x52000; assert OPT['rp'] <= 2
RW = 80
vm = []
def VM(tag, s): vm.append(tag); E(s)
def wait_tag(tag):
    idx = max(i for i, t in enumerate(vm) if t == tag)
    E("s_waitcnt vmcnt(%d)" % min(len(vm) - 1 - idx, 63))
uid = [0]
def lab(p): uid[0] += 1; return "L%s%d" % (p, uid[0])
stamp_n = [0]
def stamp(wave=0):
    if not OPT['stamps']: return
    n = stamp_n[0]; stamp_n[0] += 1; l = lab("st")
    E("s_cmp_lg_u32 s7, %d" % wave); E("s_cbranch_scc1 " + l)
    E("s_memrealtime s[8:9]"); E("s_waitcnt lgkmcnt(0)")
    E("v_mov_b32 v6, s8"); E("s_lshl_b32 s9, s2, 8"); E("s_lshl_b32 s8, s3, 7"); E("s_add_u32 s9, s9, s8")
    E("s_add_u32 s9, s9, 0x%x" % (STP + n * 4)); E("v_mov_b32 v7, 0")
    E("s_mov_b64 exec, 1"); E("buffer_store_dword v6, v7, s[64:67], s9 offen"); E("s_mov_b64 exec, -1")
    Lb(l)
def bf16r(dst, src): E("v_cvt_pk_bf16_f32 %s, %s, %s" % (dst, src, src)); E("v_lshlrev_b32 %s, 16, %s" % (dst, dst))
def vr(a, n=4): return "v[%d:%d]" % (a, a + n - 1)
def ar(a, n=4): return "a[%d:%d]" % (a, a + n - 1)
def poll(loads, chk, sleep=0, l2=0):
    l = lab("poll")
    if l2:
        for s in loads: E(s.replace(" sc1", ""))
        E("s_waitcnt vmcnt(0)"); chk()
        E("s_cbranch_vccz %sd" % l)
    E("s_mov_b32 s98, 0"); Lb(l)
    for s in loads: E(s)
    E("s_waitcnt vmcnt(0)"); chk()
    E("s_cbranch_vccz %sd" % l)
    if sleep: E("s_sleep %d" % sleep)
    E("s_add_u32 s98, s98, 1"); E("s_cmp_lt_u32 s98, 0x8000"); E("s_cbranch_scc1 " + l)
    Lb(l + "d")
def ppoll(n, loads, chk, succ, ini=0, slp=0):
    l = lab("pp"); m = len(loads(0))
    E("s_mov_b32 s98, 0")
    if ini: E("s_sleep %d" % ini)
    for i in range(n):
        if i: E("s_sleep %d" % (OPT['rtt'] // n))
        for x in loads(i): E(x)
    Lb(l)
    for i in range(n):
        E("s_waitcnt vmcnt(%d)" % ((n - 1) * m)); chk(i)
        E("s_cbranch_vccz %s_%d" % (l, i))
        if slp: E("s_sleep %d" % slp)
        for x in loads(i): E(x)
    E("s_add_u32 s98, s98, 1"); E("s_cmp_lt_u32 s98, 0x4000"); E("s_cbranch_scc1 " + l)
    for i in range(n - 1, -1, -1):
        Lb("%s_%d" % (l, i)); succ(i)
        if i: E("s_branch %sd" % l)
    Lb(l + "d")
def check(regs, t="v15"):
    r = list(regs)
    E("v_max3_u32 %s, v%d, v%d, v%d" % (t, r[0], r[1], r[2])); r = r[3:]
    while len(r) >= 2: E("v_max3_u32 %s, %s, v%d, v%d" % (t, t, r[0], r[1])); r = r[2:]
    if r: E("v_max_u32 %s, %s, v%d" % (t, t, r[0]))
    E("v_cmp_eq_u32 vcc, -1, %s" % t)
kpos = [0]
def kload(n):
    T, t = n // 8, n % 8
    E("s_add_u32 s10, s80, %d" % (T << ST))
    VM('K', "buffer_load_dwordx4 %s, v4, s[40:43], s10 offen offset:%d%s" % (ar(4 * n), 64 * t, NT))
def kgroup(cnt, cond=True):
    l = lab("kg")
    if cond: E("s_cmp_lg_u32 s3, 0"); E("s_cbranch_scc1 " + l)
    for _ in range(cnt): kload(kpos[0]); kpos[0] += 1
    if cond: Lb(l)
def inlds(u): return u % 2 == 0 or u < 8
def lslot(u): return u if u < 8 else 8 + (u // 2 - 4)
def vload(u):
    T, r, hf = u // 8, (u // 2) % 4, u % 2
    E("s_add_u32 s10, s80, %d" % (T << ST))
    io = r * 512 + hf * 256
    if inlds(u):
        E("s_add_u32 m0, s81, %d" % (lslot(u) * 1024 + 4096 - io)); E("s_nop 0")
        VM('V%d' % u, "buffer_load_dwordx4 v5, s[44:47], s10 offen offset:%d%s lds" % (io, NT))
    else:
        VM('V%d' % u, "buffer_load_dwordx4 %s, v5, s[44:47], s10 offen offset:%d%s" % (vr(144 + 4 * (u // 2 - 4)), io, NT))
vpos = [0]
def vgroup(cnt):
    cnt = min(cnt, 64 - vpos[0])
    for _ in range(cnt): vload(vpos[0]); vpos[0] += 1
def lane(dst): E("v_and_b32 %s, 63, v0" % dst)
def xaddr():
    lane("v15"); E("v_lshlrev_b32 v1, 4, v15"); E("v_min_u32 v2, 47, v15"); E("v_lshlrev_b32 v2, 4, v2"); E("v_add_u32 v2, 1024, v2")
    E("s_mul_i32 s8, s7, 896"); E("s_add_u32 s8, s8, %d" % XRES)
    E("v_lshrrev_b32 v3, 1, v1"); E("v_add_u32 v3, s8, v3"); E("v_lshrrev_b32 v14, 1, v2"); E("v_add_u32 v14, s8, v14")
def xinit():
    xaddr()
    E("ds_read_b64 v[8:9], v3"); E("ds_read_b64 v[10:11], v14")
    E("v_lshlrev_b32 v6, 1, v1"); E("v_lshlrev_b32 v7, 1, v2")
def xtrig(off, P, ini):
    if not OPT['trig']: return
    E("s_add_u32 s9, s15, %s" % off); E("s_and_b32 s8, s2, 7"); E("s_mul_i32 s8, s8, 3"); E("s_bfe_u32 s10, s2, 0x20003"); E("s_add_u32 s8, s8, s10")
    if OPT['ec']:
        E("s_add_u32 s8, s4, s13"); E("s_and_b32 s8, s8, 7"); E("s_cmp_eq_u32 s8, 7"); E("s_cselect_b32 s8, s10, s8"); E("s_add_u32 s9, s9, 0x4000")
    E("s_lshl_b32 s8, s8, 7"); E("s_add_u32 s9, s9, s8"); E("v_mov_b32 v25, 0")
    ppoll(OPT['np'], lambda i: ["buffer_load_dword v%d, v25, s[64:67], s9 offen sc1" % (72 + i)],
          lambda i: (E("v_and_b32 v24, %d, v%d" % (P, 72 + i)), E("v_cmp_eq_u32 vcc, 0, v24")), lambda i: None, ini, OPT['zt'])
def xfront(lst, sleep=0, pipe=1, l2=0):
    loads = []
    for n, (off, P) in enumerate(lst):
        E("s_add_u32 s%d, s15, %s" % (9 + n, off))
        loads += ["buffer_load_dwordx4 %s, v%d, s[64:67], s%d offen offset:%d sc1" % (vr(32 + 16 * n + 4 * i), 6 + i // 2, 9 + n, 16 * (i & 1)) for i in range(4)]
    def chk():
        for n, (off, P) in enumerate(lst):
            o = 32 + 16 * n
            E("v_and_b32 v24, v%d, v%d" % (o, o + 2)); E("v_and_b32 v25, v%d, v%d" % (o + 4, o + 6)); E("v_and_b32 v26, v%d, v%d" % (o + 8, o + 10)); E("v_and_b32 v27, v%d, v%d" % (o + 12, o + 14))
            E("v_and_b32 v24, v24, v25"); E("v_and_b32 v26, v26, v27"); E("v_and_b32 v24, v24, v26"); E("v_and_b32 v%d, %d, v24" % (28 + n, P))
        if len(lst) == 2: E("v_min_u32 v28, v28, v29")
        E("v_cmp_eq_u32 vcc, 0, v28")
    if pipe > 1:
        P = lst[0][1]
        def chk2(i):
            o = 32 + 16 * i
            E("v_and_b32 v24, v%d, v%d" % (o, o + 2)); E("v_and_b32 v25, v%d, v%d" % (o + 4, o + 6)); E("v_and_b32 v26, v%d, v%d" % (o + 8, o + 10)); E("v_and_b32 v27, v%d, v%d" % (o + 12, o + 14))
            E("v_and_b32 v24, v24, v25"); E("v_and_b32 v26, v26, v27"); E("v_and_b32 v24, v24, v26"); E("v_and_b32 v28, %d, v24" % P); E("v_cmp_eq_u32 vcc, 0, v28")
        def dec(i):
            o = 32 + 16 * i
            for q in range(8): E("v_lshrrev_b32 v%d, 31, v%d" % (16 + q, o + 2 * q)); E("v_cvt_f32_i32 v%d, v%d" % (o + 2 * q, o + 2 * q))
            for q in range(8): E("v_add_u32 v%d, v%d, v%d" % (16 + q, 16 + q, o + 1 + 2 * q))
            for q in range(8): E("v_cvt_f32_i32 v%d, v%d" % (16 + q, 16 + q))
            for q in range(8): E("v_fmac_f32 v%d, s97, v%d" % (16 + q, o + 2 * q))
        ppoll(pipe, lambda i: ["buffer_load_dwordx4 %s, v%d, s[64:67], s9 offen offset:%d sc1" % (vr(32 + 16 * i + 4 * j), 6 + j // 2, 16 * (j & 1)) for j in range(4)], chk2, dec)
    else: poll(loads, chk, sleep, l2)
    E("s_waitcnt lgkmcnt(0)")
    for n in range(len(lst)):
        o = 32 + 16 * n
        if pipe == 1:
            for q in range(8): E("v_lshrrev_b32 v%d, 31, v%d" % (16 + q, o + 2 * q)); E("v_cvt_f32_i32 v%d, v%d" % (o + 2 * q, o + 2 * q))
            for q in range(8): E("v_add_u32 v%d, v%d, v%d" % (16 + q, 16 + q, o + 1 + 2 * q))
            for q in range(8): E("v_cvt_f32_i32 v%d, v%d" % (16 + q, 16 + q))
            for q in range(8): E("v_fmac_f32 v%d, s97, v%d" % (16 + q, o + 2 * q))
        for q in range(4):
            E("v_cvt_pk_bf16_f32 v24, v%d, v%d" % (16 + 2 * q, 17 + 2 * q))
            E("v_lshlrev_b32 v25, 16, v24"); E("v_and_b32 v26, 0xffff0000, v24")
            E("v_lshlrev_b32 v27, 16, v%d" % (8 + q)); E("v_and_b32 v28, 0xffff0000, v%d" % (8 + q))
            E("v_add_f32 v25, v25, v27"); E("v_add_f32 v26, v26, v28")
            E("v_cvt_pk_bf16_f32 v%d, v25, v26" % (8 + q))
def xpoll(off, g):
    ld = lab('xd')
    xaddr(); E("v_lshrrev_b32 v6, 1, v1"); E("v_lshrrev_b32 v7, 1, v2"); E("s_mul_i32 s9, s7, 896"); E("s_add_u32 s9, s9, %s" % off); E("s_add_u32 s9, s9, s56")
    fat = ["buffer_load_dwordx2 v[8:9], v6, s[64:67], s9 offen sc1", "buffer_load_dwordx2 v[10:11], v7, s[64:67], s9 offen sc1"]
    def chk(i):
        E("v_pk_max_u16 v24, v8, v9"); E("v_pk_max_u16 v25, v10, v11"); E("v_pk_max_u16 v24, v24, v25")
        E("v_lshrrev_b32 v25, 16, v24"); E("v_max_u16 v24, v24, v25"); E("v_cmp_eq_u16 vcc, -1, v24")
    if OPT['xe'] & (1 if g else 2):
        E("s_and_b32 s8, s2, 7"); E("s_lshl_b32 s8, s8, 4"); E("s_lshr_b32 s10, s2, 3")
        if g:
            E("s_cmp_eq_u32 s3, 0"); E("s_cbranch_scc1 " + ld + "s")
            E("s_add_u32 s8, s8, s10"); E("s_and_b32 s10, s7, 1"); E("s_lshl_b32 s10, s10, 3"); E("s_add_u32 s8, s8, s10"); E("s_sub_u32 s8, s8, 8")
        else: E("s_min_u32 s10, s10, 6"); E("s_add_u32 s8, s8, s10")
        E("s_lshl_b32 s8, s8, 6"); E("s_add_u32 s8, s8, s86"); E("s_add_u32 s10, s8, 0x%x" % (EF + (0 if g else 32))); E("v_mov_b32 v25, 0")
        ppoll(1, lambda i: ["buffer_load_dword v72, v25, s[64:67], s10 offen sc1"], lambda i: E("v_cmp_eq_u32 vcc, -1, v72"), lambda i: None)
        if OPT['xd' if g else 'xq']: E("s_sleep %d" % OPT['xd' if g else 'xq'])
        for x in fat: E(x)
        E("s_waitcnt vmcnt(0)"); chk(0); E("s_cbranch_vccz " + ld)
        Lb(ld + "s")
    if OPT['lt']:
        E("s_lshr_b32 s8, s2, %d" % (OPT['rp'].bit_length() - 1)); E("s_and_b32 s8, s8, 7"); E("s_min_u32 s8, s8, 6"); E("s_lshl_b32 s8, s8, 7"); E("s_add_u32 s10, s9, s8"); E("v_mov_b32 v25, 0")
        ppoll(1, lambda i: ["buffer_load_ushort v72, v25, s[64:67], s10 offen sc1"], lambda i: E("v_cmp_eq_u16 vcc, -1, v72"), lambda i: None)
    def chk(i):
        E("v_pk_max_u16 v24, v8, v9"); E("v_pk_max_u16 v25, v10, v11"); E("v_pk_max_u16 v24, v24, v25")
        E("v_lshrrev_b32 v25, 16, v24"); E("v_max_u16 v24, v24, v25"); E("v_cmp_eq_u16 vcc, -1, v24")
    ppoll(1, lambda i: ["buffer_load_dwordx2 v[8:9], v6, s[64:67], s9 offen sc1", "buffer_load_dwordx2 v[10:11], v7, s[64:67], s9 offen sc1"], chk, lambda i: None, 0, OPT['zt'])
    Lb(ld)
def xunpack(wr=1):
    for q in range(4): E("v_lshlrev_b32 v%d, 16, v%d" % (16 + 2 * q, 8 + q)); E("v_and_b32 v%d, 0xffff0000, v%d" % (17 + 2 * q, 8 + q))
    if wr: E("ds_write_b64 v3, v[8:9]"); E("ds_write_b64 v14, v[10:11]")
def layernorm(act):
    E("v_add_f32 v24, v16, v17"); E("v_add_f32 v26, v18, v19"); E("v_mul_f32 v25, v16, v16"); E("v_add_f32 v24, v24, v26")
    for q in (17, 18, 19): E("v_fmac_f32 v25, v%d, v%d" % (q, q))
    E("s_mov_b32 exec_hi, 0xffff")
    for q in (20, 21, 22, 23): E("v_add_f32 v24, v24, v%d" % q); E("v_fmac_f32 v25, v%d, v%d" % (q, q))
    E("s_mov_b32 exec_hi, -1"); E("s_nop 1")
    for c in ["row_shr:1 row_mask:0xf bank_mask:0xf bound_ctrl:0", "row_shr:2 row_mask:0xf bank_mask:0xf bound_ctrl:0", "row_shr:4 row_mask:0xf bank_mask:0xf bound_ctrl:0",
              "row_shr:8 row_mask:0xf bank_mask:0xf bound_ctrl:0", "row_bcast:15 row_mask:0xa bank_mask:0xf", "row_bcast:31 row_mask:0xc bank_mask:0xf"]:
        E("v_add_f32_dpp v24, v24, v24 " + c); E("v_add_f32_dpp v25, v25, v25 " + c); E("s_nop 0")
    E("v_readlane_b32 s8, v24, 63"); E("v_readlane_b32 s9, v25, 63")
    E("s_mul_i32 s10, s7, %d" % PITCH); E("s_add_u32 s10, s10, %d" % act)
    E("v_mov_b32 v26, %s" % f32(1 / 448)); E("v_mul_f32 v24, s8, v26"); E("v_mul_f32 v25, s9, v26")
    E("v_fma_f32 v25, -v24, v24, v25"); E("v_max_f32 v25, 0, v25")
    E("v_cvt_pk_bf16_f32 v26, v24, v25"); E("v_lshlrev_b32 v24, 16, v26"); E("v_and_b32 v25, 0xffff0000, v26")
    E("v_add_f32 v25, %s, v25" % f32(1e-5)); bf16r("v25", "v25")
    E("v_sqrt_f32 v25, v25")
    for q in range(8): E("v_sub_f32 v%d, v%d, v24" % (16 + q, 16 + q))
    bf16r("v25", "v25"); E("v_rcp_f32 v25, v25")
    for q in range(4):
        E("v_cvt_pk_bf16_f32 v26, v%d, v%d" % (16 + 2 * q, 17 + 2 * q)); E("v_lshlrev_b32 v%d, 16, v26" % (16 + 2 * q)); E("v_and_b32 v%d, 0xffff0000, v26" % (17 + 2 * q))
    for q in range(8): E("v_mul_f32 v%d, v%d, v25" % (16 + q, 16 + q))
    for q in range(4): E("v_cvt_pk_bf16_f32 v%d, v%d, v%d" % (24 + q, 16 + 2 * q, 17 + 2 * q))
    E("v_lshrrev_b32 v1, 1, v1"); E("v_add_u32 v1, s10, v1"); E("v_lshrrev_b32 v2, 1, v2"); E("v_add_u32 v2, s10, v2")
    E("ds_write_b64 v1, v[24:25]"); E("ds_write_b64 v2, v[26:27]")
def bar(): E("s_waitcnt lgkmcnt(0)"); E("s_barrier")
def dense(T, act, RW=80, sl=(32, 36, 40, 44, 48, 52, 56, 60)):
    n = len(sl)
    E("v_bfe_u32 v1, v0, 2, 2"); E("v_mul_u32_u24 v1, %d, v1" % PITCH); E("v_bfe_u32 v2, v0, 4, 2"); E("v_lshl_add_u32 v1, v2, 4, v1")
    bar()
    for t in range(min(n, T)): E("ds_read_b128 %s, v1 offset:%d" % (vr(sl[t]), act + 64 * t))
    issued = min(n, T)
    for t in range(T):
        E("s_waitcnt lgkmcnt(%d)" % (issued - 1 - t))
        acc = vr(24 + 4 * (t & 1))
        E("v_mfma_f32_16x16x32_bf16 %s, %s, %s, %s" % (acc, vr(sl[t % n]), vr(RW + 4 * t), "0" if t < 2 else acc))
        if issued < T: E("ds_read_b128 %s, v1 offset:%d" % (vr(sl[issued % n]), act + 64 * issued)); issued += 1
    E("v_bfe_u32 v1, v0, 4, 2"); E("v_and_b32 v2, 15, v0"); E("s_nop 6"); E("v_add_f32 v24, v24, v28")
def worker(wave, limit, body):
    l = lab("wk")
    E("s_cmp_lg_u32 s7, %d" % wave); E("s_cbranch_scc1 " + l)
    if limit: E("s_cmp_ge_u32 s13, %d" % limit); E("s_cbranch_scc1 " + l)
    body(); Lb(l)

hdr = open("cdna_kernels/%s.s.ref" % NAME).read().split("\n")
for l in hdr:
    if l.startswith("; @launch"): out.append("; @launch grid=(256,1,1) block=(256,1,1) lds=%d" % LDS_TOTAL)
    elif l.startswith(";"): out.append(l)
    else: break
out += ['.amdgcn_target "amdgcn-amd-amdhsa--gfx950"', ".text", ".globl %s_kernel" % NAME, ".p2align 8",
        ".type %s_kernel,@function" % NAME, "%s_kernel:" % NAME]
E("s_cmp_ge_u32 s2, 256"); E("s_cbranch_scc1 Lend")
if OPT['dbg']: E("s_memrealtime s[100:101]")
def dbgt(n):
    if not OPT['dbg']: return
    l = lab("dbg")
    E("s_cmp_lg_u32 s7, 0"); E("s_cbranch_scc1 " + l)
    E("s_memrealtime s[8:9]"); E("s_waitcnt lgkmcnt(0)"); E("s_sub_u32 s8, s8, s100"); E("v_mov_b32 v6, s8"); E("v_mov_b32 v7, 0")
    E("s_mov_b64 exec, 1"); E("buffer_atomic_umax v6, v7, s[76:79], 0 offen offset:%d sc1" % (4 * n)); E("s_mov_b64 exec, -1")
    Lb(l)
E("s_load_dwordx16 s[16:31], s[0:1], 0"); E("s_load_dwordx8 s[32:39], s[0:1], 64")
E("v_lshrrev_b32 v1, 6, v0"); E("s_and_b32 s4, s2, 7"); E("v_readfirstlane_b32 s7, v1")
E("s_lshr_b32 s13, s2, 3"); E("s_and_b32 s5, s13, 3"); E("s_lshr_b32 s6, s2, 5"); E("s_mov_b32 s3, 0")
E("v_and_b32 v1, 15, v0"); E("v_bfe_u32 v2, v0, 4, 2")
E("v_lshlrev_b32 v4, 9, v1"); E("v_lshl_add_u32 v4, v2, 4, v4")
E("v_lshlrev_b32 v5, 11, v2"); E("v_lshl_add_u32 v5, v1, 4, v5")
E("s_mov_b32 s62, s4")
if OPT['map'] == 1: E("s_and_b32 s62, s13, 7"); E("s_lshr_b32 s5, s2, 6"); E("s_mov_b32 s6, s4")
if OPT['map'] == 2: E("s_add_u32 s62, s4, s6"); E("s_and_b32 s62, s62, 7")
E("s_lshl_b32 s8, s5, 3"); E("s_add_u32 s8, s8, s62"); E("s_lshl_b32 s9, s8, 21")
E("s_lshl_b32 s80, s7, %d" % SW); E("s_lshl_b32 s10, s6, %d" % SS); E("s_add_u32 s80, s80, s10"); E("s_mul_i32 s81, s7, %d" % (NLDSV * 1024)); E("s_add_u32 s81, s81, %d" % (VBASE - 4096))

E("s_lshl_b32 s84, s8, 13"); E("s_lshl_b32 s10, s6, 10"); E("s_add_u32 s84, s84, s10")
E("s_lshl_b32 s85, s8, 7"); E("s_lshl_b32 s10, s6, 3"); E("s_add_u32 s85, s85, s10"); E("s_add_u32 s85, s85, 0x%x" % MLB)
E("s_mov_b32 s86, 0")
E("s_mov_b32 s82, 0x%x" % QB0)
E("s_lshl_b32 s11, s7, 4")
E("s_lshl_b32 s83, s2, 7"); E("s_lshl_b32 s10, s7, 5"); E("s_add_u32 s83, s83, s10")
E("s_sub_u32 s87, s2, 64"); E("s_lshr_b32 s87, s87, 1"); E("s_lshl_b32 s63, s87, 7"); E("s_add_u32 s87, s63, s10")
E("s_bitcmp1_b32 s2, 0"); E("s_cselect_b32 s10, 0, 0x%x" % (AB - AU)); E("s_add_u32 s87, s87, s10"); E("s_add_u32 s87, s87, 0x%x" % AU)
E("s_max_u32 s14, s13, 15"); E("s_sub_u32 s14, s14, 15"); E("s_min_u32 s14, s14, 13")
E("s_cmp_ge_u32 s14, 7"); E("s_cselect_b32 s88, 1, 0"); E("s_mul_i32 s10, s88, 7"); E("s_sub_u32 s14, s14, s10")
E("s_lshl_b32 s89, s14, 6"); E("s_add_u32 s89, s89, s11")
E("s_mov_b32 s12, 0"); E("s_cmp_ge_u32 s13, 8"); E("s_cselect_b32 s12, 1, s12"); E("s_cmp_ge_u32 s13, 15"); E("s_cselect_b32 s12, 2, s12")
E("s_cmp_ge_u32 s13, 29"); E("s_cselect_b32 s12, 3, s12")
E("s_mov_b32 s99, %s" % f32(0.0625 * 1.4426950408889634))
E("s_and_b32 s15, s13, %d" % (OPT['R'] - 1)); E("s_lshl_b32 s15, s15, 14"); E("s_lshl_b32 s10, s7, 12"); E("s_add_u32 s15, s15, s10")
E("s_and_b32 s56, s2, %d" % (OPT['rp'] - 1)); E("s_lshl_b32 s56, s56, 12"); E("s_mov_b32 s97, %s" % f32(2.0 ** -32)); E("s_mov_b32 s96, %s" % f32(2.0 ** 32)); E("s_movk_i32 s95, 0xffe0")
E("s_waitcnt lgkmcnt(0)")
def srd(d, lo, hi, n, add=None):
    if add: E("s_add_u32 s%d, s%d, %s" % (d, lo, add)); E("s_addc_u32 s%d, s%d, 0" % (d + 1, hi))
    else: E("s_mov_b32 s%d, s%d" % (d, lo)); E("s_mov_b32 s%d, s%d" % (d + 1, hi))
    E("s_mov_b32 s%d, 0x%x" % (d + 2, n)); E("s_mov_b32 s%d, 0x00020000" % (d + 3))
srd(40, 18, 19, 1 << 21, "s9"); srd(44, 20, 21, 1 << 21, "s9")
srd(64, 38, 39, 0x400000); srd(68, 16, 17, 3584); srd(72, 34, 35, 3584); srd(76, 36, 37, 256)
stamp()
if OPT['th']:
    E("s_cmp_lt_u32 s13, 22"); E("s_cbranch_scc1 Lth"); E("s_sleep %d" % OPT['th'])
    E("s_cmp_lt_u32 s13, 29"); E("s_cbranch_scc1 Lth"); E("s_sleep %d" % OPT['th'])
    Lb("Lth")
kgroup(OPT['k0'], False)
xaddr()
E("v_lshrrev_b32 v6, 1, v1"); E("v_lshrrev_b32 v7, 1, v2"); E("s_mul_i32 s8, s7, 896")
VM('x', "buffer_load_dwordx2 v[8:9], v6, s[68:71], s8 offen"); VM('x', "buffer_load_dwordx2 v[10:11], v7, s[68:71], s8 offen")
lane("v15"); E("v_lshrrev_b32 v12, 3, v15"); E("v_and_b32 v13, 7, v15")
for m in range(4): E("v_xor_b32 v%d, %d, v13" % (16 + m, 2 * m))
srd(48, 22, 23, 448 * 4096 * 2); E("s_lshl_b32 s92, s2, 7"); E("s_movk_i32 s93, 8192"); E("s_lshl_b32 s10, s7, 7")
E("s_cmp_eq_u32 s12, 0"); E("s_cbranch_scc1 Lwsel")
E("s_bitcmp1_b32 s2, 0"); E("s_cselect_b32 s48, s30, s28"); E("s_cselect_b32 s49, s31, s29"); E("s_mov_b32 s50, 0x%x" % (448 * 1792 * 2))
E("s_mov_b32 s92, s63"); E("s_movk_i32 s93, 3584")
E("s_cmp_eq_u32 s12, 1"); E("s_cbranch_scc1 Lwsel")
E("s_movk_i32 s93, 896"); E("s_and_b32 s10, s7, 1"); E("s_lshl_b32 s10, s10, 7")
E("s_mov_b32 s48, s24"); E("s_mov_b32 s49, s25"); E("s_mov_b32 s50, 0x%x" % (4096 * 448 * 2))
E("s_lshl_b32 s8, s4, 1"); E("s_add_u32 s8, s8, s88"); E("s_mul_i32 s92, s8, %d" % (256 * 896)); E("s_lshl_b32 s8, s14, 7"); E("s_add_u32 s92, s92, s8")
E("s_cmp_eq_u32 s12, 3"); E("s_cselect_b32 s50, 0, s50")
E("s_cmp_lt_u32 s7, 2"); E("s_cbranch_scc1 Lwsel")
E("s_mov_b32 s48, s32"); E("s_mov_b32 s49, s33"); E("s_add_u32 s50, s4, 1"); E("s_mul_i32 s50, s50, %d" % (224 * 896))
E("s_cmp_lg_u32 s88, 0"); E("s_cselect_b32 s50, 0, s50")
E("s_mul_i32 s92, s4, %d" % (224 * 896)); E("s_add_u32 s92, s92, s8")
Lb("Lwsel")
E("s_mov_b32 s52, s48"); E("s_mov_b32 s53, s49"); E("s_lshl_b32 s94, s93, 3")
Lb("Lwsel2")
E("s_mov_b32 s54, s50"); E("s_mov_b32 s55, 0x00020000")
E("s_mul_i32 s10, s10, s93"); E("s_add_u32 s92, s92, s10"); E("s_add_u32 s94, s94, s92")
E("v_mul_lo_u32 v12, v12, s93"); E("s_lshl_b32 s93, s93, 4")
for m in range(4): E("v_lshl_add_u32 v%d, v%d, 4, v12" % (16 + m, 16 + m))
E("s_lshl_b32 s11, s7, 14"); E("s_add_u32 s11, s11, %d" % VBASE)
for f in range(8):
    E("s_add_u32 m0, s11, %d" % (2048 * f)); E("s_nop 0")
    VM('w', "buffer_load_dwordx4 v%d, s[48:51], s92 offen%s lds" % (16 + (2 * f) % 4, WNT))
    E("s_add_u32 m0, s11, %d" % (2048 * f + 1024)); E("s_nop 0")
    VM('w', "buffer_load_dwordx4 v%d, s[52:55], s94 offen%s lds" % (16 + (2 * f + 1) % 4, WNT))
    if f < 7: E("s_add_u32 s92, s92, s93"); E("s_add_u32 s94, s94, s93")
    if f == 3:
        E("s_and_b32 s8, s2, 0x60"); E("s_cmp_eq_u32 s8, 0x60"); E("s_cselect_b32 s8, 0, -1")
        for r in range(4): E("v_mov_b32 v%d, s8" % (24 + r))
        E("v_lshlrev_b32 v7, 4, v0"); E("s_lshl_b32 s8, s2, 12")
        VM('clr', "buffer_store_dwordx4 v[24:27], v7, s[64:67], s8 offen %s" % ["sc1", "sc1 nt", "sc0 sc1", "sc0 sc1 nt"][OPT['cnt']])
        E("s_cmp_lg_u32 s12, 0"); E("s_cbranch_scc1 Lnoclrq")
        E("v_bfe_u32 v12, v0, 4, 2"); E("v_and_b32 v13, 15, v0"); E("v_lshlrev_b32 v12, 13, v12"); E("v_lshl_add_u32 v12, v13, 1, v12"); E("s_add_u32 s8, s82, s83")
        E("s_mov_b32 exec_lo, 0x55555555"); E("s_mov_b32 exec_hi, 0x55555555")
        E("buffer_store_dword v24, v12, s[64:67], s8 offen sc1"); E("s_mov_b64 exec, -1")
        Lb("Lnoclrq")
def qaddr(): E("v_lshlrev_b32 v1, 13, v1"); E("v_lshl_add_u32 v1, v2, 1, v1"); E("s_add_u32 s8, s82, s83"); E("s_mov_b32 exec_lo, 0x55555555"); E("s_mov_b32 exec_hi, 0x55555555")
kgroup(OPT['k1'], False)
stamp()
E("v_mov_b32 v6, 0"); E("ds_write_b32 v6, v6 offset:%d" % QF)
wait_tag('x')
xunpack()
E("s_waitcnt lgkmcnt(0)")
def trblock(isq, ka, kb):
    kgroup(ka, False)
    E("v_bfe_u32 v12, v0, 4, 2"); E("v_bfe_u32 v13, v0, 2, 2"); E("v_xor_b32 v7, s7, v12"); E("v_and_b32 v15, 3, v0")
    E("v_lshl_add_u32 v6, v12, 3, v13"); E("v_lshlrev_b32 v6, 7, v6"); E("v_lshl_add_u32 v6, v7, 5, v6"); E("v_lshl_add_u32 v6, v15, 3, v6"); E("v_add_u32 v16, 512, v6")
    E("v_add_u32 v6, %d, v6" % VBASE); E("v_add_u32 v16, %d, v16" % VBASE)
    wait_tag('w')
    E("s_barrier")
    worker(0, 0, sig)
    for f in range(16):
        E("ds_read_b64_tr_b16 %s, v6 offset:%d" % (vr(RW + 4 * f, 2), f * 4096)); E("ds_read_b64_tr_b16 %s, v16 offset:%d" % (vr(RW + 4 * f + 2, 2), f * 4096))
        if f % 4 == 3 and f < 15: E("s_waitcnt lgkmcnt(4)")
    kgroup(kb, False)
    if not isq: bar()
def sig():
    E("s_mov_b64 exec, 1"); E("s_add_u32 s9, s4, 8"); E("s_cmp_eq_u32 s12, 0"); E("s_cselect_b32 s9, s13, s9"); E("s_lshl_b32 s9, s9, 4"); E("v_mov_b32 v25, 1"); E("v_mov_b32 v26, 0")
    E("buffer_atomic_add v25, v26, s[76:79], s9 offen sc1"); E("s_mov_b64 exec, -1")
def qbody(r=0):
    dense(14, ACT0)
    E("s_nop 1"); E("v_mov_b32_dpp v25, v24 quad_perm:[1,0,3,2] row_mask:0xf bank_mask:0xf")
    E("v_cvt_pk_bf16_f32 v24, v24, v25"); E("v_min_u32 v24, -2, v24"); qaddr()
    E("buffer_store_dword v24, v1, s[64:67], s8 offen sc1")
    if r: E("s_add_u32 s8, s8, 0x%x" % LSTEP); E("buffer_store_dword v24, v1, s[64:67], s8 offen sc1")
    E("s_mov_b64 exec, -1")
E("s_cmp_lg_u32 s12, 0"); E("s_cbranch_scc1 Lpro2")
sv = (list(vm), kpos[0])
layernorm(ACT0)
trblock(True, OPT['k2'], OPT['k3'])
qbody()
stamp(); stamp_n[0] -= OPT['stamps']
kgroup(OPT['X'] - kpos[0], False)
E("s_branch Lpro3")
Lb("Lpro2")
vm[:] = sv[0]; kpos[0] = sv[1]
trblock(False, OPT['X'] - 4 - kpos[0], 4)
stamp()
Lb("Lpro3")
dbgt(3)
Lb("Lloop")

lane("v15"); E("v_lshlrev_b32 v1, 4, v15"); E("v_add_u32 v3, s81, v1")
E("v_bfe_u32 v2, v0, 3, 1"); E("v_lshlrev_b32 v2, 9, v2"); E("v_bfe_u32 v6, v0, 4, 2"); E("v_lshl_add_u32 v2, v6, 4, v2")
E("v_and_b32 v6, 1, v0"); E("v_cmp_eq_u32 vcc, 0, v6"); E("v_mov_b32 v7, 0x01000c0c"); E("v_mov_b32 v12, 0x0c0c0100"); E("v_cndmask_b32 v7, v7, v12, vcc")
E("v_bfe_u32 v6, v0, 1, 2"); E("v_mov_b32 v12, 0x0c0c0c0c"); E("s_mov_b32 s91, 0x02020202")
for r in range(4): E("v_cmp_eq_u32 vcc, %d, v6" % r); E("s_nop 1"); E("v_cndmask_b32 v%d, v12, v7, vcc" % (8 + r))
E("s_lshl_b32 s8, s5, 13"); E("s_lshl_b32 s9, s62, 10"); E("s_add_u32 s90, s8, s9"); E("s_add_u32 s90, s90, s82")
qload = "buffer_load_dwordx4 v[16:19], v1, s[64:67], s90 offen sc1"
E("s_cmp_lg_u32 s3, 0"); E("s_cbranch_scc1 Lqpoll1")
E("v_mov_b32 v6, s62"); E("v_lshlrev_b32 v6, 4, v6")
pos = kpos[0]
mark = {}
def wmark(t): E("s_waitcnt vmcnt(%d)" % min(63, len(vm) - mark[t]))
while pos < 64 + OPT['vpre']:
    if pos < 64: kload(pos); kpos[0] += 1
    else: vload(pos - 64); vpos[0] += 1
    pos += 1
    if pos == OPT['p1']:
        worker(0, 0, lambda: E("buffer_load_dword v7, v6, s[76:79], 0 offen sc1")); mark['cnt'] = len(vm)
    if pos == OPT['pq']:
        def f():
            wmark('cnt')
            E("s_mov_b32 s98, 0"); Lb("Lcnt")
            E("v_cmp_gt_u32 vcc, 8, v7"); E("s_cbranch_vccz Lcntd")
            E("buffer_load_dword v7, v6, s[76:79], 0 offen sc1"); E("s_waitcnt vmcnt(0)")
            E("s_add_u32 s98, s98, 1"); E("s_cmp_lt_u32 s98, 0x8000"); E("s_cbranch_scc1 Lcnt")
            Lb("Lcntd")
            E(qload)
        worker(0, 0, f); mark['q'] = len(vm)
    if pos == OPT['pw']:
        def f():
            wmark('q')
            check(range(16, 20))
            E("s_cbranch_vccz Lattn")
            poll([qload], lambda: check(range(16, 20)))
            Lb("Lattn")
            E("ds_write_b128 v1, v[16:19] offset:%d" % QL)
            E("v_mov_b32 v6, 0"); E("v_mov_b32 v7, 1")
            E("s_waitcnt lgkmcnt(0)")
            E("ds_write_b32 v6, v7 offset:%d" % QF)
        worker(0, 0, f)
E("v_mov_b32 v6, 0"); E("s_mov_b32 s98, 0"); Lb("Lqf")
E("ds_read_b32 v7, v6 offset:%d" % QF); E("s_waitcnt lgkmcnt(0)")
E("v_cmp_eq_u32 vcc, 0, v7"); E("s_cbranch_vccz Lqfd")
E("s_sleep 2"); E("s_add_u32 s98, s98, 1"); E("s_cmp_lt_u32 s98, 0x400000"); E("s_cbranch_scc1 Lqf")
Lb("Lqfd")
def round_tile(T, first):
    s = 32 + 4 * T
    return ["v_cvt_pk_bf16_f32 v6, v%d, v%d" % (s, s + 1), "v_cvt_pk_bf16_f32 v7, v%d, v%d" % (s + 2, s + 3),
            "v_lshlrev_b32 v%d, 16, v6" % s, "v_and_b32 v%d, 0xffff0000, v6" % (s + 1),
            "v_lshlrev_b32 v%d, 16, v7" % (s + 2), "v_and_b32 v%d, 0xffff0000, v7" % (s + 3),
            ("v_max_f32 v12, v%d, v%d" % (s, s + 1)) if first else ("v_max3_f32 v12, v12, v%d, v%d" % (s, s + 1)),
            "v_max3_f32 v12, v12, v%d, v%d" % (s + 2, s + 3)]
def FR(t): return vr(16 + 4 * t) if t < 4 else vr(64 + 4 * (t - 4))
HS = [1, 2, 13, 15]
def eflag():
    if not OPT['ef']: return
    l = lab("ef"); E("s_cmp_lg_u32 s7, 0"); E("s_cbranch_scc1 " + l)
    E("s_sub_u32 s8, s85, 0x%x" % MLB); E("s_lshr_b32 s9, s8, 7"); E("s_lshl_b32 s9, s9, 5"); E("s_lshl_b32 s8, s6, 2"); E("s_add_u32 s8, s8, s9"); E("s_add_u32 s8, s8, s86"); E("s_add_u32 s8, s8, 0x%x" % FLG)
    E("v_mov_b32 v4, 0"); E("s_mov_b64 exec, 1"); E("buffer_store_dword v4, v4, s[64:67], s8 offen sc1"); E("s_mov_b64 exec, -1")
    Lb(l)
def core(L0):
    for t in range(8): E("ds_read_b128 %s, v2 offset:%d" % (FR(t), QL + 64 * t))
    for G in range(4):
        if L0:
            vgroup(4)
            E("s_waitcnt vmcnt(%d)" % min(63, len(vm) - 1 - [j for j, x in enumerate(vm) if x == 'K'][16 * G + 15]))
        if not L0 and G == 4 - (OPT['nq'] + 1) // 2: E("s_waitcnt vmcnt(0)")
        if G: extra = [None] * 3 + round_tile(2 * G - 2, G == 1) + round_tile(2 * G - 1, False)
        else:
            extra = []
            for c in range(4): extra += ["v_lshrrev_b32 v6, 2, v%d" % (8 + c), "v_bfi_b32 v6, v6, 0, s91", "v_or_b32 v%d, v6, v%d" % (HS[c], 8 + c)]
        for t in range(8):
            if G == 0: E("s_waitcnt lgkmcnt(%d)" % (7 - t))
            for d in range(2):
                T = 2 * G + d
                E("v_mfma_f32_16x16x32_bf16 %s, %s, %s, %s" % (vr(32 + 4 * T), ar(32 * T + 4 * t), FR(t), "0" if t == 0 else vr(32 + 4 * T)))
                for _ in range(2 if t >= 5 else 1):
                    if extra:
                        x = extra.pop(0)
                        if x: E(x)
        assert not extra
    if OPT['fine'] and not L0: E("s_memrealtime s[56:57]")
    lu = [u for u in range(64) if inlds(u)]
    nis = [0]
    def ldsread():
        if nis[0] >= len(lu): return
        u = lu[nis[0]]
        if L0: wait_tag('V%d' % u)
        E("ds_read_b128 %s, v3 offset:%d" % (vr(64 + 4 * (nis[0] % 4)), 4096 + lslot(u) * 1024)); nis[0] += 1
    for _ in range(4): ldsread()
    E("s_nop 3")
    for x in round_tile(6, False): E(x)
    for x in round_tile(7, False): E(x)
    E("v_mov_b32 v6, v12"); E("s_nop 1"); E("v_permlane16_swap_b32 v12, v6"); E("s_nop 1"); E("v_max_f32 v12, v12, v6")
    E("v_mov_b32 v6, v12"); E("s_nop 1"); E("v_permlane32_swap_b32 v12, v6"); E("v_mov_b32 v7, 0"); E("s_nop 0"); E("v_max_f32 v12, v12, v6")
    E("v_mul_f32 v14, s99, v12"); E("v_mov_b32 v6, 0")
    def soft(T):
        s = 32 + 4 * T
        fm = lambda a: "v_pk_fma_f32 %s, %s, s[98:99], v[14:15] op_sel:[0,1,0] op_sel_hi:[1,1,0] neg_lo:[0,0,1] neg_hi:[0,0,1]" % (vr(a, 2), vr(a, 2))
        ex = lambda a: "v_exp_f32 v%d, v%d" % (a, a)
        ad = lambda a: "v_pk_add_f32 v[6:7], v[6:7], %s" % vr(a, 2)
        return [[fm(s), fm(s + 2), ex(s), ex(s + 1)], [ex(s + 2), ex(s + 3), ad(s), "v_cvt_pk_bf16_f32 v%d, v%d, v%d" % (s, s, s + 1)],
                ["v_cvt_pk_bf16_f32 v%d, v%d, v%d" % (s + 1, s + 2, s + 3)], [ad(s + 2)]]
    def bmk(k):
        src = 32 + 4 * (k // 4) + ((k % 4) >> 1)
        return ["v_perm_b32 v%d, v%d, v%d, v%d" % (16 + 4 * (k & 1) + c, src, src, HS[c] if k & 1 else 8 + c) for c in range(4)]
    for g in soft(0):
        for x in g: E(x)
    for x in bmk(0): E(x)
    E("s_nop 0")
    if OPT['fine'] and not L0: E("s_memrealtime s[58:59]")
    for k in range(32):
        b = 16 + 4 * (k & 1)
        if L0: vgroup(2)
        if not L0 and k == OPT['kf']: eflag()
        if L0 and k == OPT['late']:
            worker(0, 0, lambda: (E("v_and_b32 v4, 15, v0"), E("v_lshlrev_b32 v4, 4, v4"), E("buffer_load_dword v4, v4, s[76:79], 0 offen sc1"))); mark['cnt2'] = len(vm)
        for hf in range(2):
            u = 2 * k + hf
            if inlds(u):
                n = lu.index(u)
                E("s_waitcnt lgkmcnt(%d)" % (nis[0] - 1 - n)); A = vr(64 + 4 * (n % 4))
            else:
                if L0: wait_tag('V%d' % u)
                A = vr(144 + 4 * (k - 4))
            acc = vr(24 + 4 * hf)
            E("v_mfma_f32_16x16x32_bf16 %s, %s, %s, %s" % (acc, A, vr(b), "0" if k == 0 else acc))
            if inlds(u): ldsread()
            if hf == 0:
                if k < 31:
                    for x in bmk(k + 1): E(x)
            elif k < 28:
                for x in soft(k // 4 + 1)[k % 4]: E(x)
    E("v_add_f32 v13, v6, v7")
    if OPT['fine'] and not L0: E("s_memrealtime s[60:61]")
    if L0:
        E("s_cmp_lg_u32 s7, 0"); E("s_cbranch_scc1 Lcnt2d")
        wmark('cnt2')
        E("v_and_b32 v6, 15, v0"); E("v_cmp_gt_u32 vcc, 8, v6"); E("v_mov_b32 v7, 24"); E("v_lshlrev_b32 v6, 4, v6"); E("v_cndmask_b32 v7, v7, 8, vcc")
        E("s_mov_b32 s98, 0"); Lb("Lcnt2")
        E("v_cmp_gt_u32 vcc, v7, v4"); E("s_cbranch_vccz Lcnt2d")
        E("buffer_load_dword v4, v6, s[76:79], 0 offen sc1"); E("s_waitcnt vmcnt(0)")
        E("s_add_u32 s98, s98, 1"); E("s_cmp_lt_u32 s98, 0x8000"); E("s_cbranch_scc1 Lcnt2")
        Lb("Lcnt2d")
stamp(); stamp_n[0] -= OPT['stamps']
core(True)
E("s_barrier")
eflag()
E("s_branch Lepi")
Lb("Lqpoll1")
if OPT['qr']: E("s_and_b32 s8, s2, 1"); E("s_mul_i32 s8, s8, 0x%x" % LSTEP); E("s_add_u32 s90, s90, s8")
def qtrig():
    E("s_cmp_eq_u32 s12, 0"); E("s_cbranch_scc1 Lnqt")
    E("s_lshr_b32 s8, s2, 3"); E("s_and_b32 s8, s8, 31"); E("s_min_u32 s8, s8, 27"); E("s_lshl_b32 s8, s8, 7"); E("s_add_u32 s8, s8, s56"); E("s_add_u32 s57, s8, 0x%x" % XV2); E("v_mov_b32 v59, 0")
    ppoll(1, lambda i: ["buffer_load_ushort v60, v59, s[64:67], s57 offen sc1"], lambda i: E("v_cmp_eq_u16 vcc, -1, v60"), lambda i: None)
    Lb("Lnqt")
if OPT['qt']: worker(0, 0, qtrig)
worker(0, 0, lambda: ppoll(OPT['nq'], lambda i: ["buffer_load_dwordx4 %s, v1, s[64:67], s90 offen sc1" % vr(60 - 4 * i)],
                           lambda i: check(range(60 - 4 * i, 64 - 4 * i)), lambda i: E("ds_write_b128 v1, %s offset:%d" % (vr(60 - 4 * i), QL)), 0, OPT['zq']))
bar()
stamp()
core(False)
if OPT['pf']:
    E("s_cmp_lg_u32 s12, 2"); E("s_cbranch_scc1 Lepi")
    E("s_lshl_b32 s8, s7, 3"); E("s_add_u32 s8, s8, s4"); E("s_lshl_b32 s8, s8, 5"); E("s_add_u32 s8, s8, s86"); E("s_add_u32 s57, s8, 0x%x" % FLG)
    E("v_and_b32 v78, 7, v0"); E("v_lshlrev_b32 v78, 2, v78"); E("v_mov_b32 v79, -1")
    E("buffer_load_dword v79, v78, s[64:67], s57 offen sc1")
Lb("Lepi")
E("v_mov_b32 v6, v13"); E("s_nop 1"); E("v_permlane16_swap_b32 v13, v6"); E("s_nop 1"); E("v_add_f32 v13, v13, v6")
E("v_mov_b32 v6, v13"); E("s_nop 1"); E("v_permlane32_swap_b32 v13, v6"); E("s_nop 1"); E("v_add_f32 v13, v13, v6")
E("v_bfe_u32 v6, v0, 3, 1"); E("v_lshlrev_b32 v7, 10, v6"); E("v_bfe_u32 v1, v0, 4, 2"); E("v_lshl_add_u32 v7, v1, 5, v7")
E("v_and_b32 v1, 7, v0"); E("v_lshl_add_u32 v7, v1, 2, v7"); E("s_lshl_b32 s8, s7, 11"); E("v_add_u32 v7, s8, v7")
E("s_lshl_b32 s8, s7, 4"); E("v_lshl_add_u32 v6, v6, 3, s8")
for hf in range(2):
    for r in range(4): E("ds_write_b32 v7, v%d offset:%d" % (24 + 4 * hf + r, OM + (r * 2 + hf) * 128))
E("s_mov_b64 exec, 0x101"); E("ds_write_b64 v6, v[12:13] offset:%d" % ML); E("s_mov_b64 exec, -1")
E("v_lshlrev_b32 v6, 2, v0"); E("v_lshrrev_b32 v2, 7, v0"); E("v_lshlrev_b32 v3, 3, v2")
E("v_lshlrev_b32 v1, 10, v2"); E("v_bfe_u32 v7, v0, 6, 1"); E("v_lshl_add_u32 v1, v7, 7, v1"); E("v_bfe_u32 v7, v0, 2, 2"); E("v_lshl_add_u32 v1, v7, 8, v1")
E("v_bfe_u32 v7, v0, 4, 2"); E("v_lshl_add_u32 v1, v7, 5, v1"); E("v_and_b32 v7, 3, v0"); E("v_lshl_add_u32 v1, v7, 3, v1")
E("v_lshlrev_b32 v7, 6, v2"); E("s_add_u32 s8, s84, s86"); E("s_add_u32 s9, s85, s86")
bar()
for w in range(4): E("ds_read_b64 %s, v3 offset:%d" % (vr(40 + 2 * w, 2), ML + 16 * w))
for w in range(4): E("ds_read_b64 %s, v1 offset:%d" % (vr(32 + 2 * w, 2), OM + 2048 * w))
E("s_waitcnt lgkmcnt(4)")
E("v_max_f32 v26, v40, v42"); E("v_max3_f32 v26, v26, v44, v46")
for w in range(4): E("v_sub_f32 v%d, v%d, v26" % (40 + 2 * w, 40 + 2 * w)); E("v_mul_f32 v%d, s99, v%d" % (40 + 2 * w, 40 + 2 * w))
for w in range(4): E("v_exp_f32 v%d, v%d" % (40 + 2 * w, 40 + 2 * w))
E("s_waitcnt lgkmcnt(0)")
E("v_mul_f32 v24, v40, v32"); E("v_mul_f32 v25, v40, v33"); E("v_mul_f32 v27, v40, v41")
for w in range(1, 4):
    E("v_fmac_f32 v24, v%d, v%d" % (40 + 2 * w, 32 + 2 * w)); E("v_fmac_f32 v25, v%d, v%d" % (40 + 2 * w, 33 + 2 * w)); E("v_fmac_f32 v27, v%d, v%d" % (40 + 2 * w, 41 + 2 * w))
E("v_cvt_pk_bf16_f32 v24, v24, v25"); E("v_min_u32 v24, -2, v24"); E("v_min_u32 v26, -2, v26"); E("v_min_u32 v27, -2, v27")
E("buffer_store_dword v24, v6, s[64:67], s8 offen sc1")
E("s_and_b32 s10, s7, 1"); E("s_cmp_lg_u32 s10, 0"); E("s_cbranch_scc1 Lnoml")
E("s_mov_b64 exec, 1"); E("buffer_store_dwordx2 v[26:27], v7, s[64:67], s9 offen sc1"); E("s_mov_b64 exec, -1")
Lb("Lnoml")
stamp()
if OPT['fine']:
    for i in range(3):
        l = lab("fs"); E("s_cmp_lg_u32 s7, 0"); E("s_cbranch_scc1 " + l); E("s_cmp_lg_u32 s3, 1"); E("s_cbranch_scc1 " + l)
        E("v_mov_b32 v6, s%d" % (56 + 2 * i)); E("s_lshl_b32 s9, s2, 8"); E("s_add_u32 s9, s9, 0x%x" % (STP + 128 + (20 + i) * 4)); E("v_mov_b32 v7, 0")
        E("s_mov_b64 exec, 1"); E("buffer_store_dword v6, v7, s[64:67], s9 offen"); E("s_mov_b64 exec, -1"); Lb(l)

if OPT['dbg']:
    E("s_cmp_lg_u32 s3, 0"); E("s_cbranch_scc1 Ldbg1"); dbgt(1); Lb("Ldbg1")
E("s_cmp_eq_u32 s12, 1"); E("s_cbranch_scc1 Lg")
E("s_cmp_eq_u32 s12, 0"); E("s_cbranch_scc1 Lq")
E("s_cmp_eq_u32 s12, 3"); E("s_cbranch_scc1 Lf")
E("s_mov_b32 s59, 0")
if OPT['pf']:
    E("s_cmp_eq_u32 s3, 0"); E("s_cbranch_scc1 Lpfd")
    if OPT['stamps']: E("s_waitcnt vmcnt(3)"); E("s_cmp_eq_u32 s7, 0"); E("s_cbranch_scc1 Lpfc")
    E("s_waitcnt vmcnt(2)"); E("s_bitcmp0_b32 s7, 0"); E("s_cbranch_scc1 Lpfc"); E("s_waitcnt vmcnt(1)")
    Lb("Lpfc"); E("v_cmp_eq_u32 vcc, -1, v79"); E("s_cmp_eq_u64 vcc, 0"); E("s_cselect_b32 s59, 1, 0")
    Lb("Lpfd")
lane("v15"); E("v_lshlrev_b32 v1, 3, v15"); E("v_and_b32 v2, 56, v1"); E("s_mul_i32 s8, s7, %d" % PITCH); E("v_add_u32 v3, s8, v1")
E("s_lshl_b32 s8, s7, 3"); E("s_add_u32 s8, s8, s4"); E("s_lshl_b32 s9, s8, 13"); E("s_add_u32 s9, s9, s86"); E("s_lshl_b32 s10, s88, 9"); E("s_add_u32 s9, s9, s10"); E("s_add_u32 s10, s9, 4096")
E("s_lshl_b32 s11, s8, 7"); E("s_add_u32 s11, s11, s86"); E("s_add_u32 s11, s11, 0x%x" % MLB); E("s_lshl_b32 s8, s88, 6"); E("s_add_u32 s11, s11, s8")
OBB = [44, 62]
E("s_lshl_b32 s58, s4, 1"); E("s_add_u32 s58, s58, s88"); E("s_lshl_b32 s58, s58, 3"); E("s_add_u32 s58, s58, s14"); E("s_lshl_b32 s58, s58, 6")
E("s_add_u32 s58, s58, s86"); E("s_add_u32 s58, s58, 0x%x" % EF); E("v_mov_b32 v78, 0")
def eflag2(off):
    E("s_cmp_eq_u32 s7, 0"); E("s_cselect_b64 exec, 1, 0"); E("buffer_store_dword v78, v78, s[64:67], s58 offen offset:%d sc1" % off); E("s_mov_b64 exec, -1")
if OPT['la']:
    E("v_bfe_u32 v72, v0, 4, 2"); E("v_and_b32 v73, 15, v0"); E("v_add_u32 v73, s89, v73"); E("v_mul_u32_u24 v72, 896, v72"); E("v_lshl_add_u32 v73, v73, 1, v72")
    E("s_cmp_eq_u32 s3, 0"); E("s_cbranch_scc1 Lra"); E("s_add_u32 s8, s56, 0x%x" % XV2)
    E("buffer_load_ushort v72, v73, s[64:67], s8 offen sc1"); E("s_branch Lrb")
    Lb("Lra"); E("buffer_load_ushort v72, v73, s[68:71], 0 offen"); Lb("Lrb")
def obl(i): return ["buffer_load_dwordx2 %s, v2, s[64:67], s11 offen sc1" % vr(OBB[i] + 16, 2)] + \
    ["buffer_load_dwordx2 %s, v1, s[64:67], %s offen offset:%d sc1" % (vr(OBB[i] + 2 * s, 2), "s9" if s < 4 else "s10", (s % 4) * 1024) for s in range(8)]
D3 = ["quad_perm:[1,0,3,2] row_mask:0xf bank_mask:0xf", "quad_perm:[2,3,0,1] row_mask:0xf bank_mask:0xf", "row_half_mirror row_mask:0xf bank_mask:0xf"]
def obs(i):
    o = OBB[i]
    if OPT['xe'] & 1: eflag2(0)
    def unp(s):
        for q in range(2): E("v_lshlrev_b32 v%d, 16, v%d" % (16 + 2 * s + q, o + 2 * s + q)); E("v_and_b32 v%d, 0xffff0000, v%d" % (o + 2 * s + q, o + 2 * s + q))
    E("v_max_f32_dpp v6, v%d, v%d " % (o + 16, o + 16) + D3[0]); unp(0)
    E("v_max_f32_dpp v6, v6, v6 " + D3[1]); unp(1)
    E("v_max_f32_dpp v6, v6, v6 " + D3[2]); unp(2)
    E("v_sub_f32 v6, v%d, v6" % (o + 16)); E("v_mul_f32 v6, s99, v6"); E("v_exp_f32 v6, v6"); unp(3)
    E("v_mul_f32 v7, v6, v%d" % (o + 17)); unp(4)
    E("v_add_f32_dpp v7, v7, v7 " + D3[0]); unp(5)
    E("v_add_f32_dpp v7, v7, v7 " + D3[1]); unp(6)
    E("v_add_f32_dpp v7, v7, v7 " + D3[2]); unp(7)
    for s in range(8): E("v_readlane_b32 s%d, v6, %d" % (16 + s, s))
    E("v_rcp_f32 v7, v7")
    for s in range(8):
        for q in range(4):
            src = (16 if q % 2 == 0 else o) + 2 * s + q // 2
            if s == 0: E("v_mul_f32 v%d, s16, v%d" % (32 + q, src))
            else: E("v_fmac_f32 v%d, s%d, v%d" % (32 + q, 16 + s, src))
if OPT['ef']:
    E("s_lshl_b32 s8, s7, 3"); E("s_add_u32 s8, s8, s4"); E("s_lshl_b32 s8, s8, 5"); E("s_add_u32 s8, s8, s86"); E("s_add_u32 s16, s8, 0x%x" % FLG); E("v_lshrrev_b32 v6, 1, v2")
    E("s_cmp_eq_u32 s59, 1"); E("s_cbranch_scc1 Lpfs")
    ppoll(1, lambda i: ["buffer_load_dword v7, v6, s[64:67], s16 offen sc1"], lambda i: E("v_cmp_eq_u32 vcc, -1, v7"), lambda i: None)
    E("s_cmp_eq_u32 s3, 0"); E("s_cbranch_scc1 Lnodw")
    if OPT['dw']: E("s_sleep %d" % OPT['dw'])
    E("s_branch Lnodw"); Lb("Lpfs")
    if OPT['pd']: E("s_sleep %d" % OPT['pd'])
    Lb("Lnodw")
    if OPT['dw0']: E("s_sleep %d" % OPT['dw0'])
def ecount(base):
    if not OPT['ec']: return
    E("s_lshl_b32 s8, s14, 7"); E("s_add_u32 s8, s8, s15"); E("s_add_u32 s8, s8, s86"); E("s_add_u32 s8, s8, 0x%x" % (base + 0x4000))
    E("v_mov_b32 v4, 1"); E("v_mov_b32 v5, 0"); E("s_mov_b64 exec, 1"); E("buffer_atomic_add v4, v5, s[64:67], s8 offen sc1"); E("s_mov_b64 exec, -1")
ppoll(OPT['no'], obl, lambda i: check(range(OBB[i], OBB[i] + 18)), obs, OPT['io'], OPT['zo'])
for q in range(4): E("v_mul_f32 v%d, v%d, v7" % (32 + q, 32 + q))
for q in range(2): E("v_cvt_pk_bf16_f32 v%d, v%d, v%d" % (36 + q, 32 + 2 * q, 33 + 2 * q))
E("ds_write_b64 v3, v[36:37] offset:%d" % ACT1)
stamp()
def dec1(lo, t):
    E("v_lshrrev_b32 v%d, 31, v%d" % (t, lo)); E("v_cvt_f32_i32 v%d, v%d" % (lo, lo)); E("v_add_u32 v%d, v%d, v%d" % (t, t, lo + 1))
    E("v_cvt_f32_i32 v%d, v%d" % (t, t)); E("v_fmac_f32 v%d, s97, v%d" % (t, lo))
def addx(t): bf16r("v%d" % t, "v%d" % t); E("v_add_f32 v150, v%d, v150" % t); bf16r("v150", "v150")
def xatomic(base):
    E("v_rndne_f32 v25, v24"); E("v_sub_f32 v26, v24, v25"); E("v_cvt_i32_f32 v25, v25"); E("v_mul_f32 v26, s96, v26"); E("v_cvt_i32_f32 v24, v26")
    E("v_lshlrev_b32 v1, 12, v1"); E("v_lshl_add_u32 v1, v2, 3, v1")
    E("v_ashrrev_i32 v26, 31, v24"); E("v_add_u32 v25, v25, v26"); E("v_and_or_b32 v24, v24, s95, 1")
    E("s_lshl_b32 s8, s89, 3"); E("s_add_u32 s8, s8, s86"); E("s_add_u32 s8, s8, 0x%x" % base)
    if OPT['la']:
        P = 16 if base == XS1 else 8; l = lab("xa")
        E("v_mov_b32 v74, v24"); E("v_mov_b32 v75, v25")
        E("buffer_atomic_add_x2 v[24:25], v1, s[64:67], s8 offen sc0 sc1")
        E("s_mov_b32 s98, 0"); E("s_add_u32 s8, s86, 0x%x" % (XV1 if base == XS1 else XV2))
        Lb(l + "r"); E("s_waitcnt vmcnt(0)")
        if base == XS2:
            E("v_cmp_eq_u16 vcc, -1, v72"); E("s_cbranch_vccz " + l + "k")
            E("buffer_load_ushort v72, v73, s[64:67], s11 offen sc1")
            E("s_add_u32 s98, s98, 1"); E("s_cmp_lt_u32 s98, 0x4000"); E("s_cbranch_scc1 " + l + "r"); E("s_waitcnt vmcnt(0)")
            Lb(l + "k")
        E("v_add_co_u32 v24, vcc, v24, v74"); E("v_addc_co_u32 v25, vcc, v25, v75, vcc")
        E("v_and_b32 v76, %d, v24" % P); E("v_lshlrev_b32 v72, 16, v72")
        dec1(24, 77); E("v_cmp_ne_u32 vcc, 0, v76")
        bf16r("v77", "v77"); E("v_add_f32 v72, v77, v72"); E("v_cvt_pk_bf16_f32 v72, v72, v72")
        E("s_mov_b64 exec, vcc")
        if base == XS2:
            E("s_cmp_eq_u32 s3, 0"); E("s_cbranch_scc1 " + l + "p")
            E("buffer_store_short v72, v73, s[72:75], 0 offen"); E("s_branch " + l + "e"); Lb(l + "p")
        E("v_min_u16 v72, -2, v72")
        for r in range(OPT['rp']):
            if r: E("s_add_u32 s8, s8, 0x1000")
            E("buffer_store_short v72, v73, s[64:67], s8 offen sc1")
        Lb(l + "e"); E("s_mov_b64 exec, -1")
        return
    if base == XS2 and OPT['fin']:
        E("s_cmp_eq_u32 s3, 0"); E("s_cbranch_scc1 Lplain")
        E("v_mov_b32 v148, v24"); E("v_mov_b32 v149, v25")
        E("buffer_atomic_add_x2 v[24:25], v1, s[64:67], s8 offen sc0 sc1")
        E("s_mov_b32 s98, 0")
        Lb("Lre"); E("s_waitcnt vmcnt(0)")
        E("v_and_b32 v156, 16, v152"); E("v_cmp_eq_u32 vcc, 0, v156"); E("s_cbranch_vccz Lok")
        E("buffer_load_dwordx2 v[152:153], v146, s[64:67], s11 offen sc1")
        E("s_add_u32 s98, s98, 1"); E("s_cmp_lt_u32 s98, 0x4000"); E("s_cbranch_scc1 Lre"); E("s_waitcnt vmcnt(0)")
        Lb("Lok")
        E("v_add_co_u32 v24, vcc, v24, v148"); E("v_addc_co_u32 v25, vcc, v25, v149, vcc")
        E("v_and_b32 v158, 8, v24")
        dec1(152, 156); dec1(24, 157); addx(156)
        E("v_cmp_ne_u32 vcc, 0, v158")
        bf16r("v157", "v157"); E("v_add_f32 v150, v150, v157"); E("v_cvt_pk_bf16_f32 v150, v150, v150")
        E("s_mov_b64 exec, vcc")
        E("buffer_store_short v150, v147, s[72:75], 0 offen")
        E("s_mov_b64 exec, -1")
        stamp()
        E("s_branch Lend")
        Lb("Lplain")
    for r in range(OPT['R']):
        if r: E("s_add_u32 s8, s8, 0x4000")
        E("buffer_atomic_add_x2 v[24:25], v1, s[64:67], s8 offen sc1")
dense(8, ACT1, RW, (8, 12, 16, 20, 32, 36, 40)); xatomic(XS1)
stamp()
E("s_cmp_lg_u32 s88, 0"); E("s_cbranch_scc1 Lnexts")
if OPT['la']: E("s_add_u32 s11, s86, 0x%x" % XV1); E("s_add_u32 s11, s11, s56")
elif OPT['fin']:
    E("s_cmp_eq_u32 s3, 0"); E("s_cbranch_scc1 Lfa")
    E("v_bfe_u32 v144, v0, 4, 2"); E("v_and_b32 v145, 15, v0"); E("v_add_u32 v145, s89, v145")
    E("v_lshlrev_b32 v146, 12, v144"); E("v_lshl_add_u32 v146, v145, 3, v146")
    E("v_mul_u32_u24 v147, 896, v144"); E("v_lshl_add_u32 v147, v145, 1, v147")
    E("s_mov_b32 s8, 0x%x" % XS1); E("buffer_load_dwordx2 v[152:153], v146, s[64:67], s8 offen sc1")
    E("s_mov_b32 s9, 0x%x" % XS2); E("buffer_load_dwordx2 v[154:155], v146, s[64:67], s9 offen sc1")
    E("buffer_load_ushort v150, v147, s[68:71], 0 offen")
    E("s_mov_b32 s11, 0x%x" % (XS1 + LSTEP))
    E("s_waitcnt vmcnt(0)"); E("v_lshlrev_b32 v150, 16, v150")
    dec1(152, 156); addx(156); dec1(154, 157); addx(157)
    Lb("Lfa")
lane("v15"); E("v_min_u32 v1, 27, v15"); E("v_lshlrev_b32 v1, 4, v1")
E("s_lshl_b32 s8, s7, 12"); E("s_mul_i32 s9, s4, 448"); E("s_add_u32 s9, s9, s8"); E("s_add_u32 s9, s9, s86"); E("s_add_u32 s9, s9, 0x%x" % AB)
E("s_mul_i32 s8, s7, %d" % PITCH); E("v_add_u32 v2, s8, v1")
if OPT['hr']: E("s_and_b32 s8, s14, 1"); E("s_lshl_b32 s8, s8, 14"); E("s_add_u32 s9, s9, s8")
E("s_sub_u32 s10, s9, 0x%x" % (AB - AU))
def absucc(i):
    if OPT['xe'] & 2: eflag2(32)
    if OPT['la']: E("buffer_load_ushort v72, v73, s[64:67], s11 offen sc1")
    elif OPT['fin']:
        E("s_cmp_eq_u32 s3, 0"); E("s_cbranch_scc1 Lfb"); E("buffer_load_dwordx2 v[152:153], v146, s[64:67], s11 offen sc1"); Lb("Lfb")
    for q in range(4):
        E("v_lshlrev_b32 v16, 16, v%d" % (64 + q)); E("v_and_b32 v17, 0xffff0000, v%d" % (64 + q)); E("v_lshlrev_b32 v18, 16, v%d" % (68 + q)); E("v_and_b32 v19, 0xffff0000, v%d" % (68 + q))
        E("v_pk_mul_f32 v[16:17], v[16:17], v[18:19]"); E("v_cvt_pk_bf16_f32 v%d, v16, v17" % (20 + q))
    E("ds_write_b128 v2, v[20:23] offset:%d" % ACT0)
if OPT['ht']:
    E("s_mul_i32 s8, s7, 896"); E("s_add_u32 s8, s8, s11"); E("s_lshl_b32 s16, s89, 1"); E("s_add_u32 s16, s16, s8"); E("v_mov_b32 v64, 0")
    ppoll(1, lambda i: ["buffer_load_ushort v65, v64, s[64:67], s16 offen sc1"], lambda i: E("v_cmp_eq_u16 vcc, -1, v65"), lambda i: None)
ppoll(1, lambda i: ["buffer_load_dwordx4 v[64:67], v1, s[64:67], s9 offen sc1", "buffer_load_dwordx4 v[68:71], v1, s[64:67], s10 offen sc1"],
      lambda i: check(range(64, 72)), absucc, OPT['ia'], OPT['za'])
stamp()
dense(7, ACT0, RW + 32); xatomic(XS2)
stamp()
E("s_branch Lnext")
Lb("Lg")
if OPT['la']: E("s_add_u32 s91, s86, 0x%x" % XV1); xpoll("s91", 1)
else:
    xinit()
    E("s_cmp_eq_u32 s3, 0"); E("s_cbranch_scc1 Lg1")
    xfront([("0x%x" % XS2, 8)])
    Lb("Lg1")
    E("s_add_u32 s91, s86, 0x%x" % XS1)
    xtrig("s91", 16, OPT['ig'])
    xfront([("s91", 16)], 0, 1, OPT['l2'])
stamp()
xunpack(1 - OPT['la']); layernorm(ACT0)
dense(14, ACT0)
E("s_bitcmp1_b32 s2, 0"); E("s_cbranch_scc1 Lnogelu")
bf16r("v24", "v24")
k2 = -2 * 0.7978845608028654 * 1.4426950408889634
E("v_mul_f32 v26, v24, v24"); E("v_mov_b32 v25, %s" % f32(k2)); E("v_fmac_f32 v25, %s, v26" % f32(k2 * 0.044715))
E("v_mul_f32 v25, v25, v24"); E("v_exp_f32 v25, v25"); E("s_nop 0"); E("v_add_f32 v25, 1.0, v25"); E("v_rcp_f32 v25, v25"); E("s_nop 0")
E("v_mul_f32 v24, v25, v24")
Lb("Lnogelu")
E("v_lshlrev_b32 v1, 12, v1"); E("v_lshl_add_u32 v1, v2, 1, v1")
E("v_mov_b32_dpp v26, v24 quad_perm:[1,0,3,2] row_mask:0xf bank_mask:0xf")
E("s_add_u32 s8, s86, s87"); E("s_mov_b32 exec_lo, 0x55555555"); E("s_mov_b32 exec_hi, 0x55555555")
E("v_cvt_pk_bf16_f32 v24, v24, v26"); E("v_min_u32 v24, -2, v24")
E("buffer_store_dword v24, v1, s[64:67], s8 offen sc1")
if OPT['hr']: E("s_add_u32 s8, s8, 0x4000"); E("buffer_store_dword v24, v1, s[64:67], s8 offen sc1")
E("s_mov_b64 exec, -1")
stamp()
E("s_branch Lnextg")
Lb("Lq")
E("s_cmp_lg_u32 s3, 0"); E("s_cbranch_scc1 Lend")
if OPT['la']: xpoll("0x%x" % XV2, 0)
else:
    xinit()
    xtrig("0x%x" % XS2, 8, OPT['it'])
    xfront([("0x%x" % XS1, 16), ("0x%x" % XS2, 8)], 0, 1, OPT['l2'])
stamp()
xunpack(1 - OPT['la']); layernorm(ACT0)
E("s_mov_b32 s82, 0x%x" % QB1)
qbody(OPT['qr'])
stamp()
E("s_branch Lnext")
Lb("Lf")
E("s_cmp_eq_u32 s3, 0"); E("s_cbranch_scc1 Lnexts")
if OPT['fin']: E("s_branch Lend")
E("s_cmp_lg_u32 s2, 255"); E("s_cbranch_scc1 Lend")
xinit()
xfront([("0x%x" % XS1, 16), ("0x%x" % XS2, 8)])
xfront([("0x%x" % (XS1 + LSTEP), 16)], OPT['lazy'])
xfront([("0x%x" % (XS2 + LSTEP), 8)], 0, OPT['nx'])
E("v_lshrrev_b32 v1, 1, v1"); E("v_lshrrev_b32 v2, 1, v2"); E("s_mul_i32 s8, s7, 896")
E("buffer_store_dwordx2 v[8:9], v1, s[72:75], s8 offen")
E("s_mov_b32 exec_hi, 0xffff")
E("buffer_store_dwordx2 v[10:11], v2, s[72:75], s8 offen")
stamp()
dbgt(2)
E("s_branch Lend")
Lb("Lnexts")
if OPT['iq']: E("s_cmp_lg_u32 s3, 0"); E("s_cbranch_scc1 Lend"); E("s_sleep %d" % OPT['iq'])
Lb("Lnextg")
if OPT['iq']: E("s_cmp_lg_u32 s3, 0"); E("s_cbranch_scc1 Lend"); E("s_sleep %d" % OPT['iq'])
Lb("Lnext")
E("s_cmp_lg_u32 s3, 0"); E("s_cbranch_scc1 Lend")
E("s_waitcnt vmcnt(0)")
E("s_mov_b32 s3, 1"); E("s_mov_b32 s86, 0x%x" % LSTEP); E("s_mov_b32 s82, 0x%x" % QB1)
E("s_branch Lloop")

Lb("Lend")
E("s_endpgm")
out += ['.section .rodata,"a"', ".p2align 6", ".amdhsa_kernel %s_kernel" % NAME,
        "  .amdhsa_next_free_vgpr 512", "  .amdhsa_next_free_sgpr 102", "  .amdhsa_accum_offset 256",
        "  .amdhsa_group_segment_fixed_size 0", "  .amdhsa_kernarg_size 96", "  .amdhsa_user_sgpr_count 2",
        "  .amdhsa_user_sgpr_kernarg_segment_ptr 1", "  .amdhsa_system_sgpr_workgroup_id_x 1", ".end_amdhsa_kernel"]
open(sys.argv[1], "w").write("\n".join(out) + "\n")
```

```python
import sys, struct
NAME = "interleave_layers__gqa_block_cached__geglu_ffn__decode"
OPT = dict(pf=0, pd=0, xe=0, xd=10, xq=10, hr=0, qr=0, ht=3, qt=0, rp=2, la=1, lt=1, fin=1, nt=1, stamps=0, p1=34, pq=52, pw=70, vpre=16, lazy=8, k0=0, k1=6, k2=6, k3=4, trig=1, wnt=1, dbg=0, fine=0, late=8, R=1, np=1, nq=1, no=1, nx=1, rtt=21, iq=0, zq=0, io=0, zo=0, ig=0, it=0, zt=0, ia=0, za=0, ef=1, kf=24, dw=0, dw0=0, ec=0, l2=0, l2o=0, cnt=0, map=1, lay=3, th=25, gm=0, X=24)
for a in sys.argv[2:]:
    k, v = a.split('='); OPT[k] = int(v)
out = []
SS, SW, ST = [(18, 16, 13), (13, 16, 18), (13, 19, 16), (15, 13, 18), (16, 19, 13), (18, 13, 15)][OPT['lay']]
def E(s): out.append("    " + s)
def Lb(s): out.append(s + ":")
def f32(x): return "0x%08x" % struct.unpack('<I', struct.pack('<f', x))[0]
NT = ["", " nt", " sc1 nt", " sc0 sc1 nt", " sc0 nt", " sc1"][OPT['nt']]; WNT = ["", " nt"][OPT['wnt']]
NLDSV = 36; VBASE = 16384; LDS_TOTAL = 163840
ACT0 = 0; OM = 0; ACT1 = 8192; QL = 8192; XRES = 12544; ML = 16128; QF = 16256; PITCH = 1088
OB = 0; XS1 = 0x60000; XS2 = 0x70000; AB = 0x54000; MLB = 0x5C000; QB1 = 0x48000; FLG = 0x5D000; AU = 0x40000; QB0 = 0x100000; LSTEP = 0x80000; STP = 0x300000; EF = 0x58000; XV1 = 0x50000; XV2 = 0x52000; assert OPT['rp'] <= 2
RW = 80
vm = []
def VM(tag, s): vm.append(tag); E(s)
def wait_tag(tag):
    idx = max(i for i, t in enumerate(vm) if t == tag)
    E("s_waitcnt vmcnt(%d)" % min(len(vm) - 1 - idx, 63))
uid = [0]
def lab(p): uid[0] += 1; return "L%s%d" % (p, uid[0])
stamp_n = [0]
def stamp(wave=0):
    if not OPT['stamps']: return
    n = stamp_n[0]; stamp_n[0] += 1; l = lab("st")
    E("s_cmp_lg_u32 s7, %d" % wave); E("s_cbranch_scc1 " + l)
    E("s_memrealtime s[8:9]"); E("s_waitcnt lgkmcnt(0)")
    E("v_mov_b32 v6, s8"); E("s_lshl_b32 s9, s2, 8"); E("s_lshl_b32 s8, s3, 7"); E("s_add_u32 s9, s9, s8")
    E("s_add_u32 s9, s9, 0x%x" % (STP + n * 4)); E("v_mov_b32 v7, 0")
    E("s_mov_b64 exec, 1"); E("buffer_store_dword v6, v7, s[64:67], s9 offen"); E("s_mov_b64 exec, -1")
    Lb(l)
def bf16r(dst, src): E("v_cvt_pk_bf16_f32 %s, %s, %s" % (dst, src, src)); E("v_lshlrev_b32 %s, 16, %s" % (dst, dst))
def vr(a, n=4): return "v[%d:%d]" % (a, a + n - 1)
def ar(a, n=4): return "a[%d:%d]" % (a, a + n - 1)
def poll(loads, chk, sleep=0, l2=0):
    l = lab("poll")
    if l2:
        for s in loads: E(s.replace(" sc1", ""))
        E("s_waitcnt vmcnt(0)"); chk()
        E("s_cbranch_vccz %sd" % l)
    E("s_mov_b32 s98, 0"); Lb(l)
    for s in loads: E(s)
    E("s_waitcnt vmcnt(0)"); chk()
    E("s_cbranch_vccz %sd" % l)
    if sleep: E("s_sleep %d" % sleep)
    E("s_add_u32 s98, s98, 1"); E("s_cmp_lt_u32 s98, 0x8000"); E("s_cbranch_scc1 " + l)
    Lb(l + "d")
def ppoll(n, loads, chk, succ, ini=0, slp=0):
    l = lab("pp"); m = len(loads(0))
    E("s_mov_b32 s98, 0")
    if ini: E("s_sleep %d" % ini)
    for i in range(n):
        if i: E("s_sleep %d" % (OPT['rtt'] // n))
        for x in loads(i): E(x)
    Lb(l)
    for i in range(n):
        E("s_waitcnt vmcnt(%d)" % ((n - 1) * m)); chk(i)
        E("s_cbranch_vccz %s_%d" % (l, i))
        if slp: E("s_sleep %d" % slp)
        for x in loads(i): E(x)
    E("s_add_u32 s98, s98, 1"); E("s_cmp_lt_u32 s98, 0x4000"); E("s_cbranch_scc1 " + l)
    for i in range(n - 1, -1, -1):
        Lb("%s_%d" % (l, i)); succ(i)
        if i: E("s_branch %sd" % l)
    Lb(l + "d")
def check(regs, t="v15"):
    r = list(regs)
    E("v_max3_u32 %s, v%d, v%d, v%d" % (t, r[0], r[1], r[2])); r = r[3:]
    while len(r) >= 2: E("v_max3_u32 %s, %s, v%d, v%d" % (t, t, r[0], r[1])); r = r[2:]
    if r: E("v_max_u32 %s, %s, v%d" % (t, t, r[0]))
    E("v_cmp_eq_u32 vcc, -1, %s" % t)
kpos = [0]
def kload(n):
    T, t = n // 8, n % 8
    E("s_add_u32 s10, s80, %d" % (T << ST))
    VM('K', "buffer_load_dwordx4 %s, v4, s[40:43], s10 offen offset:%d%s" % (ar(4 * n), 64 * t, NT))
def kgroup(cnt, cond=True):
    l = lab("kg")
    if cond: E("s_cmp_lg_u32 s3, 0"); E("s_cbranch_scc1 " + l)
    for _ in range(cnt): kload(kpos[0]); kpos[0] += 1
    if cond: Lb(l)
def inlds(u): return u % 2 == 0 or u < 8
def lslot(u): return u if u < 8 else 8 + (u // 2 - 4)
def vload(u):
    T, r, hf = u // 8, (u // 2) % 4, u % 2
    E("s_add_u32 s10, s80, %d" % (T << ST))
    io = r * 512 + hf * 256
    if inlds(u):
        E("s_add_u32 m0, s81, %d" % (lslot(u) * 1024 + 4096 - io)); E("s_nop 0")
        VM('V%d' % u, "buffer_load_dwordx4 v5, s[44:47], s10 offen offset:%d%s lds" % (io, NT))
    else:
        VM('V%d' % u, "buffer_load_dwordx4 %s, v5, s[44:47], s10 offen offset:%d%s" % (vr(144 + 4 * (u // 2 - 4)), io, NT))
vpos = [0]
def vgroup(cnt):
    cnt = min(cnt, 64 - vpos[0])
    for _ in range(cnt): vload(vpos[0]); vpos[0] += 1
def lane(dst): E("v_and_b32 %s, 63, v0" % dst)
def xaddr():
    lane("v15"); E("v_lshlrev_b32 v1, 4, v15"); E("v_min_u32 v2, 47, v15"); E("v_lshlrev_b32 v2, 4, v2"); E("v_add_u32 v2, 1024, v2")
    E("s_mul_i32 s8, s7, 896"); E("s_add_u32 s8, s8, %d" % XRES)
    E("v_lshrrev_b32 v3, 1, v1"); E("v_add_u32 v3, s8, v3"); E("v_lshrrev_b32 v14, 1, v2"); E("v_add_u32 v14, s8, v14")
def xinit():
    xaddr()
    E("ds_read_b64 v[8:9], v3"); E("ds_read_b64 v[10:11], v14")
    E("v_lshlrev_b32 v6, 1, v1"); E("v_lshlrev_b32 v7, 1, v2")
def xtrig(off, P, ini):
    if not OPT['trig']: return
    E("s_add_u32 s9, s15, %s" % off); E("s_and_b32 s8, s2, 7"); E("s_mul_i32 s8, s8, 3"); E("s_bfe_u32 s10, s2, 0x20003"); E("s_add_u32 s8, s8, s10")
    if OPT['ec']:
        E("s_add_u32 s8, s4, s13"); E("s_and_b32 s8, s8, 7"); E("s_cmp_eq_u32 s8, 7"); E("s_cselect_b32 s8, s10, s8"); E("s_add_u32 s9, s9, 0x4000")
    E("s_lshl_b32 s8, s8, 7"); E("s_add_u32 s9, s9, s8"); E("v_mov_b32 v25, 0")
    ppoll(OPT['np'], lambda i: ["buffer_load_dword v%d, v25, s[64:67], s9 offen sc1" % (72 + i)],
          lambda i: (E("v_and_b32 v24, %d, v%d" % (P, 72 + i)), E("v_cmp_eq_u32 vcc, 0, v24")), lambda i: None, ini, OPT['zt'])
def xfront(lst, sleep=0, pipe=1, l2=0):
    loads = []
    for n, (off, P) in enumerate(lst):
        E("s_add_u32 s%d, s15, %s" % (9 + n, off))
        loads += ["buffer_load_dwordx4 %s, v%d, s[64:67], s%d offen offset:%d sc1" % (vr(32 + 16 * n + 4 * i), 6 + i // 2, 9 + n, 16 * (i & 1)) for i in range(4)]
    def chk():
        for n, (off, P) in enumerate(lst):
            o = 32 + 16 * n
            E("v_and_b32 v24, v%d, v%d" % (o, o + 2)); E("v_and_b32 v25, v%d, v%d" % (o + 4, o + 6)); E("v_and_b32 v26, v%d, v%d" % (o + 8, o + 10)); E("v_and_b32 v27, v%d, v%d" % (o + 12, o + 14))
            E("v_and_b32 v24, v24, v25"); E("v_and_b32 v26, v26, v27"); E("v_and_b32 v24, v24, v26"); E("v_and_b32 v%d, %d, v24" % (28 + n, P))
        if len(lst) == 2: E("v_min_u32 v28, v28, v29")
        E("v_cmp_eq_u32 vcc, 0, v28")
    if pipe > 1:
        P = lst[0][1]
        def chk2(i):
            o = 32 + 16 * i
            E("v_and_b32 v24, v%d, v%d" % (o, o + 2)); E("v_and_b32 v25, v%d, v%d" % (o + 4, o + 6)); E("v_and_b32 v26, v%d, v%d" % (o + 8, o + 10)); E("v_and_b32 v27, v%d, v%d" % (o + 12, o + 14))
            E("v_and_b32 v24, v24, v25"); E("v_and_b32 v26, v26, v27"); E("v_and_b32 v24, v24, v26"); E("v_and_b32 v28, %d, v24" % P); E("v_cmp_eq_u32 vcc, 0, v28")
        def dec(i):
            o = 32 + 16 * i
            for q in range(8): E("v_lshrrev_b32 v%d, 31, v%d" % (16 + q, o + 2 * q)); E("v_cvt_f32_i32 v%d, v%d" % (o + 2 * q, o + 2 * q))
            for q in range(8): E("v_add_u32 v%d, v%d, v%d" % (16 + q, 16 + q, o + 1 + 2 * q))
            for q in range(8): E("v_cvt_f32_i32 v%d, v%d" % (16 + q, 16 + q))
            for q in range(8): E("v_fmac_f32 v%d, s97, v%d" % (16 + q, o + 2 * q))
        ppoll(pipe, lambda i: ["buffer_load_dwordx4 %s, v%d, s[64:67], s9 offen offset:%d sc1" % (vr(32 + 16 * i + 4 * j), 6 + j // 2, 16 * (j & 1)) for j in range(4)], chk2, dec)
    else: poll(loads, chk, sleep, l2)
    E("s_waitcnt lgkmcnt(0)")
    for n in range(len(lst)):
        o = 32 + 16 * n
        if pipe == 1:
            for q in range(8): E("v_lshrrev_b32 v%d, 31, v%d" % (16 + q, o + 2 * q)); E("v_cvt_f32_i32 v%d, v%d" % (o + 2 * q, o + 2 * q))
            for q in range(8): E("v_add_u32 v%d, v%d, v%d" % (16 + q, 16 + q, o + 1 + 2 * q))
            for q in range(8): E("v_cvt_f32_i32 v%d, v%d" % (16 + q, 16 + q))
            for q in range(8): E("v_fmac_f32 v%d, s97, v%d" % (16 + q, o + 2 * q))
        for q in range(4):
            E("v_cvt_pk_bf16_f32 v24, v%d, v%d" % (16 + 2 * q, 17 + 2 * q))
            E("v_lshlrev_b32 v25, 16, v24"); E("v_and_b32 v26, 0xffff0000, v24")
            E("v_lshlrev_b32 v27, 16, v%d" % (8 + q)); E("v_and_b32 v28, 0xffff0000, v%d" % (8 + q))
            E("v_add_f32 v25, v25, v27"); E("v_add_f32 v26, v26, v28")
            E("v_cvt_pk_bf16_f32 v%d, v25, v26" % (8 + q))
def xpoll(off, g):
    ld = lab('xd')
    xaddr(); E("v_lshrrev_b32 v6, 1, v1"); E("v_lshrrev_b32 v7, 1, v2"); E("s_mul_i32 s9, s7, 896"); E("s_add_u32 s9, s9, %s" % off); E("s_add_u32 s9, s9, s56")
    fat = ["buffer_load_dwordx2 v[8:9], v6, s[64:67], s9 offen sc1", "buffer_load_dwordx2 v[10:11], v7, s[64:67], s9 offen sc1"]
    def chk(i):
        E("v_pk_max_u16 v24, v8, v9"); E("v_pk_max_u16 v25, v10, v11"); E("v_pk_max_u16 v24, v24, v25")
        E("v_lshrrev_b32 v25, 16, v24"); E("v_max_u16 v24, v24, v25"); E("v_cmp_eq_u16 vcc, -1, v24")
    if OPT['xe'] & (1 if g else 2):
        E("s_and_b32 s8, s2, 7"); E("s_lshl_b32 s8, s8, 4"); E("s_lshr_b32 s10, s2, 3")
        if g:
            E("s_cmp_eq_u32 s3, 0"); E("s_cbranch_scc1 " + ld + "s")
            E("s_add_u32 s8, s8, s10"); E("s_and_b32 s10, s7, 1"); E("s_lshl_b32 s10, s10, 3"); E("s_add_u32 s8, s8, s10"); E("s_sub_u32 s8, s8, 8")
        else: E("s_min_u32 s10, s10, 6"); E("s_add_u32 s8, s8, s10")
        E("s_lshl_b32 s8, s8, 6"); E("s_add_u32 s8, s8, s86"); E("s_add_u32 s10, s8, 0x%x" % (EF + (0 if g else 32))); E("v_mov_b32 v25, 0")
        ppoll(1, lambda i: ["buffer_load_dword v72, v25, s[64:67], s10 offen sc1"], lambda i: E("v_cmp_eq_u32 vcc, -1, v72"), lambda i: None)
        if OPT['xd' if g else 'xq']: E("s_sleep %d" % OPT['xd' if g else 'xq'])
        for x in fat: E(x)
        E("s_waitcnt vmcnt(0)"); chk(0); E("s_cbranch_vccz " + ld)
        Lb(ld + "s")
    if OPT['lt']:
        E("s_lshr_b32 s8, s2, %d" % (OPT['rp'].bit_length() - 1)); E("s_and_b32 s8, s8, 7"); E("s_min_u32 s8, s8, 6"); E("s_lshl_b32 s8, s8, 7"); E("s_add_u32 s10, s9, s8"); E("v_mov_b32 v25, 0")
        ppoll(1, lambda i: ["buffer_load_ushort v72, v25, s[64:67], s10 offen sc1"], lambda i: E("v_cmp_eq_u16 vcc, -1, v72"), lambda i: None)
    def chk(i):
        E("v_pk_max_u16 v24, v8, v9"); E("v_pk_max_u16 v25, v10, v11"); E("v_pk_max_u16 v24, v24, v25")
        E("v_lshrrev_b32 v25, 16, v24"); E("v_max_u16 v24, v24, v25"); E("v_cmp_eq_u16 vcc, -1, v24")
    ppoll(1, lambda i: ["buffer_load_dwordx2 v[8:9], v6, s[64:67], s9 offen sc1", "buffer_load_dwordx2 v[10:11], v7, s[64:67], s9 offen sc1"], chk, lambda i: None, 0, OPT['zt'])
    Lb(ld)
def xunpack(wr=1):
    for q in range(4): E("v_lshlrev_b32 v%d, 16, v%d" % (16 + 2 * q, 8 + q)); E("v_and_b32 v%d, 0xffff0000, v%d" % (17 + 2 * q, 8 + q))
    if wr: E("ds_write_b64 v3, v[8:9]"); E("ds_write_b64 v14, v[10:11]")
def layernorm(act):
    E("v_add_f32 v24, v16, v17"); E("v_add_f32 v26, v18, v19"); E("v_mul_f32 v25, v16, v16"); E("v_add_f32 v24, v24, v26")
    for q in (17, 18, 19): E("v_fmac_f32 v25, v%d, v%d" % (q, q))
    E("s_mov_b32 exec_hi, 0xffff")
    for q in (20, 21, 22, 23): E("v_add_f32 v24, v24, v%d" % q); E("v_fmac_f32 v25, v%d, v%d" % (q, q))
    E("s_mov_b32 exec_hi, -1"); E("s_nop 1")
    for c in ["row_shr:1 row_mask:0xf bank_mask:0xf bound_ctrl:0", "row_shr:2 row_mask:0xf bank_mask:0xf bound_ctrl:0", "row_shr:4 row_mask:0xf bank_mask:0xf bound_ctrl:0",
              "row_shr:8 row_mask:0xf bank_mask:0xf bound_ctrl:0", "row_bcast:15 row_mask:0xa bank_mask:0xf", "row_bcast:31 row_mask:0xc bank_mask:0xf"]:
        E("v_add_f32_dpp v24, v24, v24 " + c); E("v_add_f32_dpp v25, v25, v25 " + c); E("s_nop 0")
    E("v_readlane_b32 s8, v24, 63"); E("v_readlane_b32 s9, v25, 63")
    E("s_mul_i32 s10, s7, %d" % PITCH); E("s_add_u32 s10, s10, %d" % act)
    E("v_mov_b32 v26, %s" % f32(1 / 448)); E("v_mul_f32 v24, s8, v26"); E("v_mul_f32 v25, s9, v26")
    E("v_fma_f32 v25, -v24, v24, v25"); E("v_max_f32 v25, 0, v25")
    E("v_cvt_pk_bf16_f32 v26, v24, v25"); E("v_lshlrev_b32 v24, 16, v26"); E("v_and_b32 v25, 0xffff0000, v26")
    E("v_add_f32 v25, %s, v25" % f32(1e-5)); bf16r("v25", "v25")
    E("v_sqrt_f32 v25, v25")
    for q in range(8): E("v_sub_f32 v%d, v%d, v24" % (16 + q, 16 + q))
    bf16r("v25", "v25"); E("v_rcp_f32 v25, v25")
    for q in range(4):
        E("v_cvt_pk_bf16_f32 v26, v%d, v%d" % (16 + 2 * q, 17 + 2 * q)); E("v_lshlrev_b32 v%d, 16, v26" % (16 + 2 * q)); E("v_and_b32 v%d, 0xffff0000, v26" % (17 + 2 * q))
    for q in range(8): E("v_mul_f32 v%d, v%d, v25" % (16 + q, 16 + q))
    for q in range(4): E("v_cvt_pk_bf16_f32 v%d, v%d, v%d" % (24 + q, 16 + 2 * q, 17 + 2 * q))
    E("v_lshrrev_b32 v1, 1, v1"); E("v_add_u32 v1, s10, v1"); E("v_lshrrev_b32 v2, 1, v2"); E("v_add_u32 v2, s10, v2")
    E("ds_write_b64 v1, v[24:25]"); E("ds_write_b64 v2, v[26:27]")
def bar(): E("s_waitcnt lgkmcnt(0)"); E("s_barrier")
def dense(T, act, RW=80, sl=(32, 36, 40, 44, 48, 52, 56, 60)):
    n = len(sl)
    E("v_bfe_u32 v1, v0, 2, 2"); E("v_mul_u32_u24 v1, %d, v1" % PITCH); E("v_bfe_u32 v2, v0, 4, 2"); E("v_lshl_add_u32 v1, v2, 4, v1")
    bar()
    for t in range(min(n, T)): E("ds_read_b128 %s, v1 offset:%d" % (vr(sl[t]), act + 64 * t))
    issued = min(n, T)
    for t in range(T):
        E("s_waitcnt lgkmcnt(%d)" % (issued - 1 - t))
        acc = vr(24 + 4 * (t & 1))
        E("v_mfma_f32_16x16x32_bf16 %s, %s, %s, %s" % (acc, vr(sl[t % n]), vr(RW + 4 * t), "0" if t < 2 else acc))
        if issued < T: E("ds_read_b128 %s, v1 offset:%d" % (vr(sl[issued % n]), act + 64 * issued)); issued += 1
    E("v_bfe_u32 v1, v0, 4, 2"); E("v_and_b32 v2, 15, v0"); E("s_nop 6"); E("v_add_f32 v24, v24, v28")
def worker(wave, limit, body):
    l = lab("wk")
    E("s_cmp_lg_u32 s7, %d" % wave); E("s_cbranch_scc1 " + l)
    if limit: E("s_cmp_ge_u32 s13, %d" % limit); E("s_cbranch_scc1 " + l)
    body(); Lb(l)

hdr = open("cdna_kernels/%s.s.ref" % NAME).read().split("\n")
for l in hdr:
    if l.startswith("; @launch"): out.append("; @launch grid=(256,1,1) block=(256,1,1) lds=%d" % LDS_TOTAL)
    elif l.startswith(";"): out.append(l)
    else: break
out += ['.amdgcn_target "amdgcn-amd-amdhsa--gfx950"', ".text", ".globl %s_kernel" % NAME, ".p2align 8",
        ".type %s_kernel,@function" % NAME, "%s_kernel:" % NAME]
E("s_cmp_ge_u32 s2, 256"); E("s_cbranch_scc1 Lend")
if OPT['dbg']: E("s_memrealtime s[100:101]")
def dbgt(n):
    if not OPT['dbg']: return
    l = lab("dbg")
    E("s_cmp_lg_u32 s7, 0"); E("s_cbranch_scc1 " + l)
    E("s_memrealtime s[8:9]"); E("s_waitcnt lgkmcnt(0)"); E("s_sub_u32 s8, s8, s100"); E("v_mov_b32 v6, s8"); E("v_mov_b32 v7, 0")
    E("s_mov_b64 exec, 1"); E("buffer_atomic_umax v6, v7, s[76:79], 0 offen offset:%d sc1" % (4 * n)); E("s_mov_b64 exec, -1")
    Lb(l)
E("s_load_dwordx16 s[16:31], s[0:1], 0"); E("s_load_dwordx8 s[32:39], s[0:1], 64")
E("v_lshrrev_b32 v1, 6, v0"); E("s_and_b32 s4, s2, 7"); E("v_readfirstlane_b32 s7, v1")
E("s_lshr_b32 s13, s2, 3"); E("s_and_b32 s5, s13, 3"); E("s_lshr_b32 s6, s2, 5"); E("s_mov_b32 s3, 0")
E("v_and_b32 v1, 15, v0"); E("v_bfe_u32 v2, v0, 4, 2")
E("v_lshlrev_b32 v4, 9, v1"); E("v_lshl_add_u32 v4, v2, 4, v4")
E("v_lshlrev_b32 v5, 11, v2"); E("v_lshl_add_u32 v5, v1, 4, v5")
E("s_mov_b32 s62, s4")
if OPT['map'] == 1: E("s_and_b32 s62, s13, 7"); E("s_lshr_b32 s5, s2, 6"); E("s_mov_b32 s6, s4")
if OPT['map'] == 2: E("s_add_u32 s62, s4, s6"); E("s_and_b32 s62, s62, 7")
E("s_lshl_b32 s8, s5, 3"); E("s_add_u32 s8, s8, s62"); E("s_lshl_b32 s9, s8, 21")
E("s_lshl_b32 s80, s7, %d" % SW); E("s_lshl_b32 s10, s6, %d" % SS); E("s_add_u32 s80, s80, s10"); E("s_mul_i32 s81, s7, %d" % (NLDSV * 1024)); E("s_add_u32 s81, s81, %d" % (VBASE - 4096))

E("s_lshl_b32 s84, s8, 13"); E("s_lshl_b32 s10, s6, 10"); E("s_add_u32 s84, s84, s10")
E("s_lshl_b32 s85, s8, 7"); E("s_lshl_b32 s10, s6, 3"); E("s_add_u32 s85, s85, s10"); E("s_add_u32 s85, s85, 0x%x" % MLB)
E("s_mov_b32 s86, 0")
E("s_mov_b32 s82, 0x%x" % QB0)
E("s_lshl_b32 s11, s7, 4")
E("s_lshl_b32 s83, s2, 7"); E("s_lshl_b32 s10, s7, 5"); E("s_add_u32 s83, s83, s10")
E("s_sub_u32 s87, s2, 64"); E("s_lshr_b32 s87, s87, 1"); E("s_lshl_b32 s63, s87, 7"); E("s_add_u32 s87, s63, s10")
E("s_bitcmp1_b32 s2, 0"); E("s_cselect_b32 s10, 0, 0x%x" % (AB - AU)); E("s_add_u32 s87, s87, s10"); E("s_add_u32 s87, s87, 0x%x" % AU)
E("s_max_u32 s14, s13, 15"); E("s_sub_u32 s14, s14, 15"); E("s_min_u32 s14, s14, 13")
E("s_cmp_ge_u32 s14, 7"); E("s_cselect_b32 s88, 1, 0"); E("s_mul_i32 s10, s88, 7"); E("s_sub_u32 s14, s14, s10")
E("s_lshl_b32 s89, s14, 6"); E("s_add_u32 s89, s89, s11")
E("s_mov_b32 s12, 0"); E("s_cmp_ge_u32 s13, 8"); E("s_cselect_b32 s12, 1, s12"); E("s_cmp_ge_u32 s13, 15"); E("s_cselect_b32 s12, 2, s12")
E("s_cmp_ge_u32 s13, 29"); E("s_cselect_b32 s12, 3, s12")
E("s_mov_b32 s99, %s" % f32(0.0625 * 1.4426950408889634))
E("s_and_b32 s15, s13, %d" % (OPT['R'] - 1)); E("s_lshl_b32 s15, s15, 14"); E("s_lshl_b32 s10, s7, 12"); E("s_add_u32 s15, s15, s10")
E("s_and_b32 s56, s2, %d" % (OPT['rp'] - 1)); E("s_lshl_b32 s56, s56, 12"); E("s_mov_b32 s97, %s" % f32(2.0 ** -32)); E("s_mov_b32 s96, %s" % f32(2.0 ** 32)); E("s_movk_i32 s95, 0xffe0")
E("s_waitcnt lgkmcnt(0)")
def srd(d, lo, hi, n, add=None):
    if add: E("s_add_u32 s%d, s%d, %s" % (d, lo, add)); E("s_addc_u32 s%d, s%d, 0" % (d + 1, hi))
    else: E("s_mov_b32 s%d, s%d" % (d, lo)); E("s_mov_b32 s%d, s%d" % (d + 1, hi))
    E("s_mov_b32 s%d, 0x%x" % (d + 2, n)); E("s_mov_b32 s%d, 0x00020000" % (d + 3))
srd(40, 18, 19, 1 << 21, "s9"); srd(44, 20, 21, 1 << 21, "s9")
srd(64, 38, 39, 0x400000); srd(68, 16, 17, 3584); srd(72, 34, 35, 3584); srd(76, 36, 37, 256)
stamp()
if OPT['th']:
    E("s_cmp_lt_u32 s13, 22"); E("s_cbranch_scc1 Lth"); E("s_sleep %d" % OPT['th'])
    E("s_cmp_lt_u32 s13, 29"); E("s_cbranch_scc1 Lth"); E("s_sleep %d" % OPT['th'])
    Lb("Lth")
kgroup(OPT['k0'], False)
xaddr()
E("v_lshrrev_b32 v6, 1, v1"); E("v_lshrrev_b32 v7, 1, v2"); E("s_mul_i32 s8, s7, 896")
VM('x', "buffer_load_dwordx2 v[8:9], v6, s[68:71], s8 offen"); VM('x', "buffer_load_dwordx2 v[10:11], v7, s[68:71], s8 offen")
lane("v15"); E("v_lshrrev_b32 v12, 3, v15"); E("v_and_b32 v13, 7, v15")
for m in range(4): E("v_xor_b32 v%d, %d, v13" % (16 + m, 2 * m))
srd(48, 22, 23, 448 * 4096 * 2); E("s_lshl_b32 s92, s2, 7"); E("s_movk_i32 s93, 8192"); E("s_lshl_b32 s10, s7, 7")
E("s_cmp_eq_u32 s12, 0"); E("s_cbranch_scc1 Lwsel")
E("s_bitcmp1_b32 s2, 0"); E("s_cselect_b32 s48, s30, s28"); E("s_cselect_b32 s49, s31, s29"); E("s_mov_b32 s50, 0x%x" % (448 * 1792 * 2))
E("s_mov_b32 s92, s63"); E("s_movk_i32 s93, 3584")
E("s_cmp_eq_u32 s12, 1"); E("s_cbranch_scc1 Lwsel")
E("s_movk_i32 s93, 896"); E("s_and_b32 s10, s7, 1"); E("s_lshl_b32 s10, s10, 7")
E("s_mov_b32 s48, s24"); E("s_mov_b32 s49, s25"); E("s_mov_b32 s50, 0x%x" % (4096 * 448 * 2))
E("s_lshl_b32 s8, s4, 1"); E("s_add_u32 s8, s8, s88"); E("s_mul_i32 s92, s8, %d" % (256 * 896)); E("s_lshl_b32 s8, s14, 7"); E("s_add_u32 s92, s92, s8")
E("s_cmp_eq_u32 s12, 3"); E("s_cselect_b32 s50, 0, s50")
E("s_cmp_lt_u32 s7, 2"); E("s_cbranch_scc1 Lwsel")
E("s_mov_b32 s48, s32"); E("s_mov_b32 s49, s33"); E("s_add_u32 s50, s4, 1"); E("s_mul_i32 s50, s50, %d" % (224 * 896))
E("s_cmp_lg_u32 s88, 0"); E("s_cselect_b32 s50, 0, s50")
E("s_mul_i32 s92, s4, %d" % (224 * 896)); E("s_add_u32 s92, s92, s8")
Lb("Lwsel")
E("s_mov_b32 s52, s48"); E("s_mov_b32 s53, s49"); E("s_lshl_b32 s94, s93, 3")
Lb("Lwsel2")
E("s_mov_b32 s54, s50"); E("s_mov_b32 s55, 0x00020000")
E("s_mul_i32 s10, s10, s93"); E("s_add_u32 s92, s92, s10"); E("s_add_u32 s94, s94, s92")
E("v_mul_lo_u32 v12, v12, s93"); E("s_lshl_b32 s93, s93, 4")
for m in range(4): E("v_lshl_add_u32 v%d, v%d, 4, v12" % (16 + m, 16 + m))
E("s_lshl_b32 s11, s7, 14"); E("s_add_u32 s11, s11, %d" % VBASE)
for f in range(8):
    E("s_add_u32 m0, s11, %d" % (2048 * f)); E("s_nop 0")
    VM('w', "buffer_load_dwordx4 v%d, s[48:51], s92 offen%s lds" % (16 + (2 * f) % 4, WNT))
    E("s_add_u32 m0, s11, %d" % (2048 * f + 1024)); E("s_nop 0")
    VM('w', "buffer_load_dwordx4 v%d, s[52:55], s94 offen%s lds" % (16 + (2 * f + 1) % 4, WNT))
    if f < 7: E("s_add_u32 s92, s92, s93"); E("s_add_u32 s94, s94, s93")
    if f == 3:
        E("s_and_b32 s8, s2, 0x60"); E("s_cmp_eq_u32 s8, 0x60"); E("s_cselect_b32 s8, 0, -1")
        for r in range(4): E("v_mov_b32 v%d, s8" % (24 + r))
        E("v_lshlrev_b32 v7, 4, v0"); E("s_lshl_b32 s8, s2, 12")
        VM('clr', "buffer_store_dwordx4 v[24:27], v7, s[64:67], s8 offen %s" % ["sc1", "sc1 nt", "sc0 sc1", "sc0 sc1 nt"][OPT['cnt']])
        E("s_cmp_lg_u32 s12, 0"); E("s_cbranch_scc1 Lnoclrq")
        E("v_bfe_u32 v12, v0, 4, 2"); E("v_and_b32 v13, 15, v0"); E("v_lshlrev_b32 v12, 13, v12"); E("v_lshl_add_u32 v12, v13, 1, v12"); E("s_add_u32 s8, s82, s83")
        E("s_mov_b32 exec_lo, 0x55555555"); E("s_mov_b32 exec_hi, 0x55555555")
        E("buffer_store_dword v24, v12, s[64:67], s8 offen sc1"); E("s_mov_b64 exec, -1")
        Lb("Lnoclrq")
def qaddr(): E("v_lshlrev_b32 v1, 13, v1"); E("v_lshl_add_u32 v1, v2, 1, v1"); E("s_add_u32 s8, s82, s83"); E("s_mov_b32 exec_lo, 0x55555555"); E("s_mov_b32 exec_hi, 0x55555555")
kgroup(OPT['k1'], False)
stamp()
E("v_mov_b32 v6, 0"); E("ds_write_b32 v6, v6 offset:%d" % QF)
wait_tag('x')
xunpack()
E("s_waitcnt lgkmcnt(0)")
def trblock(isq, ka, kb):
    kgroup(ka, False)
    E("v_bfe_u32 v12, v0, 4, 2"); E("v_bfe_u32 v13, v0, 2, 2"); E("v_xor_b32 v7, s7, v12"); E("v_and_b32 v15, 3, v0")
    E("v_lshl_add_u32 v6, v12, 3, v13"); E("v_lshlrev_b32 v6, 7, v6"); E("v_lshl_add_u32 v6, v7, 5, v6"); E("v_lshl_add_u32 v6, v15, 3, v6"); E("v_add_u32 v16, 512, v6")
    E("v_add_u32 v6, %d, v6" % VBASE); E("v_add_u32 v16, %d, v16" % VBASE)
    wait_tag('w')
    E("s_barrier")
    worker(0, 0, sig)
    for f in range(16):
        E("ds_read_b64_tr_b16 %s, v6 offset:%d" % (vr(RW + 4 * f, 2), f * 4096)); E("ds_read_b64_tr_b16 %s, v16 offset:%d" % (vr(RW + 4 * f + 2, 2), f * 4096))
        if f % 4 == 3 and f < 15: E("s_waitcnt lgkmcnt(4)")
    kgroup(kb, False)
    if not isq: bar()
def sig():
    E("s_mov_b64 exec, 1"); E("s_add_u32 s9, s4, 8"); E("s_cmp_eq_u32 s12, 0"); E("s_cselect_b32 s9, s13, s9"); E("s_lshl_b32 s9, s9, 4"); E("v_mov_b32 v25, 1"); E("v_mov_b32 v26, 0")
    E("buffer_atomic_add v25, v26, s[76:79], s9 offen sc1"); E("s_mov_b64 exec, -1")
def qbody(r=0):
    dense(14, ACT0)
    E("s_nop 1"); E("v_mov_b32_dpp v25, v24 quad_perm:[1,0,3,2] row_mask:0xf bank_mask:0xf")
    E("v_cvt_pk_bf16_f32 v24, v24, v25"); E("v_min_u32 v24, -2, v24"); qaddr()
    E("buffer_store_dword v24, v1, s[64:67], s8 offen sc1")
    if r: E("s_add_u32 s8, s8, 0x%x" % LSTEP); E("buffer_store_dword v24, v1, s[64:67], s8 offen sc1")
    E("s_mov_b64 exec, -1")
E("s_cmp_lg_u32 s12, 0"); E("s_cbranch_scc1 Lpro2")
sv = (list(vm), kpos[0])
layernorm(ACT0)
trblock(True, OPT['k2'], OPT['k3'])
qbody()
stamp(); stamp_n[0] -= OPT['stamps']
kgroup(OPT['X'] - kpos[0], False)
E("s_branch Lpro3")
Lb("Lpro2")
vm[:] = sv[0]; kpos[0] = sv[1]
trblock(False, OPT['X'] - 4 - kpos[0], 4)
stamp()
Lb("Lpro3")
dbgt(3)
Lb("Lloop")

lane("v15"); E("v_lshlrev_b32 v1, 4, v15"); E("v_add_u32 v3, s81, v1")
E("v_bfe_u32 v2, v0, 3, 1"); E("v_lshlrev_b32 v2, 9, v2"); E("v_bfe_u32 v6, v0, 4, 2"); E("v_lshl_add_u32 v2, v6, 4, v2")
E("v_and_b32 v6, 1, v0"); E("v_cmp_eq_u32 vcc, 0, v6"); E("v_mov_b32 v7, 0x01000c0c"); E("v_mov_b32 v12, 0x0c0c0100"); E("v_cndmask_b32 v7, v7, v12, vcc")
E("v_bfe_u32 v6, v0, 1, 2"); E("v_mov_b32 v12, 0x0c0c0c0c"); E("s_mov_b32 s91, 0x02020202")
for r in range(4): E("v_cmp_eq_u32 vcc, %d, v6" % r); E("s_nop 1"); E("v_cndmask_b32 v%d, v12, v7, vcc" % (8 + r))
E("s_lshl_b32 s8, s5, 13"); E("s_lshl_b32 s9, s62, 10"); E("s_add_u32 s90, s8, s9"); E("s_add_u32 s90, s90, s82")
qload = "buffer_load_dwordx4 v[16:19], v1, s[64:67], s90 offen sc1"
E("s_cmp_lg_u32 s3, 0"); E("s_cbranch_scc1 Lqpoll1")
E("v_mov_b32 v6, s62"); E("v_lshlrev_b32 v6, 4, v6")
pos = kpos[0]
mark = {}
def wmark(t): E("s_waitcnt vmcnt(%d)" % min(63, len(vm) - mark[t]))
while pos < 64 + OPT['vpre']:
    if pos < 64: kload(pos); kpos[0] += 1
    else: vload(pos - 64); vpos[0] += 1
    pos += 1
    if pos == OPT['p1']:
        worker(0, 0, lambda: E("buffer_load_dword v7, v6, s[76:79], 0 offen sc1")); mark['cnt'] = len(vm)
    if pos == OPT['pq']:
        def f():
            wmark('cnt')
            E("s_mov_b32 s98, 0"); Lb("Lcnt")
            E("v_cmp_gt_u32 vcc, 8, v7"); E("s_cbranch_vccz Lcntd")
            E("buffer_load_dword v7, v6, s[76:79], 0 offen sc1"); E("s_waitcnt vmcnt(0)")
            E("s_add_u32 s98, s98, 1"); E("s_cmp_lt_u32 s98, 0x8000"); E("s_cbranch_scc1 Lcnt")
            Lb("Lcntd")
            E(qload)
        worker(0, 0, f); mark['q'] = len(vm)
    if pos == OPT['pw']:
        def f():
            wmark('q')
            check(range(16, 20))
            E("s_cbranch_vccz Lattn")
            poll([qload], lambda: check(range(16, 20)))
            Lb("Lattn")
            E("ds_write_b128 v1, v[16:19] offset:%d" % QL)
            E("v_mov_b32 v6, 0"); E("v_mov_b32 v7, 1")
            E("s_waitcnt lgkmcnt(0)")
            E("ds_write_b32 v6, v7 offset:%d" % QF)
        worker(0, 0, f)
E("v_mov_b32 v6, 0"); E("s_mov_b32 s98, 0"); Lb("Lqf")
E("ds_read_b32 v7, v6 offset:%d" % QF); E("s_waitcnt lgkmcnt(0)")
E("v_cmp_eq_u32 vcc, 0, v7"); E("s_cbranch_vccz Lqfd")
E("s_sleep 2"); E("s_add_u32 s98, s98, 1"); E("s_cmp_lt_u32 s98, 0x400000"); E("s_cbranch_scc1 Lqf")
Lb("Lqfd")
def round_tile(T, first):
    s = 32 + 4 * T
    return ["v_cvt_pk_bf16_f32 v6, v%d, v%d" % (s, s + 1), "v_cvt_pk_bf16_f32 v7, v%d, v%d" % (s + 2, s + 3),
            "v_lshlrev_b32 v%d, 16, v6" % s, "v_and_b32 v%d, 0xffff0000, v6" % (s + 1),
            "v_lshlrev_b32 v%d, 16, v7" % (s + 2), "v_and_b32 v%d, 0xffff0000, v7" % (s + 3),
            ("v_max_f32 v12, v%d, v%d" % (s, s + 1)) if first else ("v_max3_f32 v12, v12, v%d, v%d" % (s, s + 1)),
            "v_max3_f32 v12, v12, v%d, v%d" % (s + 2, s + 3)]
def FR(t): return vr(16 + 4 * t) if t < 4 else vr(64 + 4 * (t - 4))
HS = [1, 2, 13, 15]
def eflag():
    if not OPT['ef']: return
    l = lab("ef"); E("s_cmp_lg_u32 s7, 0"); E("s_cbranch_scc1 " + l)
    E("s_sub_u32 s8, s85, 0x%x" % MLB); E("s_lshr_b32 s9, s8, 7"); E("s_lshl_b32 s9, s9, 5"); E("s_lshl_b32 s8, s6, 2"); E("s_add_u32 s8, s8, s9"); E("s_add_u32 s8, s8, s86"); E("s_add_u32 s8, s8, 0x%x" % FLG)
    E("v_mov_b32 v4, 0"); E("s_mov_b64 exec, 1"); E("buffer_store_dword v4, v4, s[64:67], s8 offen sc1"); E("s_mov_b64 exec, -1")
    Lb(l)
def core(L0):
    for t in range(8): E("ds_read_b128 %s, v2 offset:%d" % (FR(t), QL + 64 * t))
    for G in range(4):
        if L0:
            vgroup(4)
            E("s_waitcnt vmcnt(%d)" % min(63, len(vm) - 1 - [j for j, x in enumerate(vm) if x == 'K'][16 * G + 15]))
        if not L0 and G == 4 - (OPT['nq'] + 1) // 2: E("s_waitcnt vmcnt(0)")
        if G: extra = [None] * 3 + round_tile(2 * G - 2, G == 1) + round_tile(2 * G - 1, False)
        else:
            extra = []
            for c in range(4): extra += ["v_lshrrev_b32 v6, 2, v%d" % (8 + c), "v_bfi_b32 v6, v6, 0, s91", "v_or_b32 v%d, v6, v%d" % (HS[c], 8 + c)]
        for t in range(8):
            if G == 0: E("s_waitcnt lgkmcnt(%d)" % (7 - t))
            for d in range(2):
                T = 2 * G + d
                E("v_mfma_f32_16x16x32_bf16 %s, %s, %s, %s" % (vr(32 + 4 * T), ar(32 * T + 4 * t), FR(t), "0" if t == 0 else vr(32 + 4 * T)))
                for _ in range(2 if t >= 5 else 1):
                    if extra:
                        x = extra.pop(0)
                        if x: E(x)
        assert not extra
    if OPT['fine'] and not L0: E("s_memrealtime s[56:57]")
    lu = [u for u in range(64) if inlds(u)]
    nis = [0]
    def ldsread():
        if nis[0] >= len(lu): return
        u = lu[nis[0]]
        if L0: wait_tag('V%d' % u)
        E("ds_read_b128 %s, v3 offset:%d" % (vr(64 + 4 * (nis[0] % 4)), 4096 + lslot(u) * 1024)); nis[0] += 1
    for _ in range(4): ldsread()
    E("s_nop 3")
    for x in round_tile(6, False): E(x)
    for x in round_tile(7, False): E(x)
    E("v_mov_b32 v6, v12"); E("s_nop 1"); E("v_permlane16_swap_b32 v12, v6"); E("s_nop 1"); E("v_max_f32 v12, v12, v6")
    E("v_mov_b32 v6, v12"); E("s_nop 1"); E("v_permlane32_swap_b32 v12, v6"); E("v_mov_b32 v7, 0"); E("s_nop 0"); E("v_max_f32 v12, v12, v6")
    E("v_mul_f32 v14, s99, v12"); E("v_mov_b32 v6, 0")
    def soft(T):
        s = 32 + 4 * T
        fm = lambda a: "v_pk_fma_f32 %s, %s, s[98:99], v[14:15] op_sel:[0,1,0] op_sel_hi:[1,1,0] neg_lo:[0,0,1] neg_hi:[0,0,1]" % (vr(a, 2), vr(a, 2))
        ex = lambda a: "v_exp_f32 v%d, v%d" % (a, a)
        ad = lambda a: "v_pk_add_f32 v[6:7], v[6:7], %s" % vr(a, 2)
        return [[fm(s), fm(s + 2), ex(s), ex(s + 1)], [ex(s + 2), ex(s + 3), ad(s), "v_cvt_pk_bf16_f32 v%d, v%d, v%d" % (s, s, s + 1)],
                ["v_cvt_pk_bf16_f32 v%d, v%d, v%d" % (s + 1, s + 2, s + 3)], [ad(s + 2)]]
    def bmk(k):
        src = 32 + 4 * (k // 4) + ((k % 4) >> 1)
        return ["v_perm_b32 v%d, v%d, v%d, v%d" % (16 + 4 * (k & 1) + c, src, src, HS[c] if k & 1 else 8 + c) for c in range(4)]
    for g in soft(0):
        for x in g: E(x)
    for x in bmk(0): E(x)
    E("s_nop 0")
    if OPT['fine'] and not L0: E("s_memrealtime s[58:59]")
    for k in range(32):
        b = 16 + 4 * (k & 1)
        if L0: vgroup(2)
        if not L0 and k == OPT['kf']: eflag()
        if L0 and k == OPT['late']:
            worker(0, 0, lambda: (E("v_and_b32 v4, 15, v0"), E("v_lshlrev_b32 v4, 4, v4"), E("buffer_load_dword v4, v4, s[76:79], 0 offen sc1"))); mark['cnt2'] = len(vm)
        for hf in range(2):
            u = 2 * k + hf
            if inlds(u):
                n = lu.index(u)
                E("s_waitcnt lgkmcnt(%d)" % (nis[0] - 1 - n)); A = vr(64 + 4 * (n % 4))
            else:
                if L0: wait_tag('V%d' % u)
                A = vr(144 + 4 * (k - 4))
            acc = vr(24 + 4 * hf)
            E("v_mfma_f32_16x16x32_bf16 %s, %s, %s, %s" % (acc, A, vr(b), "0" if k == 0 else acc))
            if inlds(u): ldsread()
            if hf == 0:
                if k < 31:
                    for x in bmk(k + 1): E(x)
            elif k < 28:
                for x in soft(k // 4 + 1)[k % 4]: E(x)
    E("v_add_f32 v13, v6, v7")
    if OPT['fine'] and not L0: E("s_memrealtime s[60:61]")
    if L0:
        E("s_cmp_lg_u32 s7, 0"); E("s_cbranch_scc1 Lcnt2d")
        wmark('cnt2')
        E("v_and_b32 v6, 15, v0"); E("v_cmp_gt_u32 vcc, 8, v6"); E("v_mov_b32 v7, 24"); E("v_lshlrev_b32 v6, 4, v6"); E("v_cndmask_b32 v7, v7, 8, vcc")
        E("s_mov_b32 s98, 0"); Lb("Lcnt2")
        E("v_cmp_gt_u32 vcc, v7, v4"); E("s_cbranch_vccz Lcnt2d")
        E("buffer_load_dword v4, v6, s[76:79], 0 offen sc1"); E("s_waitcnt vmcnt(0)")
        E("s_add_u32 s98, s98, 1"); E("s_cmp_lt_u32 s98, 0x8000"); E("s_cbranch_scc1 Lcnt2")
        Lb("Lcnt2d")
stamp(); stamp_n[0] -= OPT['stamps']
core(True)
E("s_barrier")
eflag()
E("s_branch Lepi")
Lb("Lqpoll1")
if OPT['qr']: E("s_and_b32 s8, s2, 1"); E("s_mul_i32 s8, s8, 0x%x" % LSTEP); E("s_add_u32 s90, s90, s8")
def qtrig():
    E("s_cmp_eq_u32 s12, 0"); E("s_cbranch_scc1 Lnqt")
    E("s_lshr_b32 s8, s2, 3"); E("s_and_b32 s8, s8, 31"); E("s_min_u32 s8, s8, 27"); E("s_lshl_b32 s8, s8, 7"); E("s_add_u32 s8, s8, s56"); E("s_add_u32 s57, s8, 0x%x" % XV2); E("v_mov_b32 v59, 0")
    ppoll(1, lambda i: ["buffer_load_ushort v60, v59, s[64:67], s57 offen sc1"], lambda i: E("v_cmp_eq_u16 vcc, -1, v60"), lambda i: None)
    Lb("Lnqt")
def qtrig2():
    E("s_and_b32 s8, s2, 7"); E("s_lshl_b32 s8, s8, 7"); E("s_add_u32 s57, s8, s90"); E("v_mov_b32 v59, 0")
    ppoll(1, lambda i: ["buffer_load_dword v60, v59, s[64:67], s57 offen sc1"], lambda i: E("v_cmp_eq_u32 vcc, -1, v60"), lambda i: None)
if OPT['qt']: worker(0, 0, qtrig2 if OPT['qt'] == 2 else qtrig)
worker(0, 0, lambda: ppoll(OPT['nq'], lambda i: ["buffer_load_dwordx4 %s, v1, s[64:67], s90 offen sc1" % vr(60 - 4 * i)],
                           lambda i: check(range(60 - 4 * i, 64 - 4 * i)), lambda i: E("ds_write_b128 v1, %s offset:%d" % (vr(60 - 4 * i), QL)), 0, OPT['zq']))
bar()
stamp()
core(False)
if OPT['pf']:
    E("s_cmp_lg_u32 s12, 2"); E("s_cbranch_scc1 Lepi")
    E("s_lshl_b32 s8, s7, 3"); E("s_add_u32 s8, s8, s4"); E("s_lshl_b32 s8, s8, 5"); E("s_add_u32 s8, s8, s86"); E("s_add_u32 s57, s8, 0x%x" % FLG)
    E("v_and_b32 v78, 7, v0"); E("v_lshlrev_b32 v78, 2, v78"); E("v_mov_b32 v79, -1")
    E("buffer_load_dword v79, v78, s[64:67], s57 offen sc1")
Lb("Lepi")
E("v_mov_b32 v6, v13"); E("s_nop 1"); E("v_permlane16_swap_b32 v13, v6"); E("s_nop 1"); E("v_add_f32 v13, v13, v6")
E("v_mov_b32 v6, v13"); E("s_nop 1"); E("v_permlane32_swap_b32 v13, v6"); E("s_nop 1"); E("v_add_f32 v13, v13, v6")
E("v_bfe_u32 v6, v0, 3, 1"); E("v_lshlrev_b32 v7, 10, v6"); E("v_bfe_u32 v1, v0, 4, 2"); E("v_lshl_add_u32 v7, v1, 5, v7")
E("v_and_b32 v1, 7, v0"); E("v_lshl_add_u32 v7, v1, 2, v7"); E("s_lshl_b32 s8, s7, 11"); E("v_add_u32 v7, s8, v7")
E("s_lshl_b32 s8, s7, 4"); E("v_lshl_add_u32 v6, v6, 3, s8")
for hf in range(2):
    for r in range(4): E("ds_write_b32 v7, v%d offset:%d" % (24 + 4 * hf + r, OM + (r * 2 + hf) * 128))
E("s_mov_b64 exec, 0x101"); E("ds_write_b64 v6, v[12:13] offset:%d" % ML); E("s_mov_b64 exec, -1")
E("v_lshlrev_b32 v6, 2, v0"); E("v_lshrrev_b32 v2, 7, v0"); E("v_lshlrev_b32 v3, 3, v2")
E("v_lshlrev_b32 v1, 10, v2"); E("v_bfe_u32 v7, v0, 6, 1"); E("v_lshl_add_u32 v1, v7, 7, v1"); E("v_bfe_u32 v7, v0, 2, 2"); E("v_lshl_add_u32 v1, v7, 8, v1")
E("v_bfe_u32 v7, v0, 4, 2"); E("v_lshl_add_u32 v1, v7, 5, v1"); E("v_and_b32 v7, 3, v0"); E("v_lshl_add_u32 v1, v7, 3, v1")
E("v_lshlrev_b32 v7, 6, v2"); E("s_add_u32 s8, s84, s86"); E("s_add_u32 s9, s85, s86")
bar()
for w in range(4): E("ds_read_b64 %s, v3 offset:%d" % (vr(40 + 2 * w, 2), ML + 16 * w))
for w in range(4): E("ds_read_b64 %s, v1 offset:%d" % (vr(32 + 2 * w, 2), OM + 2048 * w))
E("s_waitcnt lgkmcnt(4)")
E("v_max_f32 v26, v40, v42"); E("v_max3_f32 v26, v26, v44, v46")
for w in range(4): E("v_sub_f32 v%d, v%d, v26" % (40 + 2 * w, 40 + 2 * w)); E("v_mul_f32 v%d, s99, v%d" % (40 + 2 * w, 40 + 2 * w))
for w in range(4): E("v_exp_f32 v%d, v%d" % (40 + 2 * w, 40 + 2 * w))
E("s_waitcnt lgkmcnt(0)")
E("v_mul_f32 v24, v40, v32"); E("v_mul_f32 v25, v40, v33"); E("v_mul_f32 v27, v40, v41")
for w in range(1, 4):
    E("v_fmac_f32 v24, v%d, v%d" % (40 + 2 * w, 32 + 2 * w)); E("v_fmac_f32 v25, v%d, v%d" % (40 + 2 * w, 33 + 2 * w)); E("v_fmac_f32 v27, v%d, v%d" % (40 + 2 * w, 41 + 2 * w))
E("v_cvt_pk_bf16_f32 v24, v24, v25"); E("v_min_u32 v24, -2, v24"); E("v_min_u32 v26, -2, v26"); E("v_min_u32 v27, -2, v27")
E("buffer_store_dword v24, v6, s[64:67], s8 offen sc1")
E("s_and_b32 s10, s7, 1"); E("s_cmp_lg_u32 s10, 0"); E("s_cbranch_scc1 Lnoml")
E("s_mov_b64 exec, 1"); E("buffer_store_dwordx2 v[26:27], v7, s[64:67], s9 offen sc1"); E("s_mov_b64 exec, -1")
Lb("Lnoml")
stamp()
if OPT['fine']:
    for i in range(3):
        l = lab("fs"); E("s_cmp_lg_u32 s7, 0"); E("s_cbranch_scc1 " + l); E("s_cmp_lg_u32 s3, 1"); E("s_cbranch_scc1 " + l)
        E("v_mov_b32 v6, s%d" % (56 + 2 * i)); E("s_lshl_b32 s9, s2, 8"); E("s_add_u32 s9, s9, 0x%x" % (STP + 128 + (20 + i) * 4)); E("v_mov_b32 v7, 0")
        E("s_mov_b64 exec, 1"); E("buffer_store_dword v6, v7, s[64:67], s9 offen"); E("s_mov_b64 exec, -1"); Lb(l)

if OPT['dbg']:
    E("s_cmp_lg_u32 s3, 0"); E("s_cbranch_scc1 Ldbg1"); dbgt(1); Lb("Ldbg1")
E("s_cmp_eq_u32 s12, 1"); E("s_cbranch_scc1 Lg")
E("s_cmp_eq_u32 s12, 0"); E("s_cbranch_scc1 Lq")
E("s_cmp_eq_u32 s12, 3"); E("s_cbranch_scc1 Lf")
E("s_mov_b32 s59, 0")
if OPT['pf']:
    E("s_cmp_eq_u32 s3, 0"); E("s_cbranch_scc1 Lpfd")
    if OPT['stamps']: E("s_waitcnt vmcnt(3)"); E("s_cmp_eq_u32 s7, 0"); E("s_cbranch_scc1 Lpfc")
    E("s_waitcnt vmcnt(2)"); E("s_bitcmp0_b32 s7, 0"); E("s_cbranch_scc1 Lpfc"); E("s_waitcnt vmcnt(1)")
    Lb("Lpfc"); E("v_cmp_eq_u32 vcc, -1, v79"); E("s_cmp_eq_u64 vcc, 0"); E("s_cselect_b32 s59, 1, 0")
    Lb("Lpfd")
lane("v15"); E("v_lshlrev_b32 v1, 3, v15"); E("v_and_b32 v2, 56, v1"); E("s_mul_i32 s8, s7, %d" % PITCH); E("v_add_u32 v3, s8, v1")
E("s_lshl_b32 s8, s7, 3"); E("s_add_u32 s8, s8, s4"); E("s_lshl_b32 s9, s8, 13"); E("s_add_u32 s9, s9, s86"); E("s_lshl_b32 s10, s88, 9"); E("s_add_u32 s9, s9, s10"); E("s_add_u32 s10, s9, 4096")
E("s_lshl_b32 s11, s8, 7"); E("s_add_u32 s11, s11, s86"); E("s_add_u32 s11, s11, 0x%x" % MLB); E("s_lshl_b32 s8, s88, 6"); E("s_add_u32 s11, s11, s8")
OBB = [44, 62]
E("s_lshl_b32 s58, s4, 1"); E("s_add_u32 s58, s58, s88"); E("s_lshl_b32 s58, s58, 3"); E("s_add_u32 s58, s58, s14"); E("s_lshl_b32 s58, s58, 6")
E("s_add_u32 s58, s58, s86"); E("s_add_u32 s58, s58, 0x%x" % EF); E("v_mov_b32 v78, 0")
def eflag2(off):
    E("s_cmp_eq_u32 s7, 0"); E("s_cselect_b64 exec, 1, 0"); E("buffer_store_dword v78, v78, s[64:67], s58 offen offset:%d sc1" % off); E("s_mov_b64 exec, -1")
if OPT['la']:
    E("v_bfe_u32 v72, v0, 4, 2"); E("v_and_b32 v73, 15, v0"); E("v_add_u32 v73, s89, v73"); E("v_mul_u32_u24 v72, 896, v72"); E("v_lshl_add_u32 v73, v73, 1, v72")
    E("s_cmp_eq_u32 s3, 0"); E("s_cbranch_scc1 Lra"); E("s_add_u32 s8, s56, 0x%x" % XV2)
    E("buffer_load_ushort v72, v73, s[64:67], s8 offen sc1"); E("s_branch Lrb")
    Lb("Lra"); E("buffer_load_ushort v72, v73, s[68:71], 0 offen"); Lb("Lrb")
def obl(i): return ["buffer_load_dwordx2 %s, v2, s[64:67], s11 offen sc1" % vr(OBB[i] + 16, 2)] + \
    ["buffer_load_dwordx2 %s, v1, s[64:67], %s offen offset:%d sc1" % (vr(OBB[i] + 2 * s, 2), "s9" if s < 4 else "s10", (s % 4) * 1024) for s in range(8)]
D3 = ["quad_perm:[1,0,3,2] row_mask:0xf bank_mask:0xf", "quad_perm:[2,3,0,1] row_mask:0xf bank_mask:0xf", "row_half_mirror row_mask:0xf bank_mask:0xf"]
def obs(i):
    o = OBB[i]
    if OPT['xe'] & 1: eflag2(0)
    def unp(s):
        for q in range(2): E("v_lshlrev_b32 v%d, 16, v%d" % (16 + 2 * s + q, o + 2 * s + q)); E("v_and_b32 v%d, 0xffff0000, v%d" % (o + 2 * s + q, o + 2 * s + q))
    E("v_max_f32_dpp v6, v%d, v%d " % (o + 16, o + 16) + D3[0]); unp(0)
    E("v_max_f32_dpp v6, v6, v6 " + D3[1]); unp(1)
    E("v_max_f32_dpp v6, v6, v6 " + D3[2]); unp(2)
    E("v_sub_f32 v6, v%d, v6" % (o + 16)); E("v_mul_f32 v6, s99, v6"); E("v_exp_f32 v6, v6"); unp(3)
    E("v_mul_f32 v7, v6, v%d" % (o + 17)); unp(4)
    E("v_add_f32_dpp v7, v7, v7 " + D3[0]); unp(5)
    E("v_add_f32_dpp v7, v7, v7 " + D3[1]); unp(6)
    E("v_add_f32_dpp v7, v7, v7 " + D3[2]); unp(7)
    for s in range(8): E("v_readlane_b32 s%d, v6, %d" % (16 + s, s))
    E("v_rcp_f32 v7, v7")
    for s in range(8):
        for q in range(4):
            src = (16 if q % 2 == 0 else o) + 2 * s + q // 2
            if s == 0: E("v_mul_f32 v%d, s16, v%d" % (32 + q, src))
            else: E("v_fmac_f32 v%d, s%d, v%d" % (32 + q, 16 + s, src))
if OPT['ef']:
    E("s_lshl_b32 s8, s7, 3"); E("s_add_u32 s8, s8, s4"); E("s_lshl_b32 s8, s8, 5"); E("s_add_u32 s8, s8, s86"); E("s_add_u32 s16, s8, 0x%x" % FLG); E("v_lshrrev_b32 v6, 1, v2")
    E("s_cmp_eq_u32 s59, 1"); E("s_cbranch_scc1 Lpfs")
    ppoll(1, lambda i: ["buffer_load_dword v7, v6, s[64:67], s16 offen sc1"], lambda i: E("v_cmp_eq_u32 vcc, -1, v7"), lambda i: None)
    E("s_cmp_eq_u32 s3, 0"); E("s_cbranch_scc1 Lnodw")
    if OPT['dw']: E("s_sleep %d" % OPT['dw'])
    E("s_branch Lnodw"); Lb("Lpfs")
    if OPT['pd']: E("s_sleep %d" % OPT['pd'])
    Lb("Lnodw")
    if OPT['dw0']: E("s_sleep %d" % OPT['dw0'])
def ecount(base):
    if not OPT['ec']: return
    E("s_lshl_b32 s8, s14, 7"); E("s_add_u32 s8, s8, s15"); E("s_add_u32 s8, s8, s86"); E("s_add_u32 s8, s8, 0x%x" % (base + 0x4000))
    E("v_mov_b32 v4, 1"); E("v_mov_b32 v5, 0"); E("s_mov_b64 exec, 1"); E("buffer_atomic_add v4, v5, s[64:67], s8 offen sc1"); E("s_mov_b64 exec, -1")
ppoll(OPT['no'], obl, lambda i: check(range(OBB[i], OBB[i] + 18)), obs, OPT['io'], OPT['zo'])
for q in range(4): E("v_mul_f32 v%d, v%d, v7" % (32 + q, 32 + q))
for q in range(2): E("v_cvt_pk_bf16_f32 v%d, v%d, v%d" % (36 + q, 32 + 2 * q, 33 + 2 * q))
E("ds_write_b64 v3, v[36:37] offset:%d" % ACT1)
stamp()
def dec1(lo, t):
    E("v_lshrrev_b32 v%d, 31, v%d" % (t, lo)); E("v_cvt_f32_i32 v%d, v%d" % (lo, lo)); E("v_add_u32 v%d, v%d, v%d" % (t, t, lo + 1))
    E("v_cvt_f32_i32 v%d, v%d" % (t, t)); E("v_fmac_f32 v%d, s97, v%d" % (t, lo))
def addx(t): bf16r("v%d" % t, "v%d" % t); E("v_add_f32 v150, v%d, v150" % t); bf16r("v150", "v150")
def xatomic(base):
    E("v_rndne_f32 v25, v24"); E("v_sub_f32 v26, v24, v25"); E("v_cvt_i32_f32 v25, v25"); E("v_mul_f32 v26, s96, v26"); E("v_cvt_i32_f32 v24, v26")
    E("v_lshlrev_b32 v1, 12, v1"); E("v_lshl_add_u32 v1, v2, 3, v1")
    E("v_ashrrev_i32 v26, 31, v24"); E("v_add_u32 v25, v25, v26"); E("v_and_or_b32 v24, v24, s95, 1")
    E("s_lshl_b32 s8, s89, 3"); E("s_add_u32 s8, s8, s86"); E("s_add_u32 s8, s8, 0x%x" % base)
    if OPT['la']:
        P = 16 if base == XS1 else 8; l = lab("xa")
        E("v_mov_b32 v74, v24"); E("v_mov_b32 v75, v25")
        E("buffer_atomic_add_x2 v[24:25], v1, s[64:67], s8 offen sc0 sc1")
        E("s_mov_b32 s98, 0"); E("s_add_u32 s8, s86, 0x%x" % (XV1 if base == XS1 else XV2))
        Lb(l + "r"); E("s_waitcnt vmcnt(0)")
        if base == XS2:
            E("v_cmp_eq_u16 vcc, -1, v72"); E("s_cbranch_vccz " + l + "k")
            E("buffer_load_ushort v72, v73, s[64:67], s11 offen sc1")
            E("s_add_u32 s98, s98, 1"); E("s_cmp_lt_u32 s98, 0x4000"); E("s_cbranch_scc1 " + l + "r"); E("s_waitcnt vmcnt(0)")
            Lb(l + "k")
        E("v_add_co_u32 v24, vcc, v24, v74"); E("v_addc_co_u32 v25, vcc, v25, v75, vcc")
        E("v_and_b32 v76, %d, v24" % P); E("v_lshlrev_b32 v72, 16, v72")
        dec1(24, 77); E("v_cmp_ne_u32 vcc, 0, v76")
        bf16r("v77", "v77"); E("v_add_f32 v72, v77, v72"); E("v_cvt_pk_bf16_f32 v72, v72, v72")
        E("s_mov_b64 exec, vcc")
        if base == XS2:
            E("s_cmp_eq_u32 s3, 0"); E("s_cbranch_scc1 " + l + "p")
            E("buffer_store_short v72, v73, s[72:75], 0 offen"); E("s_branch " + l + "e"); Lb(l + "p")
        E("v_min_u16 v72, -2, v72")
        for r in range(OPT['rp']):
            if r: E("s_add_u32 s8, s8, 0x1000")
            E("buffer_store_short v72, v73, s[64:67], s8 offen sc1")
        Lb(l + "e"); E("s_mov_b64 exec, -1")
        return
    if base == XS2 and OPT['fin']:
        E("s_cmp_eq_u32 s3, 0"); E("s_cbranch_scc1 Lplain")
        E("v_mov_b32 v148, v24"); E("v_mov_b32 v149, v25")
        E("buffer_atomic_add_x2 v[24:25], v1, s[64:67], s8 offen sc0 sc1")
        E("s_mov_b32 s98, 0")
        Lb("Lre"); E("s_waitcnt vmcnt(0)")
        E("v_and_b32 v156, 16, v152"); E("v_cmp_eq_u32 vcc, 0, v156"); E("s_cbranch_vccz Lok")
        E("buffer_load_dwordx2 v[152:153], v146, s[64:67], s11 offen sc1")
        E("s_add_u32 s98, s98, 1"); E("s_cmp_lt_u32 s98, 0x4000"); E("s_cbranch_scc1 Lre"); E("s_waitcnt vmcnt(0)")
        Lb("Lok")
        E("v_add_co_u32 v24, vcc, v24, v148"); E("v_addc_co_u32 v25, vcc, v25, v149, vcc")
        E("v_and_b32 v158, 8, v24")
        dec1(152, 156); dec1(24, 157); addx(156)
        E("v_cmp_ne_u32 vcc, 0, v158")
        bf16r("v157", "v157"); E("v_add_f32 v150, v150, v157"); E("v_cvt_pk_bf16_f32 v150, v150, v150")
        E("s_mov_b64 exec, vcc")
        E("buffer_store_short v150, v147, s[72:75], 0 offen")
        E("s_mov_b64 exec, -1")
        stamp()
        E("s_branch Lend")
        Lb("Lplain")
    for r in range(OPT['R']):
        if r: E("s_add_u32 s8, s8, 0x4000")
        E("buffer_atomic_add_x2 v[24:25], v1, s[64:67], s8 offen sc1")
dense(8, ACT1, RW, (8, 12, 16, 20, 32, 36, 40)); xatomic(XS1)
stamp()
E("s_cmp_lg_u32 s88, 0"); E("s_cbranch_scc1 Lnexts")
if OPT['la']: E("s_add_u32 s11, s86, 0x%x" % XV1); E("s_add_u32 s11, s11, s56")
elif OPT['fin']:
    E("s_cmp_eq_u32 s3, 0"); E("s_cbranch_scc1 Lfa")
    E("v_bfe_u32 v144, v0, 4, 2"); E("v_and_b32 v145, 15, v0"); E("v_add_u32 v145, s89, v145")
    E("v_lshlrev_b32 v146, 12, v144"); E("v_lshl_add_u32 v146, v145, 3, v146")
    E("v_mul_u32_u24 v147, 896, v144"); E("v_lshl_add_u32 v147, v145, 1, v147")
    E("s_mov_b32 s8, 0x%x" % XS1); E("buffer_load_dwordx2 v[152:153], v146, s[64:67], s8 offen sc1")
    E("s_mov_b32 s9, 0x%x" % XS2); E("buffer_load_dwordx2 v[154:155], v146, s[64:67], s9 offen sc1")
    E("buffer_load_ushort v150, v147, s[68:71], 0 offen")
    E("s_mov_b32 s11, 0x%x" % (XS1 + LSTEP))
    E("s_waitcnt vmcnt(0)"); E("v_lshlrev_b32 v150, 16, v150")
    dec1(152, 156); addx(156); dec1(154, 157); addx(157)
    Lb("Lfa")
lane("v15"); E("v_min_u32 v1, 27, v15"); E("v_lshlrev_b32 v1, 4, v1")
E("s_lshl_b32 s8, s7, 12"); E("s_mul_i32 s9, s4, 448"); E("s_add_u32 s9, s9, s8"); E("s_add_u32 s9, s9, s86"); E("s_add_u32 s9, s9, 0x%x" % AB)
E("s_mul_i32 s8, s7, %d" % PITCH); E("v_add_u32 v2, s8, v1")
if OPT['hr']: E("s_and_b32 s8, s14, 1"); E("s_lshl_b32 s8, s8, 14"); E("s_add_u32 s9, s9, s8")
E("s_sub_u32 s10, s9, 0x%x" % (AB - AU))
def absucc(i):
    if OPT['xe'] & 2: eflag2(32)
    if OPT['la']: E("buffer_load_ushort v72, v73, s[64:67], s11 offen sc1")
    elif OPT['fin']:
        E("s_cmp_eq_u32 s3, 0"); E("s_cbranch_scc1 Lfb"); E("buffer_load_dwordx2 v[152:153], v146, s[64:67], s11 offen sc1"); Lb("Lfb")
    for q in range(4):
        E("v_lshlrev_b32 v16, 16, v%d" % (64 + q)); E("v_and_b32 v17, 0xffff0000, v%d" % (64 + q)); E("v_lshlrev_b32 v18, 16, v%d" % (68 + q)); E("v_and_b32 v19, 0xffff0000, v%d" % (68 + q))
        E("v_pk_mul_f32 v[16:17], v[16:17], v[18:19]"); E("v_cvt_pk_bf16_f32 v%d, v16, v17" % (20 + q))
    E("ds_write_b128 v2, v[20:23] offset:%d" % ACT0)
if OPT['ht'] >= 2:
    E("s_lshl_b32 s16, s14, 6"); E("s_add_u32 s16, s16, %s" % ("s9" if OPT['ht'] == 2 else "s10")); E("v_mov_b32 v64, 0")
    ppoll(1, lambda i: ["buffer_load_dword v65, v64, s[64:67], s16 offen sc1"], lambda i: E("v_cmp_eq_u32 vcc, -1, v65"), lambda i: None)
elif OPT['ht']:
    E("s_mul_i32 s8, s7, 896"); E("s_add_u32 s8, s8, s11"); E("s_lshl_b32 s16, s89, 1"); E("s_add_u32 s16, s16, s8"); E("v_mov_b32 v64, 0")
    ppoll(1, lambda i: ["buffer_load_ushort v65, v64, s[64:67], s16 offen sc1"], lambda i: E("v_cmp_eq_u16 vcc, -1, v65"), lambda i: None)
ppoll(1, lambda i: ["buffer_load_dwordx4 v[64:67], v1, s[64:67], s9 offen sc1", "buffer_load_dwordx4 v[68:71], v1, s[64:67], s10 offen sc1"],
      lambda i: check(range(64, 72)), absucc, OPT['ia'], OPT['za'])
stamp()
dense(7, ACT0, RW + 32); xatomic(XS2)
stamp()
E("s_branch Lnext")
Lb("Lg")
if OPT['la']: E("s_add_u32 s91, s86, 0x%x" % XV1); xpoll("s91", 1)
else:
    xinit()
    E("s_cmp_eq_u32 s3, 0"); E("s_cbranch_scc1 Lg1")
    xfront([("0x%x" % XS2, 8)])
    Lb("Lg1")
    E("s_add_u32 s91, s86, 0x%x" % XS1)
    xtrig("s91", 16, OPT['ig'])
    xfront([("s91", 16)], 0, 1, OPT['l2'])
stamp()
xunpack(1 - OPT['la']); layernorm(ACT0)
dense(14, ACT0)
E("s_bitcmp1_b32 s2, 0"); E("s_cbranch_scc1 Lnogelu")
bf16r("v24", "v24")
k2 = -2 * 0.7978845608028654 * 1.4426950408889634
E("v_mul_f32 v26, v24, v24"); E("v_mov_b32 v25, %s" % f32(k2)); E("v_fmac_f32 v25, %s, v26" % f32(k2 * 0.044715))
E("v_mul_f32 v25, v25, v24"); E("v_exp_f32 v25, v25"); E("s_nop 0"); E("v_add_f32 v25, 1.0, v25"); E("v_rcp_f32 v25, v25"); E("s_nop 0")
E("v_mul_f32 v24, v25, v24")
Lb("Lnogelu")
E("v_lshlrev_b32 v1, 12, v1"); E("v_lshl_add_u32 v1, v2, 1, v1")
E("v_mov_b32_dpp v26, v24 quad_perm:[1,0,3,2] row_mask:0xf bank_mask:0xf")
E("s_add_u32 s8, s86, s87"); E("s_mov_b32 exec_lo, 0x55555555"); E("s_mov_b32 exec_hi, 0x55555555")
E("v_cvt_pk_bf16_f32 v24, v24, v26"); E("v_min_u32 v24, -2, v24")
E("buffer_store_dword v24, v1, s[64:67], s8 offen sc1")
if OPT['hr']: E("s_add_u32 s8, s8, 0x4000"); E("buffer_store_dword v24, v1, s[64:67], s8 offen sc1")
E("s_mov_b64 exec, -1")
stamp()
E("s_branch Lnextg")
Lb("Lq")
E("s_cmp_lg_u32 s3, 0"); E("s_cbranch_scc1 Lend")
if OPT['la']: xpoll("0x%x" % XV2, 0)
else:
    xinit()
    xtrig("0x%x" % XS2, 8, OPT['it'])
    xfront([("0x%x" % XS1, 16), ("0x%x" % XS2, 8)], 0, 1, OPT['l2'])
stamp()
xunpack(1 - OPT['la']); layernorm(ACT0)
E("s_mov_b32 s82, 0x%x" % QB1)
qbody(OPT['qr'])
stamp()
E("s_branch Lnext")
Lb("Lf")
E("s_cmp_eq_u32 s3, 0"); E("s_cbranch_scc1 Lnexts")
if OPT['fin']: E("s_branch Lend")
E("s_cmp_lg_u32 s2, 255"); E("s_cbranch_scc1 Lend")
xinit()
xfront([("0x%x" % XS1, 16), ("0x%x" % XS2, 8)])
xfront([("0x%x" % (XS1 + LSTEP), 16)], OPT['lazy'])
xfront([("0x%x" % (XS2 + LSTEP), 8)], 0, OPT['nx'])
E("v_lshrrev_b32 v1, 1, v1"); E("v_lshrrev_b32 v2, 1, v2"); E("s_mul_i32 s8, s7, 896")
E("buffer_store_dwordx2 v[8:9], v1, s[72:75], s8 offen")
E("s_mov_b32 exec_hi, 0xffff")
E("buffer_store_dwordx2 v[10:11], v2, s[72:75], s8 offen")
stamp()
dbgt(2)
E("s_branch Lend")
Lb("Lnexts")
if OPT['iq']: E("s_cmp_lg_u32 s3, 0"); E("s_cbranch_scc1 Lend"); E("s_sleep %d" % OPT['iq'])
Lb("Lnextg")
if OPT['iq']: E("s_cmp_lg_u32 s3, 0"); E("s_cbranch_scc1 Lend"); E("s_sleep %d" % OPT['iq'])
Lb("Lnext")
E("s_cmp_lg_u32 s3, 0"); E("s_cbranch_scc1 Lend")
E("s_waitcnt vmcnt(0)")
E("s_mov_b32 s3, 1"); E("s_mov_b32 s86, 0x%x" % LSTEP); E("s_mov_b32 s82, 0x%x" % QB1)
E("s_branch Lloop")

Lb("Lend")
E("s_endpgm")
out += ['.section .rodata,"a"', ".p2align 6", ".amdhsa_kernel %s_kernel" % NAME,
        "  .amdhsa_next_free_vgpr 512", "  .amdhsa_next_free_sgpr 102", "  .amdhsa_accum_offset 256",
        "  .amdhsa_group_segment_fixed_size 0", "  .amdhsa_kernarg_size 96", "  .amdhsa_user_sgpr_count 2",
        "  .amdhsa_user_sgpr_kernarg_segment_ptr 1", "  .amdhsa_system_sgpr_workgroup_id_x 1", ".end_amdhsa_kernel"]
open(sys.argv[1], "w").write("\n".join(out) + "\n")
```
